```python
import torch

def _softmax(x, axis=-1):
    return torch.softmax(x, dim=axis)

def _gelu(x):
    return torch.nn.functional.gelu(x, approximate='tanh')

def _silu(x):
    return torch.nn.functional.silu(x)

def _sigmoid(x):
    return torch.sigmoid(x)

def _layernorm(x, axis=-1, eps=1e-05):
    m = x.mean(dim=axis, keepdim=True)
    v = x.var(dim=axis, keepdim=True, unbiased=False)
    return (x - m) / torch.sqrt(v + eps)

def _scatter_add(tgt, idx, src, axis=0):
    return tgt.clone().index_add_(axis, idx, src)

def _segment_sum(src, seg, n):
    out = torch.zeros((n,) + src.shape[1:], dtype=src.dtype)
    return out.index_add_(0, seg, src)

def _pad(x, pw):
    flat = tuple((v for pair in reversed(pw) for v in pair))
    return torch.nn.functional.pad(x, flat)
kernel_name = 'adaLN_cond__gqa_block_cached__dense_activation_relu__decode'

def setup_inputs():

    _w = lambda a: (lambda t: t.to(torch.bfloat16) if t.is_floating_point() else t)(torch.as_tensor(a))

    def _A_setup():
        B, Sq, D = (1, 1, 576)
        Hq, Hkv, Sk, Dh = (32, 16, 65536, 128)
        assert Hq % Hkv == 0, (Hq, Hkv)
        return {'x': _w((lambda *s: torch.randn(*s, dtype=torch.bfloat16) * 0.1)(B, Sq, D)), 'k_cache': _w((lambda *s: torch.randn(*s, dtype=torch.bfloat16) * 0.8)(B, Hkv, Sk, Dh)), 'v_cache': _w((lambda *s: torch.randn(*s, dtype=torch.bfloat16) * 0.8)(B, Hkv, Sk, Dh)), 'wq': _w((lambda *s: torch.randn(*s, dtype=torch.bfloat16) * 0.8)(D, Hq * Dh) * D ** (-0.5)), 'wo': _w((lambda *s: torch.randn(*s, dtype=torch.bfloat16) * 0.8)(Hq * Dh, D) * (Hq * Dh) ** (-0.5))}
    _A_in = _A_setup()

    def _B_setup():
        B, S, D, Dff = (1, 1, 576, 4608)
        return {'x': _w((lambda *s: torch.randn(*s, dtype=torch.bfloat16) * 0.1)(B, S, D)), 'w1': _w((lambda *s: torch.randn(*s, dtype=torch.bfloat16) * 0.1)(D, Dff)), 'w2': _w((lambda *s: torch.randn(*s, dtype=torch.bfloat16) * 0.1)(Dff, D))}
    _B_in = _B_setup()
    return {'A_x': _A_in['x'], 'A_k_cache': _A_in['k_cache'], 'A_v_cache': _A_in['v_cache'], 'A_wq': _A_in['wq'], 'A_wo': _A_in['wo'], 'B_x': _B_in['x'], 'B_w1': _B_in['w1'], 'B_w2': _B_in['w2'], 'c': _w((lambda *s: torch.randn(*s, dtype=torch.bfloat16) * 0.4)(1, 576) * 8.0), 'w_mod': _w((lambda *s: torch.randn(*s, dtype=torch.bfloat16) * 0.4)(576, 6 * 576) * 576 ** (-0.5) * 8.0)}

def reference(A_x, A_k_cache, A_v_cache, A_wq, A_wo, B_x, B_w1, B_w2, c, w_mod):

    def _A_ref(x, k_cache, v_cache, wq, wo):
        B, Sq, D = x.shape
        Hq, Dh = (32, 128)
        Hkv = k_cache.shape[1]
        rep = Hq // Hkv
        q = (lambda x, *d: x.permute(*d))((x @ wq).reshape(B, Sq, Hq, Dh), 0, 2, 1, 3)
        k = (lambda x, n, axis: torch.repeat_interleave(x, n, dim=axis))(k_cache, rep, axis=1)
        v = (lambda x, n, axis: torch.repeat_interleave(x, n, dim=axis))(v_cache, rep, axis=1)
        scores = torch.einsum('bhqd,bhkd->bhqk', q, k) * Dh ** (-0.5)
        p = _softmax(scores, axis=-1)
        o = torch.einsum('bhqk,bhkd->bhqd', p, v)
        return (lambda x, *d: x.permute(*d))(o, 0, 2, 1, 3).reshape(B, Sq, Hq * Dh) @ wo

    def _B_ref(x, w1, w2):
        h = torch.einsum('bsd,df->bsf', x, w1)
        zero = torch.zeros_like(h)
        h = torch.maximum(h, zero)
        return torch.einsum('bsf,fd->bsd', h, w2)
    x = A_x
    mod = (_silu(c) @ w_mod).reshape(c.shape[0], 6, 1, -1)
    sa, ca, ga, sb, cb, gb = (mod[:, 0].clone(), mod[:, 1].clone(), mod[:, 2].clone(), mod[:, 3].clone(), mod[:, 4].clone(), mod[:, 5].clone())
    h = _layernorm(x, axis=-1) * (1 + ca) + sa
    x = x + ga * _A_ref(h, A_k_cache, A_v_cache, A_wq, A_wo)
    h = _layernorm(x, axis=-1) * (1 + cb) + sb
    x = x + gb * _B_ref(h, B_w1, B_w2)
    return x
```

```python
import re

_TOK = re.compile(r'^(-?)(?:abs\()?([vsa])(?:\[(\d+):(\d+)\]|(\d+))\)?$')
TRANS = ('v_exp_f32', 'v_log_f32', 'v_rcp_f32', 'v_rsq_f32', 'v_sqrt_f32', 'v_sin_f32', 'v_cos_f32')


def regs(tok):
    tok = tok.strip()
    if tok == 'vcc':
        return {'vcc'}
    if tok == 'exec':
        return {'exec'}
    if tok == 'm0':
        return {'m0'}
    m = _TOK.match(tok)
    if not m:
        return set()
    k = m.group(2)
    if m.group(3) is not None:
        return {k + str(i) for i in range(int(m.group(3)), int(m.group(4)) + 1)}
    return {k + m.group(5)}


class Ins:
    def __init__(self, text):
        self.text = text
        t = text.split(';')[0].strip()
        parts = t.split(None, 1)
        self.op = op = parts[0]
        rest = parts[1] if len(parts) > 1 else ''
        ops, depth, cur = [], 0, ''
        for ch in rest:
            if ch in '[(':
                depth += 1
            if ch in '])':
                depth -= 1
            if ch == ',' and depth == 0:
                ops.append(cur.strip())
                cur = ''
            else:
                cur += ch
        if cur.strip():
            ops.append(cur.strip())
        mods = ''
        if ops:
            last = ops[-1].split(None, 1)
            ops[-1] = last[0]
            mods = last[1] if len(last) > 1 else ''
        self.ops, self.mods = ops, mods
        R = [regs(o) for o in ops]
        U = lambda l: set().union(*l) if l else set()
        self.mfma = op.startswith('v_mfma')
        self.valu = op.startswith('v_') and not self.mfma
        self.dpp = '_dpp' in op
        self.trans = op.split('_e32')[0].split('_e64')[0] in TRANS
        self.swap = op.startswith('v_permlane')
        self.lane = op.startswith('v_readlane') or op.startswith('v_readfirstlane')
        self.vmem = op.startswith(('buffer_', 'global_'))
        self.ds = op.startswith('ds_')
        self.salu = op.startswith('s_')
        self.w, self.r = set(), set()
        self.states = 1
        self.wide_store = set()
        if op == 's_nop':
            self.states = int(ops[0], 0) + 1
        if self.mfma:
            self.w = R[0]
            self.a, self.b, self.c = R[1], R[2], R[3]
            self.r = R[1] | R[2] | R[3]
        elif self.valu:
            if self.swap:
                self.w = self.r = R[0] | R[1]
            else:
                self.w = R[0]
                self.r = U(R[1:])
                if op.startswith(('v_add_co', 'v_addc_co', 'v_sub_co')):
                    self.w = R[0] | R[1]
                    self.r = U(R[2:])
                if op.startswith(('v_fmac', 'v_dot2c', 'v_writelane')):
                    self.r |= R[0]
                if self.dpp and ('bank_mask:0xf' not in mods or 'row_mask:0xf' not in mods):
                    self.r |= R[0]
        elif self.vmem:
            if '_load' in op:
                if ' lds' in ' ' + mods:
                    self.r = U(R) | {'m0'}
                else:
                    self.w = R[0]
                    self.r = U(R[1:])
            else:
                self.r = U(R)
                if 'atomic' in op and 'sc0' in mods:
                    self.w = R[0]
                if op.endswith(('x3', 'x4')):
                    self.wide_store = R[0] if op.startswith('buffer') else R[1]
        elif self.ds:
            if op.startswith(('ds_read', 'ds_bpermute', 'ds_swizzle')) or '_rtn' in op:
                self.w = R[0]
                self.r = U(R[1:])
            else:
                self.r = U(R)
        elif self.salu:
            if op.startswith(('s_cmp', 's_bitcmp', 's_cbranch', 's_branch', 's_waitcnt', 's_nop', 's_barrier',
                              's_sleep', 's_setprio', 's_endpgm', 's_setpc')):
                self.r = U(R)
            else:
                self.w = R[0] if R else set()
                self.r = U(R[1:])
                if 'saveexec' in op:
                    self.w = self.w | {'exec'}


def need(p, c):
    n = 0
    isv = lambda s: {x for x in s if x[0] in 'va' and x != 'vcc'}
    iss = lambda s: {x for x in s if x[0] == 's' or x == 'vcc'}
    if p.valu:
        vw = isv(p.w)
        if vw & c.r:
            if c.dpp or c.swap or c.mfma:
                n = max(n, 2)
            if c.lane:
                n = max(n, 1)
            if p.trans and not c.trans:
                n = max(n, 1)
        sw = iss(p.w)
        if sw & c.r:
            if c.valu or c.mfma:
                n = max(n, 4 if c.lane or c.op.startswith('v_writelane') else 2)
            if c.vmem:
                n = max(n, 5)
            if c.salu and not c.op.startswith('s_cbranch'):
                n = max(n, 1)
    if p.mfma:
        if c.mfma:
            if p.w & (c.a | c.b):
                n = max(n, 8)
            if p.w & c.c:
                if not (p.w == c.c and p.op == c.op):
                    n = max(n, 6)
            elif p.w & c.w:
                n = max(n, 8)
        elif (p.w & (c.r | c.w)):
            n = max(n, 8)
        if c.valu and (p.c & c.w):
            n = max(n, 3)
    if p.wide_store and (p.wide_store & c.w):
        n = max(n, 2 if c.valu or c.mfma else 1)
    if p.salu and 'm0' in p.w and 'm0' in c.r and c.vmem:
        n = max(n, 1)
    return n


class Asm:
    def __init__(self):
        self.out = []
        self.hist = []
        self.nops = 0

    def raw(self, text):
        self.out.append(text)

    def label(self, name):
        self.out.append(name + ':')

    def fence(self):
        self.hist = []

    def __call__(self, text):
        for line in text.split('\n'):
            line = line.strip()
            if not line:
                continue
            if line.startswith(';'):
                self.out.append('    ' + line)
                continue
            if line.endswith(':'):
                self.out.append(line)
                continue
            ins = Ins(line)
            dist = 0
            pad = 0
            for p in reversed(self.hist):
                if dist >= 12:
                    break
                pad = max(pad, need(p, ins) - dist)
                dist += p.states
            if pad > 0:
                nop = Ins('s_nop %d' % (pad - 1))
                self.out.append('    ' + nop.text)
                self.hist.append(nop)
                self.nops += 1
            self.out.append('    ' + line)
            self.hist.append(ins)
            self.hist = self.hist[-16:]

    def text(self):
        return '\n'.join(self.out) + '\n'
```

```python
import sys
from asmlib import Asm

NAME = 'adaLN_cond__gqa_block_cached__dense_activation_relu__decode'

DEFAULTS = dict(
    D=[5],
    stamps=False,
    rehearse=True,
    ld='sc1', st='sc1',
    wpol='nt',
    spin=1 << 17,
    sleep=1,
    prio=1,
)

WS_EPOCH = 0x0
WS_MOD = 0x1000
WS_Q = 0x5000
WS_H1S = 0x9000
WS_H2 = 0xA000
WS_H1O = 0x20000
WS_H3 = 0x60000
WS_SIZE = 0x100000
WS_STAMP = 0x100000
L_CNT = 0x0
L_Q = 0x100
L_XV = 0x300
XV_STRIDE = 320
L_PART = 0x800
L_PART2 = 0xA00
L_X2 = 0xE00
L_SO = 0x1800
L_SS = 0x2800
LDS_BYTES = 0x2900

FULL = 'row_mask:0xf bank_mask:0xf'


def vr(a, n):
    return 'v[%d:%d]' % (a, a + n - 1) if n > 1 else 'v%d' % a


def gen(**kw):
    P = dict(DEFAULTS)
    P.update(kw)
    a = Asm()
    LD, ST, WPOL = P['ld'], P['st'], P['wpol']
    uid = [0]

    def lab(s):
        uid[0] += 1
        return 'L_%s_%d' % (s, uid[0])

    vST = 15

    def stamp(i):
        if P['stamps']:
            a('s_memrealtime s[90:91]\ns_waitcnt lgkmcnt(0)\nv_writelane_b32 v%d, s90, %d' % (vST, i))

    def stamp_flush():
        if P['stamps']:
            a('''s_mov_b64 exec, -1
                 s_load_dwordx2 s[92:93], s[0:1], 96
                 s_lshl_b32 s90, s2, 11
                 s_lshl_b32 s91, s3, 8
                 s_add_u32 s90, s90, s91
                 s_add_u32 s90, s90, %d
                 v_lshlrev_b32 v1, 2, v0
                 s_waitcnt lgkmcnt(0)
                 s_mov_b32 s94, 0x200000
                 s_mov_b32 s95, 0x20000
                 buffer_store_dword v%d, v1, s[92:95], s90 offen''' % (WS_STAMP, vST))

    def allred(op, x, t, first=1):
        if first <= 1:
            a('%s_dpp v%d, v%d, v%d quad_perm:[1,0,3,2] %s' % (op, x, x, x, FULL))
        if first <= 2:
            a('%s_dpp v%d, v%d, v%d quad_perm:[2,3,0,1] %s' % (op, x, x, x, FULL))
        a('%s_dpp v%d, v%d, v%d row_ror:4 %s' % (op, x, x, x, FULL))
        a('%s_dpp v%d, v%d, v%d row_ror:8 %s' % (op, x, x, x, FULL))
        for sw in ('16', '32'):
            a('v_mov_b32 v%d, v%d' % (t, x))
            a('v_permlane%s_swap_b32 v%d, v%d' % (sw, x, t))
            a('%s v%d, v%d, v%d' % (op, x, x, t))

    def rowred(op, xs):
        for pat in ('quad_perm:[1,0,3,2]', 'quad_perm:[2,3,0,1]', 'row_ror:4', 'row_ror:8'):
            for x in xs:
                a('%s_dpp v%d, v%d, v%d %s %s' % (op, x, x, x, pat, FULL))

    def quadred(qs):
        for q in qs:
            a('v_permlane32_swap_b32 v%d, v%d' % (q, q + 2))
            a('v_permlane32_swap_b32 v%d, v%d' % (q + 1, q + 3))
        for q in qs:
            a('v_add_f32 v%d, v%d, v%d' % (q, q, q + 2))
            a('v_add_f32 v%d, v%d, v%d' % (q + 1, q + 1, q + 3))
        for q in qs:
            a('v_permlane16_swap_b32 v%d, v%d' % (q, q + 1))
        for q in qs:
            a('v_add_f32 v%d, v%d, v%d' % (q, q, q + 1))

    def rbf(d, s):
        a('v_cvt_pk_bf16_f32 v%d, 0, v%d' % (d, s))

    a.raw('; @launch grid=(256,1,1) block=(512,1,1) lds=%d' % LDS_BYTES)
    a.raw('.amdgcn_target "amdgcn-amd-amdhsa--gfx950"\n.text\n.globl %s_kernel\n.p2align 8\n.type %s_kernel,@function\n%s_kernel:' % (NAME, NAME, NAME))
    a('''s_cmp_ge_u32 s2, 256
         s_cbranch_scc1 L_end
         s_load_dwordx4 s[4:7], s[0:1], 8
         v_lshrrev_b32 v1, 6, v0
         v_and_b32 v0, 63, v0
         v_readfirstlane_b32 s3, v1
         s_mov_b32 s19, 0x3fb8aa3b
         s_mov_b32 s34, 0''')
    if P['stamps']:
        a('v_mov_b32 v%d, 0' % vST)
    stamp(0)
    a('''s_cmp_ge_u32 s3, 4
         s_cbranch_scc1 L_service''')

    vK0, vK1, vV0, vV1, vME, vM, vL, vS, vP, vT, vW = 2, 3, 4, 5, 6, 7, 8, 9, 10, 11, 12
    BQ, O, AS, DD, TT, RING = 16, 24, 28, 36, 52, 64
    a('''; ---- stream wave: K lane map row=(l>>2)&3, chunk=(l>>4)*4+(l&3); V lane map linear
         v_bfe_u32 v2, v0, 2, 2
         v_lshlrev_b32 v2, 8, v2
         v_lshrrev_b32 v3, 4, v0
         v_lshlrev_b32 v3, 6, v3
         v_and_b32 v4, 3, v0
         v_lshlrev_b32 v4, 4, v4
         v_add3_u32 v2, v2, v3, v4
         v_add_u32 v3, 0x1000, v2
         v_lshlrev_b32 v4, 4, v0
         v_add_u32 v5, 0x1000, v4
         s_lshl_b32 s17, s2, 20
         s_lshl_b32 s16, s3, 13
         s_mov_b32 s10, 0x100000
         s_mov_b32 s11, 0x20000
         s_mov_b32 s14, 0x100000
         s_mov_b32 s15, 0x20000
         s_waitcnt lgkmcnt(0)
         s_add_u32 s8, s4, s17
         s_addc_u32 s9, s5, 0
         s_add_u32 s12, s6, s17
         s_addc_u32 s13, s7, 0''')
    if P['prio']:
        a('s_setprio %d' % P['prio'])
    Dp = P['D']
    ldn = [0]

    def load(buf, kv, j, wait=True):
        r = RING + 64 * buf + 32 * kv + 4 * j
        voff = (vK0, vV0)[kv] + (j >> 2)
        if wait:
            a('s_waitcnt vmcnt(%d)' % (Dp[ldn[0] % len(Dp)] - 1))
        ldn[0] += 1
        a('buffer_load_dwordx4 %s, v%d, s[%d:%d], s16 offen offset:%d nt' % (vr(r, 4), voff, 8 + 4 * kv, 11 + 4 * kv, (j & 3) * 1024))

    n = 0
    for buf in range(3):
        for kv in range(2):
            for j in range(8):
                load(buf, kv, j, wait=n >= min(Dp))
                n += 1
                if n == min(Dp):
                    a('''s_barrier
                         s_mov_b32 s18, 0x3db504f3
                         v_and_b32 v1, 1, v0
                         v_cmp_eq_u32 vcc, 1, v1
                         v_mov_b32 v6, 0xffff
                         v_mov_b32 v11, 0xffff0000
                         v_cndmask_b32 v6, v6, v11, vcc
                         v_mov_b32 v7, 0xff800000
                         v_mov_b32 v8, 0''')
                    for r in range(O, O + 12):
                        a('v_mov_b32 v%d, 0' % r)
                    a('''v_lshlrev_b32 v1, 8, v1
                         v_lshrrev_b32 v11, 2, v0
                         v_lshl_add_u32 v14, v11, 4, v1''')
        a('s_add_u32 s16, s16, 0x8000')
    stamp(1)
    a('''s_barrier     ; #2 (q ready)
         ds_read_b128 v[16:19], v14 offset:%d
         v_and_b32 v1, 2, v0
         v_cmp_eq_u32 vcc, 0, v1
         s_mov_b32 s17, 10
         s_waitcnt lgkmcnt(0)''' % L_Q)
    for r in range(4):
        a('v_cndmask_b32 v%d, v%d, 0, vcc' % (BQ + 4 + r, BQ + r))
    for r in range(4):
        a('v_cndmask_b32 v%d, 0, v%d, vcc' % (BQ + r, BQ + r))
    stamp(2)

    def tile(buf, refill, last=False):
        K = RING + 64 * buf
        V = K + 32
        for p in range(4):
            d = vr(DD + 4 * p, 4)
            a('v_mfma_f32_16x16x32_bf16 %s, %s, %s, 0' % (d, vr(K + 8 * p, 4), vr(BQ, 4)))
            if refill:
                load(buf, 0, 2 * p)
            a('v_mfma_f32_16x16x32_bf16 %s, %s, %s, %s' % (d, vr(K + 8 * p + 4, 4), vr(BQ + 4, 4), d))
            if refill:
                load(buf, 0, 2 * p + 1)
        for step in (1, 2, 3):
            for p in range(4):
                c = (p + step) & 3
                rot = 4 * ((p - c) & 3)
                src1 = DD + 4 * p + p if step == 1 else TT + p
                if step < 3:
                    a('v_add_f32_dpp v%d, v%d, v%d row_ror:%d %s' % (TT + p, DD + 4 * p + c, src1, rot, FULL))
                else:
                    a('v_add_f32_dpp v%d, v%d, v%d row_ror:%d row_mask:0xf bank_mask:0x%x' % (vS, DD + 4 * p + c, src1, rot, 1 << p))
        rbf(vS, vS)
        a('v_mul_f32 v%d, s18, v%d' % (vS, vS))
        rbf(vS, vS)
        skip = lab('nors')
        a('v_cmp_gt_f32 vcc, v%d, v%d' % (vS, vM))
        a('s_cbranch_vccz %s' % skip)
        a('s_call_b64 s[30:31], L_rescale')
        a.label(skip)
        a('''v_sub_f32 v{P}, v{S}, v{M}
             v_mul_f32 v{P}, s19, v{P}
             v_exp_f32 v{P}, v{P}
             v_add_f32 v{L}, v{L}, v{P}
             v_cvt_pk_bf16_f32 v{P}, v{P}, v{P}'''.format(P=vP, S=vS, M=vM, L=vL))
        a('v_and_b32_dpp v%d, v%d, v%d quad_perm:[0,0,1,1] %s' % (vW, vP, vME, FULL))
        a('v_and_b32_dpp v%d, v%d, v%d quad_perm:[2,2,3,3] %s' % (vW + 1, vP, vME, FULL))

        def build(jv):
            p, u = jv >> 1, jv & 1
            A = AS + 4 * u
            for t in range(4):
                rot = 4 * ((t - p) & 3)
                pat = 'row_ror:%d' % rot if rot else 'quad_perm:[0,1,2,3]'
                a('v_mov_b32_dpp v%d, v%d %s row_mask:0xf bank_mask:0x%x' % (A + t, vW + u, pat, 1 << t))
        build(0)
        for jv in range(8):
            if jv < 7:
                build(jv + 1)
            if last and 7 - jv < max(Dp):
                a('s_waitcnt vmcnt(%d)' % (7 - jv))
            a('v_mfma_f32_16x16x32_bf16 %s, %s, %s, %s' % (vr(O, 4), vr(AS + 4 * (jv & 1), 4), vr(V + 4 * jv, 4), vr(O, 4)))
            if refill:
                load(buf, 1, jv)
        if refill:
            a('s_add_u32 s16, s16, 0x8000')

    assert max(Dp) <= 8 and 48 % len(Dp) == 0
    a.label('L_loop')
    tile(0, True)
    tile(1, True)
    a('''s_sub_u32 s17, s17, 1
         s_cmp_eq_u32 s17, 0
         s_cbranch_scc1 L_drain''')
    tile(2, True)
    a('s_branch L_loop')
    a.fence()
    a.label('L_rescale')
    a('s_nop 1\nv_mov_b32 v%d, v%d' % (vT, vS))
    allred('v_max_f32', vT, 1, first=2)
    a('''v_max_f32 v{T}, v{T}, v{M}
         v_sub_f32 v1, v{M}, v{T}
         v_mul_f32 v1, s19, v1
         v_exp_f32 v1, v1
         v_mov_b32 v{M}, v{T}
         v_mul_f32 v{L}, v{L}, v1
         v_readlane_b32 s20, v1, 0
         v_readlane_b32 s21, v1, 1
         v_mul_f32 v24, s20, v24
         v_mul_f32 v25, s20, v25
         v_mul_f32 v26, s21, v26
         v_mul_f32 v27, s21, v27
         s_setpc_b64 s[30:31]'''.format(T=vT, M=vM, L=vL))
    a.fence()
    a.label('L_drain')
    a('s_nop 1')
    stamp(3)
    tile(2, False)
    tile(0, False)
    tile(1, False, last=True)
    allred('v_add_f32', vL, 1, first=2)
    a('''s_and_b32 s20, s3, 3
         s_lshl_b32 s21, s20, 10
         s_lshl_b32 s20, s20, 4
         v_lshl_add_u32 v1, v0, 4, s21
         v_lshl_add_u32 v2, v0, 2, s20
         ds_write_b128 v1, v[24:27] offset:%d
         s_mov_b64 exec, 3
         v_add_u32 v2, %d, v2
         ds_write2_b32 v2, v7, v8 offset0:0 offset1:2
         s_mov_b64 exec, -1
         s_cmp_eq_u32 s34, 1
         s_cbranch_scc1 L_reh1_ret
         s_waitcnt lgkmcnt(0)''' % (L_SO, L_SS))
    stamp(4)
    a('s_barrier')
    stamp_flush()
    a('s_endpgm')
    a.fence()

    sW, sWS, sIN, sOUT, sDBG = 's[36:39]', 's[40:43]', 's[44:47]', 's[48:51]', 's[52:55]'
    RAW, WA, WO, W2, XB, DR = 16, 64, 100, 132, 180, 200
    vGQ, vN, vXVw, vXVr, vPW = 216, 217, 218, 219, 220
    vSH, vSC = 224, 228
    vX, vGA = 232, 236
    AM = 240
    vA1, vA2, vA3, vA4 = 252, 253, 254, 255
    a.label('L_service')
    a('''s_load_dwordx2 s[56:57], s[0:1], 0
         s_load_dwordx4 s[60:63], s[0:1], 24
         s_load_dwordx4 s[64:67], s[0:1], 48
         s_load_dwordx4 s[68:71], s[0:1], 64
         s_load_dwordx4 s[72:75], s[0:1], 80
         s_load_dwordx2 s[76:77], s[0:1], 96
         v_mov_b32 v1, 0
         ds_write_b32 v1, v1 offset:%d
         s_sub_u32 s33, s3, 4
         v_lshrrev_b32 v%d, 4, v0
         v_and_b32 v%d, 15, v0
         s_mov_b32 s39, 0x20000
         s_mov_b32 s42, %d
         s_mov_b32 s43, 0x20000
         s_mov_b32 s46, 1152
         s_mov_b32 s47, 0x20000
         s_mov_b32 s50, 1152
         s_mov_b32 s51, 0x20000
         s_mov_b32 s54, 256
         s_mov_b32 s55, 0x20000
         s_mov_b32 s81, 0
         s_mov_b32 s82, 0x05040100
         s_mov_b32 s83, 0x07060302
         s_mov_b32 s84, -1
         s_mov_b32 s85, 15
         ; j = g*8 + (s&3)*2 + (s>>3)
         s_lshr_b32 s80, s2, 4
         s_lshl_b32 s80, s80, 3
         s_and_b32 s86, s2, 3
         s_lshl_b32 s86, s86, 1
         s_add_u32 s80, s80, s86
         s_bfe_u32 s86, s2, 0x10003
         s_add_u32 s80, s80, s86
         s_waitcnt lgkmcnt(0)
         s_barrier     ; #1
         s_load_dword s35, s[76:77], %d
         s_mov_b32 s40, s76
         s_mov_b32 s41, s77
         s_mov_b32 s48, s72
         s_mov_b32 s49, s73
         s_mov_b32 s52, s74
         s_mov_b32 s53, s75
         s_bitcmp1_b32 s2, 2
         s_cselect_b32 s36, s70, s60
         s_cselect_b32 s37, s71, s61
         s_cselect_b32 s78, 1, 0
         s_cselect_b32 s44, s68, s56
         s_cselect_b32 s45, s69, s57
         s_mul_i32 s78, s78, 1280
         s_sub_u32 s78, 8192, s78
         s_mul_i32 s38, s78, 576
         ; LDS addresses
         s_mul_i32 s86, s33, %d
         s_add_u32 s86, s86, %d
         v_lshl_add_u32 v%d, v0, 3, s86
         v_mul_u32_u24 v1, 72, v%d
         v_add_u32 v%d, s86, v1
         s_lshl_b32 s86, s33, 7
         v_lshl_add_u32 v%d, v%d, 3, s86
         s_bitcmp1_b32 s2, 2
         s_cbranch_scc0 L_gemv_go
         s_cmp_ge_u32 s80, 108
         s_cbranch_scc1 L_pro_done''' % (L_CNT, vGQ, vN, WS_SIZE, WS_EPOCH, XV_STRIDE, L_XV, vXVw, vGQ, vXVr, vPW, vN))
    a.label('L_gemv_go')

    def gemv32_loads(sj):
        a('''s_mul_i32 s86, s33, 144
             v_mul_u32_u24 v1, 36, v%d
             v_add_u32 v1, s86, v1
             v_mul_lo_u32 v1, v1, s78
             v_lshl_add_u32 v1, v%d, 2, v1
             s_lshl_b32 s79, %s, 6''' % (vGQ, vN, sj))
        for i in range(36):
            a('buffer_load_dword v%d, v1, %s, s79 offen %s' % (RAW + i, sW, WPOL))
            if i < 35:
                a('s_add_u32 s79, s79, s78')

    def gemv32_perm():
        for cc in range(2):
            for ip in range(18):
                a('v_perm_b32 v%d, v%d, v%d, s%d' % (WA + 18 * cc + ip, RAW + 2 * ip + 1, RAW + 2 * ip, 82 + cc))

    def gemv32_run():
        a('s_mov_b64 exec, -1')
        for z in range(4):
            a('ds_read2_b64 %s, v%d offset0:%d offset1:%d' % (vr(XB + 4 * z, 4), vXVr, 2 * z, 2 * z + 1))
        a('ds_read_b64 %s, v%d offset:64' % (vr(XB + 16, 2), vXVr))
        for z in range(4):
            a('s_waitcnt lgkmcnt(%d)' % (4 - z))
            for cc in range(2):
                d = vr(DR + 4 * cc, 4)
                a('v_mfma_f32_16x16x32_bf16 %s, %s, %s, %s' % (d, vr(XB + 4 * z, 4), vr(WA + 18 * cc + 4 * z, 4), d if z else '0'))
        a('s_waitcnt lgkmcnt(0)')
        for cc in range(2):
            a('v_mfma_f32_16x16x16_bf16 %s, %s, %s, 0' % (vr(DR + 8 + 4 * cc, 4), vr(XB + 16, 2), vr(WA + 18 * cc + 16, 2)))
        a('''v_add_f32 v2, v%d, v%d
             v_add_f32 v3, v%d, v%d
             s_mov_b64 exec, 0xffff
             ds_write_b64 v%d, v[2:3] offset:%d''' % (DR, DR + 8, DR + 4, DR + 12, vPW, L_PART))

    def unpack(dst, src, n):
        for i in range(n):
            a('v_lshlrev_b32 v%d, 16, v%d' % (dst + 2 * i, src[i]))
            a('v_and_b32 v%d, 0xffff0000, v%d' % (dst + 2 * i + 1, src[i]))

    def layernorm(X):
        a('''s_mov_b64 exec, -1
             v_mov_b32 v2, 0
             v_mov_b32 v3, 0
             s_mov_b64 exec, s[84:85]''')
        for i in range(4):
            a('v_add_f32 v%d, v%d, v%d' % (4 + i, X + i, X + 4 + i))
        for i in range(4):
            a('v_add_f32 v%d, v%d, v%d' % (8 + i, X + 8 + i, X + 12 + i))
        for i in range(4):
            a('v_add_f32 v%d, v%d, v%d' % (4 + i, 4 + i, 8 + i))
        a('''v_add_f32 v4, v4, v5
             v_add_f32 v6, v6, v7
             v_add_f32 v2, v4, v6
             s_mov_b64 exec, -1''')
        allred('v_add_f32', 2, 1)
        a('''v_mul_f32 v2, 0x3ae38e39, v2
             s_mov_b64 exec, s[84:85]''')
        for i in range(4):
            a('v_sub_f32 v%d, v%d, v2' % (4 + i, X + i))
        for i in range(4):
            a('v_mul_f32 v%d, v%d, v%d' % (4 + i, 4 + i, 4 + i))
        for k in range(1, 4):
            for i in range(4):
                a('v_sub_f32 v%d, v%d, v2' % (8 + i, X + 4 * k + i))
            for i in range(4):
                a('v_fmac_f32 v%d, v%d, v%d' % (4 + i, 8 + i, 8 + i))
        a('''v_add_f32 v4, v4, v5
             v_add_f32 v6, v6, v7
             v_add_f32 v3, v4, v6
             s_mov_b64 exec, -1''')
        rbf(2, 2)
        allred('v_add_f32', 3, 1)
        a('v_mul_f32 v3, 0x3ae38e39, v3')
        for i in range(4):
            a('v_sub_f32 v%d, v%d, v2' % (X + i, X + i))
        rbf(3, 3)
        a('v_add_f32 v3, 0x3727c5ac, v3')
        rbf(3, 3)
        a('v_sqrt_f32 v3, v3')
        for i in range(4):
            rbf(X + i, X + i)
        rbf(3, 3)
        a('v_rcp_f32 v3, v3')
        a('s_mov_b64 exec, s[84:85]')
        for i in range(4):
            a('v_mul_f32 v%d, v%d, v3' % (X + i, X + i))
        for i in range(4):
            rbf(X + i, X + i)

    def modulate(X):
        for i in range(4):
            a('v_mul_f32 v%d, v%d, v%d' % (X + i, X + i, vSC + i))
        for i in range(4):
            rbf(X + i, X + i)
        for i in range(4):
            a('v_add_f32 v%d, v%d, v%d' % (X + i, X + i, vSH + i))
        a('''v_cvt_pk_bf16_f32 v2, v%d, v%d
             v_cvt_pk_bf16_f32 v3, v%d, v%d
             ds_write_b64 v%d, v[2:3]''' % (X, X + 1, X + 2, X + 3, vXVw))

    def spin_tail(loop, done):
        a('s_cbranch_vccz %s' % done)
        if P['sleep']:
            a('s_sleep %d' % P['sleep'])
        a('''s_add_u32 s81, s81, 1
             s_cmp_lt_u32 s81, %d
             s_cbranch_scc1 %s''' % (P['spin'], loop))
        a.label(done)

    def poll_tag(loads, tags):
        loop, done = lab('pt'), lab('ptd')
        a.label(loop)
        for l in loads:
            a(l + ' ' + LD)
        a('s_waitcnt vmcnt(0)')
        a('v_cmp_ne_u32 vcc, s35, v%d' % tags[0])
        for t in tags[1:]:
            a('v_cmp_ne_u32 s[86:87], s35, v%d' % t)
            a('s_or_b64 vcc, vcc, s[86:87]')
        spin_tail(loop, done)

    def poll_sent(loads, first, n):
        loop, done = lab('ps'), lab('psd')
        a.label(loop)
        for l in loads:
            a(l + ' ' + LD)
        nq = n // 4
        for q in range(nq):
            r = first + 4 * q
            a('s_waitcnt vmcnt(%d)' % (nq - 1 - q))
            if q == 0:
                a('v_max_u32 v2, v%d, v%d' % (r, r + 1))
                a('v_max_u32 v3, v%d, v%d' % (r + 2, r + 3))
            else:
                a('v_max3_u32 v2, v2, v%d, v%d' % (r, r + 1))
                a('v_max3_u32 v3, v3, v%d, v%d' % (r + 2, r + 3))
        a('v_max_u32 v2, v2, v3')
        a('v_cmp_eq_u32 vcc, -1, v2')
        spin_tail(loop, done)

    def load_shift_scale(first):
        a('''s_mul_i32 s86, s33, 576
             s_add_u32 s86, s86, %d
             v_lshl_add_u32 v1, v0, 4, s86''' % (WS_MOD + first * 2304))
        poll_tag(['buffer_load_dwordx4 v[4:7], v1, %s, 0 offen' % sWS,
                  'buffer_load_dwordx4 v[8:11], v1, %s, 0 offen offset:2304' % sWS], [5, 7, 9, 11])
        unpack(vSH, [4, 6], 2)
        unpack(vSC, [8, 10], 2)
        for i in range(4):
            a('v_add_f32 v%d, 1.0, v%d' % (vSC + i, vSC + i))
        for i in range(4):
            rbf(vSC + i, vSC + i)

    XI = 52
    XF = W2
    a('''s_mov_b64 exec, s[84:85]
         v_lshlrev_b32 v2, 3, v0''')
    for k in range(4):
        a('''s_add_u32 s86, s33, %d
             s_and_b32 s86, s86, 3
             s_mul_i32 s86, s86, 288
             buffer_load_dwordx2 %s, v2, %s, s86 offen''' % (k, vr(XI + 2 * k, 2), sIN))
    a('s_mov_b64 exec, -1')
    gemv32_loads('s80')
    a('''s_waitcnt lgkmcnt(0)
         s_mul_i32 s35, s35, 0x9e3779b1
         s_add_u32 s35, s35, 0x7f4a7c15
         s_waitcnt vmcnt(36)''')
    unpack(XF, list(range(XI, XI + 8)), 8)
    a('''s_bitcmp1_b32 s2, 2
         s_cbranch_scc0 L_qrole''')
    a('s_mov_b64 exec, s[84:85]\ns_mov_b32 s86, 0x32a57060\ns_mov_b32 s87, 0x7f7fffff')
    T, R, E = 4, 8, XF + 4
    X = XF
    seq = ['v_mul_f32 v{t}, 0xbfb8aa3b, v{x}',
           'v_fma_f32 v{r}, -v{x}, s19, -v{t}',
           'v_exp_f32 v{t}, v{t}',
           'v_fma_f32 v{r}, -v{x}, s86, v{r}',
           'v_mul_f32 v{r}, 0x3f317218, v{r}',
           'v_med3_f32 v{r}, v{r}, -0.5, 0.5',
           'v_min_f32 v{e}, s87, v{t}',
           'v_fma_f32 v{t}, v{e}, v{r}, v{t}',
           'v_add_f32 v{t}, 1.0, v{t}',
           'v_rcp_f32 v{r}, v{t}',
           'v_mul_f32 v{e}, v{x}, v{r}',
           'v_fma_f32 v{f}, -v{e}, v{t}, v{x}',
           'v_fma_f32 v{e}, v{f}, v{r}, v{e}',
           'v_div_fixup_f32 v{t}, v{e}, v{t}, v{x}']
    for ins in seq:
        for i in range(4):
            a(ins.format(t=T + i, r=R + i, e=E + i, f=E + 4 + i, x=X + i))
    a('''v_cvt_pk_bf16_f32 v2, v4, v5
         v_cvt_pk_bf16_f32 v3, v6, v7
         ds_write_b64 v%d, v[2:3]
         s_mov_b64 exec, -1
         s_mov_b32 s88, %d
         s_waitcnt vmcnt(0)''' % (vXVw, WS_MOD))
    stamp(1)
    gemv32_perm()
    a('s_branch L_gemv_run')
    a.fence()
    a.label('L_qrole')
    layernorm(XF)
    a('''s_mov_b64 exec, -1
         s_mov_b32 s88, %d
         s_waitcnt vmcnt(0)''' % WS_Q)
    stamp(1)
    gemv32_perm()
    a('s_mov_b64 exec, s[84:85]')
    load_shift_scale(0)
    stamp(2)
    modulate(XF)
    a.label('L_gemv_run')
    gemv32_run()
    a('''s_mov_b64 exec, 1
         v_mov_b32 v1, 0
         v_mov_b32 v2, 1
         s_waitcnt lgkmcnt(0)
         ds_add_u32 v1, v2 offset:%d
         s_cmp_lg_u32 s33, 0
         s_cbranch_scc1 L_pro_done''' % L_CNT)
    a.label('L_svc_spin')
    a('''ds_read_b32 v2, v1 offset:%d
         s_add_u32 s81, s81, 1
         s_cmp_ge_u32 s81, %d
         s_cbranch_scc1 L_svc_ok
         s_waitcnt lgkmcnt(0)
         v_cmp_ne_u32 vcc, 4, v2
         s_cbranch_vccnz L_svc_spin''' % (L_CNT, P['spin']))
    a.label('L_svc_ok')
    a('''s_mov_b64 exec, 0xffff
         ds_read2_b64 v[4:7], v{PW} offset0:{o0} offset1:{o1}
         ds_read2_b64 v[8:11], v{PW} offset0:{o2} offset1:{o3}
         s_lshl_b32 s86, s80, 7
         s_add_u32 s88, s88, s86
         v_mov_b32 v3, s35
         s_waitcnt lgkmcnt(0)
         v_add_f32 v4, v4, v6
         v_add_f32 v5, v5, v7
         v_add_f32 v8, v8, v10
         v_add_f32 v9, v9, v11
         v_add_f32 v4, v4, v8
         v_add_f32 v5, v5, v9
         v_cvt_pk_bf16_f32 v2, v4, v5
         buffer_store_dwordx2 v[2:3], v{PW}, {ws}, s88 offen {st}'''.format(
        PW=vPW, o0=0, o1=16, o2=32, o3=48, ws=sWS, st=ST).replace('v%d offset0' % vPW, 'v12 offset0').replace(
        's_mov_b64 exec, 0xffff', 's_mov_b64 exec, 0xffff\nv_add_u32 v12, %d, v%d' % (L_PART, vPW)))
    stamp(3)
    a('s_branch L_pro_done2')
    a.fence()
    a.label('L_pro_done')
    a('''s_bitcmp1_b32 s2, 2
         s_cbranch_scc0 L_pro_done2
         s_cmp_lt_u32 s80, 108
         s_cbranch_scc1 L_pro_done2
         s_waitcnt lgkmcnt(0)
         s_mul_i32 s35, s35, 0x9e3779b1
         s_add_u32 s35, s35, 0x7f4a7c15''')
    a.label('L_pro_done2')
    a('''s_mov_b64 exec, -1
         s_cmp_lg_u32 s33, 1
         s_cbranch_scc1 L_q_done
         s_lshr_b32 s86, s2, 4
         s_lshl_b32 s86, s86, 10
         s_add_u32 s86, s86, %d
         v_lshl_add_u32 v1, v0, 4, s86''' % WS_Q)
    poll_tag(['buffer_load_dwordx4 v[4:7], v1, %s, 0 offen' % sWS], [5, 7])
    a('''v_lshlrev_b32 v1, 3, v0
         v_mov_b32 v5, v6
         ds_write_b64 v1, v[4:5] offset:%d''' % L_Q)
    stamp(4)
    a.label('L_q_done')
    if P['rehearse']:
        a('''s_cmp_lg_u32 s33, 3
             s_cbranch_scc1 L_reh1_skip
             s_mov_b32 s34, 1
             s_branch L_drain''')
        a.fence()
    a.label('L_reh1_ret')
    a('s_mov_b32 s34, 0')
    a.label('L_reh1_skip')
    a('''s_waitcnt lgkmcnt(0)
         s_barrier     ; #2''')
    stamp(5)
    a('''s_and_b32 s29, s2, 15
         s_lshr_b32 s32, s2, 4
         s_sub_u32 s80, s32, 7
         s_lshl_b32 s80, s80, 4
         s_and_b32 s86, s2, 7
         s_lshl_b32 s86, s86, 1
         s_add_u32 s80, s80, s86
         s_bfe_u32 s86, s2, 0x10003
         s_add_u32 s80, s80, s86
         s_mov_b32 s22, 4096
         s_mov_b32 s23, 8192
         ; publish offsets: s24 H1O, s25 H1S, s26 H2, s27 H3
         s_lshl_b32 s24, s2, 10
         s_add_u32 s24, s24, %d
         s_lshl_b32 s25, s2, 4
         s_add_u32 s25, s25, %d
         s_lshl_b32 s26, s2, 8
         s_add_u32 s26, s26, %d
         s_mul_i32 s27, s80, 2304
         s_add_u32 s27, s27, %d
         v_lshlrev_b32 v14, 4, v0
         v_mov_b32 v252, 0
         v_mov_b32 v253, 0
         v_mov_b32 v254, 0
         v_mov_b32 v255, 0
         s_cmp_lg_u32 s33, 2
         s_cbranch_scc1 L_clear_done
         v_mov_b32 v4, -1
         v_mov_b32 v5, -1
         v_mov_b32 v6, -1
         v_mov_b32 v7, -1
         buffer_store_dwordx4 v[4:7], v14, {ws}, s24 offen {st}
         s_mov_b64 exec, 1
         buffer_store_dwordx4 v[4:7], v14, {ws}, s25 offen {st}
         s_cmp_ge_u32 s2, 144
         s_cbranch_scc1 L_clear_h3
         s_mov_b64 exec, 0xffff
         buffer_store_dwordx4 v[4:7], v14, {ws}, s26 offen {st}
         L_clear_h3:
         s_cmp_lt_u32 s2, 112
         s_cbranch_scc1 L_clear_cnt
         s_mov_b64 exec, -1
         buffer_store_dwordx4 v[4:7], v14, {ws}, s27 offen {st}
         buffer_store_dwordx4 v[4:7], v14, {ws}, s27 offen offset:1024 {st}
         s_mov_b64 exec, 0xffff
         buffer_store_dwordx4 v[4:7], v14, {ws}, s27 offen offset:2048 {st}
         L_clear_cnt:
         s_mov_b64 exec, 1
         v_mov_b32 v8, 1
         s_waitcnt vmcnt(0)
         buffer_atomic_add v8, v14, {dbg}, 0 offen
         s_mov_b64 exec, -1
         L_clear_done:'''.format(ws=sWS, st=ST, dbg=sDBG) % (WS_H1O, WS_H1S, WS_H2, WS_H3))
    a('''s_cmp_ge_u32 s2, 144
         s_cbranch_scc1 L_no_wo
         s_mov_b32 s36, s62
         s_mov_b32 s37, s63
         s_mov_b32 s38, %d
         v_lshrrev_b32 v1, 1, v{GQ}
         v_lshlrev_b32 v1, 7, v1
         v_and_b32 v2, 1, v{GQ}
         s_lshl_b32 s86, s29, 8
         s_lshl_b32 s87, s33, 1
         s_add_u32 s86, s86, s87
         v_add3_u32 v1, v1, v2, s86
         v_mul_u32_u24 v1, 1152, v1
         v_lshl_add_u32 v1, v{N}, 3, v1
         s_lshl_b32 s79, s32, 7'''.format(GQ=vGQ, N=vN) % (4096 * 1152))
    for i in range(16):
        a('buffer_load_dwordx2 %s, v1, %s, s79 offen %s' % (vr(RAW + 2 * i, 2), sW, WPOL))
        if i < 15:
            a('s_add_u32 s79, s79, 9216')
    a('''s_lshl_b32 s86, s29, 14
         s_lshl_b32 s87, s33, 8
         s_add_u32 s86, s86, s87
         s_add_u32 s86, s86, {h1o}
         v_lshlrev_b32 v1, 12, v{GQ}
         v_lshl_add_u32 v1, v{N}, 4, v1
         v_add_u32 v{A1}, s86, v1
         v_lshl_add_u32 v1, v{GQ}, 2, v{N}
         v_and_b32 v1, 15, v1
         s_lshl_b32 s86, s29, 8
         s_add_u32 s86, s86, {h1s}
         v_lshl_add_u32 v{A2}, v1, 4, s86
         s_waitcnt vmcnt(0)'''.format(GQ=vGQ, N=vN, A1=vA1, A2=vA2, h1o=WS_H1O, h1s=WS_H1S))
    for cc in range(4):
        for ip in range(8):
            a('v_perm_b32 v%d, v%d, v%d, s%d' % (WO + 8 * cc + ip, RAW + 2 * (2 * ip + 1) + (cc >> 1), RAW + 2 * (2 * ip) + (cc >> 1), 82 + (cc & 1)))
    a.label('L_no_wo')
    a('''s_cmp_lt_u32 s2, 112
         s_cbranch_scc1 L_no_ffn
         s_mov_b32 s36, s64
         s_mov_b32 s37, s65
         s_mov_b32 s38, %d
         s_mov_b32 s78, 9216''' % (576 * 9216))
    gemv32_loads('s80')
    a('s_waitcnt vmcnt(0)')
    gemv32_perm()
    a('''s_mov_b32 s44, s56
         s_mov_b32 s45, s57
         s_cmp_eq_u32 s33, 3
         s_cbranch_scc1 L_w3_prep
         s_mov_b32 s36, s66
         s_mov_b32 s37, s67
         s_lshl_b32 s86, s80, 5
         v_lshl_add_u32 v1, v{GQ}, 3, s86
         v_mul_u32_u24 v1, 1152, v1
         v_lshl_add_u32 v1, v{N}, 3, v1
         s_mul_i32 s79, s33, 384'''.format(GQ=vGQ, N=vN))
    for jj in range(8):
        for blk in range(3):
            a('buffer_load_dwordx2 %s, v1, %s, s79 offen offset:%d %s' % (vr(RAW + 2 * (blk * 8 + jj), 2), sW, blk * 128, WPOL))
        if jj < 7:
            a('s_add_u32 s79, s79, 1152')
    for r in range(AM, AM + 12):
        a('v_mov_b32 v%d, 0' % r)
    a('''s_mul_i32 s86, s33, 192
         v_lshl_add_u32 v1, v{N}, 2, v{GQ}
         v_add_u32 v1, s86, v1
         v_lshlrev_b32 v{A4}, 2, v1
         v_lshlrev_b32 v2, 1, v1
         s_mul_i32 s86, s33, 12288
         s_add_u32 s86, s86, {h2}
         v_add_u32 v{A3}, s86, v14
         s_waitcnt vmcnt(0)'''.format(GQ=vGQ, N=vN, A4=vA4, A3=vA3, h2=WS_H2))
    for blk in range(3):
        for cc in range(4):
            for ip in range(4):
                a('v_perm_b32 v%d, v%d, v%d, s%d' % (W2 + (blk * 4 + cc) * 4 + ip, RAW + 2 * (blk * 8 + 2 * ip + 1) + (cc >> 1),
                                                    RAW + 2 * (blk * 8 + 2 * ip) + (cc >> 1), 82 + (cc & 1)))
    for i in range(3):
        a('buffer_load_ushort v%d, v2, %s, 0 offen offset:%d' % (vX + i, sIN, 128 * i))
    a('''v_lshrrev_b32 v1, 1, v1
         v_lshlrev_b32 v1, 3, v1
         v_add_u32 v1, %d, v1''' % (WS_MOD + 2 * 2304))
    poll_tag(['buffer_load_dwordx2 %s, v1, %s, 0 offen offset:%d' % (vr(4 + 2 * i, 2), sWS, 256 * i) for i in range(3)], [5, 7, 9])
    a('''v_and_b32 v1, 1, v%d
         v_lshlrev_b32 v1, 4, v1''' % vGQ)
    for i in range(3):
        a('v_lshlrev_b32 v%d, 16, v%d' % (vX + i, vX + i))
        a('v_lshrrev_b32 v%d, v1, v%d' % (vGA + i, 4 + 2 * i))
        a('v_lshlrev_b32 v%d, 16, v%d' % (vGA + i, vGA + i))
    a('s_branch L_prep_join')
    a.fence()
    a.label('L_w3_prep')
    a('''s_lshl_b32 s86, s80, 2
         v_add_u32 v1, s86, v{GQ}
         v_lshlrev_b32 v{A4}, 2, v1
         v_mul_u32_u24 v2, 2304, v0
         s_lshl_b32 s86, s80, 4
         s_add_u32 s86, s86, {h3}
         v_add_u32 v{A3}, s86, v2
         s_mov_b32 s22, {k1}
         s_mov_b32 s23, {k2}
         v_lshrrev_b32 v1, 1, v1
         v_lshlrev_b32 v1, 3, v1
         v_add_u32 v1, {gb}, v1'''.format(GQ=vGQ, A4=vA4, A3=vA3, h3=WS_H3, k1=48 * 2304, k2=96 * 2304, gb=WS_MOD + 5 * 2304))
    poll_tag(['buffer_load_dwordx2 v[4:5], v1, %s, 0 offen' % sWS], [5])
    a('''v_and_b32 v1, 1, v{GQ}
         v_lshlrev_b32 v1, 4, v1
         v_lshrrev_b32 v{GA}, v1, v4
         v_lshlrev_b32 v{GA}, 16, v{GA}'''.format(GQ=vGQ, GA=vGA))
    a.label('L_prep_join')
    a('s_mov_b64 exec, s[84:85]')
    load_shift_scale(3)
    a('s_mov_b64 exec, -1')
    a.label('L_no_ffn')
    a('''s_cmp_lg_u32 s33, 2
         s_cbranch_scc1 L_cnt_done
         s_mov_b64 exec, 1''')
    a.label('L_cnt_spin')
    a('''s_sleep 32
         buffer_load_dword v4, v14, %s, 0 offen %s
         s_movk_i32 s86, 0x100
         s_waitcnt vmcnt(0)
         v_cmp_ne_u32 vcc, s86, v4''' % (sDBG, LD))
    spin_tail('L_cnt_spin', 'L_cnt_ok')
    a('''s_cmp_lg_u32 s2, 0
         s_cbranch_scc1 L_cnt_done
         v_mov_b32 v4, s35
         buffer_store_dword v4, v14, %s, 0 offen offset:%d %s''' % (sWS, WS_EPOCH, ST))
    a.label('L_cnt_done')
    a('s_mov_b64 exec, -1')
    stamp(6)
    if P['rehearse']:
        a('''s_waitcnt vmcnt(0)
             s_mov_b32 s34, 1
             s_mov_b32 s42, 0
             s_mov_b32 s50, 0
             s_branch L_tail''')
        a.fence()
    a.label('L_reh2_ret')
    a('''s_waitcnt vmcnt(0) lgkmcnt(0)
         s_mov_b64 exec, -1
         s_mov_b32 s34, 0
         s_mov_b32 s42, %d
         s_mov_b32 s50, 1152''' % WS_SIZE)
    stamp(7)
    a('s_barrier     ; #3')

    def tbarrier():
        skip = lab('nb')
        a('''s_waitcnt lgkmcnt(0)
             s_cmp_eq_u32 s34, 1
             s_cbranch_scc1 %s
             s_barrier''' % skip)
        a.label(skip)

    a.label('L_tail')
    stamp(8)
    a('''s_cmp_lg_u32 s33, 0
         s_cbranch_scc1 L_t1
         v_mov_b32 v1, 0''')
    SS, SO = RAW, RAW + 16
    for w in range(4):
        a('ds_read_b128 %s, v1 offset:%d' % (vr(SS + 4 * w, 4), L_SS + 16 * w))
    for w in range(4):
        a('ds_read_b128 %s, v14 offset:%d' % (vr(SO + 4 * w, 4), L_SO + 1024 * w))
    a('s_waitcnt lgkmcnt(4)')
    for h in range(2):
        a('v_max3_f32 v%d, v%d, v%d, v%d' % (4 + h, SS + h, SS + 4 + h, SS + 8 + h))
    for h in range(2):
        a('v_max_f32 v%d, v%d, v%d' % (4 + h, 4 + h, SS + 12 + h))
    for w in range(4):
        for h in range(2):
            a('v_sub_f32 v%d, v%d, v%d' % (SS + 4 * w + h, SS + 4 * w + h, 4 + h))
    for w in range(4):
        for h in range(2):
            a('v_mul_f32 v%d, s19, v%d' % (SS + 4 * w + h, SS + 4 * w + h))
    for w in range(4):
        for h in range(2):
            a('v_exp_f32 v%d, v%d' % (SS + 4 * w + h, SS + 4 * w + h))
    a('s_waitcnt lgkmcnt(0)')
    for w in range(4):
        for r in range(4):
            op = 'v_mul_f32' if w == 0 else 'v_fmac_f32'
            a('%s v%d, v%d, v%d' % (op, 8 + r, SS + 4 * w + (r >> 1), SO + 4 * w + r))
    for r in range(4):
        a('v_min_u32 v%d, -2, v%d' % (8 + r, 8 + r))
    a('buffer_store_dwordx4 v[8:11], v14, %s, s24 offen %s' % (sWS, ST))
    for w in range(4):
        for h in range(2):
            op = 'v_mul_f32' if w == 0 else 'v_fmac_f32'
            a('%s v%d, v%d, v%d' % (op, 6 + h, SS + 4 * w + h, SS + 4 * w + 2 + h))
    for r in range(4):
        a('v_min_u32 v%d, -2, v%d' % (4 + r, 4 + r))
    a('''s_mov_b64 exec, 1
         buffer_store_dwordx4 v[4:7], v14, %s, s25 offen %s
         s_mov_b64 exec, -1''' % (sWS, ST))
    stamp(9)
    a.label('L_t1')
    a('''s_cmp_ge_u32 s2, 144
         s_cbranch_scc1 L_t2''')
    poll_sent(['buffer_load_dwordx4 %s, v%d, %s, 0 offen' % (vr(RAW, 4), vA2, sWS)] +
              ['buffer_load_dwordx4 %s, v%d, %s, 0 offen offset:%d' % (vr(RAW + 4 + 4 * k, 4), vA1, sWS, 1024 * k) for k in range(4)], RAW, 20)
    stamp(10)
    a('v_mov_b32 v4, v%d\nv_mov_b32 v5, v%d' % (RAW, RAW + 1))
    rowred('v_max_f32', [4, 5])
    for h in range(2):
        a('v_sub_f32 v%d, v%d, v%d' % (4 + h, RAW + h, 4 + h))
    for h in range(2):
        a('v_mul_f32 v%d, s19, v%d' % (4 + h, 4 + h))
    for h in range(2):
        a('v_exp_f32 v%d, v%d' % (4 + h, 4 + h))
    for h in range(2):
        a('v_mul_f32 v%d, v%d, v%d' % (6 + h, 4 + h, RAW + 2 + h))
    for k in range(4):
        for r in range(4):
            op = 'v_mul_f32_dpp' if k == 0 else 'v_fmac_f32_dpp'
            a('%s v%d, v%d, v%d row_newbcast:%d %s' % (op, 8 + r, 4 + (r >> 1), RAW + 4 + 4 * k + r, k, FULL))
    rowred('v_add_f32', [6, 7])
    for h in range(2):
        a('v_rcp_f32 v%d, v%d' % (6 + h, 6 + h))
    for r in range(4):
        a('v_mul_f32 v%d, v%d, v%d' % (8 + r, 8 + r, 6 + (r >> 1)))
    quadred([8])
    a('''s_mul_i32 s86, s33, {xs}
         s_add_u32 s86, s86, {xv}
         v_cvt_pk_bf16_f32 v8, v8, v8
         v_lshl_add_u32 v1, v0, 1, s86
         v_lshl_add_u32 v2, v{GQ}, 5, s86
         ds_write_b16 v1, v8
         ds_read_b128 {a0}, v2
         ds_read_b128 {a1}, v2 offset:16
         s_lshl_b32 s86, s33, 8
         v_add_u32 v1, s86, v14
         s_waitcnt lgkmcnt(1)'''.format(xs=XV_STRIDE, xv=L_XV, GQ=vGQ, a0=vr(XB, 4), a1=vr(XB + 4, 4)))
    for cc in range(4):
        a('v_mfma_f32_16x16x32_bf16 %s, %s, %s, 0' % (vr(DR + 4 * cc, 4), vr(XB, 4), vr(WO + 8 * cc, 4)))
    a('s_waitcnt lgkmcnt(0)')
    for cc in range(4):
        d = vr(DR + 4 * cc, 4)
        a('v_mfma_f32_16x16x32_bf16 %s, %s, %s, %s' % (d, vr(XB + 4, 4), vr(WO + 8 * cc + 4, 4), d))
    for cc in range(1, 4):
        a('v_mov_b32 v%d, v%d' % (DR + cc, DR + 4 * cc))
    a('''s_mov_b64 exec, 0xffff
         ds_write_b128 v1, %s offset:%d''' % (vr(DR, 4), L_PART2))
    tbarrier()
    a('''s_cmp_lg_u32 s33, 3
         s_cbranch_scc1 L_t2a''')
    for w in range(4):
        a('ds_read_b128 %s, v14 offset:%d' % (vr(RAW + 4 * w, 4), L_PART2 + 256 * w))
    a('s_waitcnt lgkmcnt(2)')
    for r in range(4):
        a('v_add_f32 v%d, v%d, v%d' % (4 + r, RAW + r, RAW + 4 + r))
    a('s_waitcnt lgkmcnt(0)')
    for r in range(4):
        a('v_add_f32 v%d, v%d, v%d' % (8 + r, RAW + 8 + r, RAW + 12 + r))
    for r in range(4):
        a('v_add_f32 v%d, v%d, v%d' % (4 + r, 4 + r, 8 + r))
    for r in range(4):
        a('v_min_u32 v%d, -2, v%d' % (4 + r, 4 + r))
    a('buffer_store_dwordx4 v[4:7], v14, %s, s26 offen %s' % (sWS, ST))
    stamp(11)
    a.label('L_t2a')
    a('s_mov_b64 exec, -1')
    a.label('L_t2')
    a('''s_cmp_lt_u32 s2, 112
         s_cbranch_scc1 L_exit
         s_cmp_eq_u32 s33, 3
         s_cbranch_scc1 L_t2b''')
    poll_sent(['buffer_load_dwordx4 %s, v%d, %s, %s offen offset:%d' % (vr(RAW + 16 * i + 4 * k, 4), vA3, sWS, ('0', 's22', 's23')[i], 1024 * k)
               for i in range(3) for k in range(4)], RAW, 48)
    stamp(12)
    for i in range(3):
        for r in range(4):
            a('v_add_f32 v%d, v%d, v%d' % (RAW + 16 * i + r, RAW + 16 * i + r, RAW + 16 * i + 4 + r))
        for r in range(4):
            a('v_add_f32 v%d, v%d, v%d' % (RAW + 16 * i + 8 + r, RAW + 16 * i + 8 + r, RAW + 16 * i + 12 + r))
        for r in range(4):
            a('v_add_f32 v%d, v%d, v%d' % (RAW + 16 * i + r, RAW + 16 * i + r, RAW + 16 * i + 8 + r))
    quadred([RAW, RAW + 16, RAW + 32])
    for i in range(3):
        rbf(4 + i, RAW + 16 * i)
    for i in range(3):
        a('v_mul_f32 v%d, v%d, v%d' % (4 + i, 4 + i, vGA + i))
    for i in range(3):
        rbf(4 + i, 4 + i)
    for i in range(3):
        a('v_add_f32 v%d, v%d, v%d' % (4 + i, 4 + i, vX + i))
    for i in range(3):
        rbf(4 + i, 4 + i)
    for i in range(3):
        a('ds_write_b32 v%d, v%d offset:%d' % (vA4, 4 + i, L_X2 + 256 * i))
    a.label('L_t2b')
    tbarrier()
    a('s_mov_b64 exec, s[84:85]')
    for k in range(4):
        a('''s_add_u32 s86, s33, %d
             s_and_b32 s86, s86, 3
             s_mul_i32 s86, s86, 576
             v_add_u32 v1, s86, v14
             ds_read_b128 %s, v1 offset:%d''' % (k, vr(RAW + 4 * k, 4), L_X2))
    a('s_waitcnt lgkmcnt(0)')
    layernorm(RAW)
    modulate(RAW)
    gemv32_run()
    tbarrier()
    stamp(13)
    a('''s_mov_b64 exec, -1
         s_cmp_eq_u32 s33, 3
         s_cbranch_scc1 L_t3
         v_lshlrev_b32 v1, 5, v%d''' % vGQ)
    for w in range(4):
        for hh in range(2):
            a('ds_read_b128 %s, v1 offset:%d' % (vr(RAW + 8 * w + 4 * hh, 4), L_PART + 128 * w + 16 * hh))
    a('s_mul_i32 s86, s33, 768\ns_add_u32 s86, s86, s27')
    a('s_waitcnt lgkmcnt(4)')
    for r in range(8):
        a('v_add_f32 v%d, v%d, v%d' % (RAW + r, RAW + r, RAW + 8 + r))
    a('s_waitcnt lgkmcnt(0)')
    for r in range(8):
        a('v_add_f32 v%d, v%d, v%d' % (RAW + 16 + r, RAW + 16 + r, RAW + 24 + r))
    for r in range(8):
        a('v_add_f32 v%d, v%d, v%d' % (RAW + r, RAW + r, RAW + 16 + r))
    for r in range(8):
        a('v_maximum3_f32 v%d, v%d, 0, 0' % (RAW + r, RAW + r))
    for t in range(4):
        a('v_cvt_pk_bf16_f32 v%d, v%d, v%d' % (4 + t, RAW + 2 * t, RAW + 2 * t + 1))
    for blk in range(3):
        for t in range(4):
            a('v_mov_b32_dpp v%d, v%d quad_perm:[0,1,2,3] row_mask:0xf bank_mask:0x%x' % (AM + 4 * blk + t, 4 + t, 1 << blk))
    for blk in range(3):
        for cc in range(4):
            d = vr(DR + 4 * cc, 4)
            a('v_mfma_f32_16x16x32_bf16 %s, %s, %s, %s' % (d, vr(AM + 4 * blk, 4), vr(W2 + (blk * 4 + cc) * 4, 4), d if blk else '0'))
    for cc in range(4):
        a('v_min_u32 v%d, -2, v%d' % (4 + cc, DR + 4 * cc))
    a('''s_mov_b32 exec_hi, 0xffff
         buffer_store_dwordx4 v[4:7], v14, %s, s86 offen %s''' % (sWS, ST))
    stamp(14)
    a('s_branch L_exit')
    a.fence()
    a.label('L_t3')
    a('ds_read_b32 v12, v%d offset:%d' % (vA4, L_X2))
    for r in range(12):
        a('v_mov_b32 v%d, 0' % (RAW + r))
    a('s_mov_b32 exec_hi, 0xffff')
    poll_sent(['buffer_load_dwordx4 %s, v%d, %s, %s offen' % (vr(RAW + 4 * k, 4), vA3, sWS, ('0', 's22', 's23')[k]) for k in range(3)], RAW, 12)
    stamp(15)
    a('s_mov_b64 exec, -1')
    for r in range(4):
        a('v_add_f32 v%d, v%d, v%d' % (RAW + r, RAW + r, RAW + 4 + r))
    for r in range(4):
        a('v_add_f32 v%d, v%d, v%d' % (RAW + r, RAW + r, RAW + 8 + r))
    quadred([RAW])
    rowred('v_add_f32', [RAW])
    rbf(4, RAW)
    a('v_mul_f32 v4, v4, v%d' % vGA)
    rbf(4, 4)
    a('''s_waitcnt lgkmcnt(0)
         v_add_f32 v4, v4, v12
         v_cvt_pk_bf16_f32 v4, v4, v4
         v_lshrrev_b32 v1, 1, v%d
         s_mov_b32 exec_lo, 0x00010001
         s_mov_b32 exec_hi, 0x00010001
         buffer_store_short v4, v1, %s, 0 offen''' % (vA4, sOUT))
    stamp(16)
    a.label('L_exit')
    a('''s_cmp_eq_u32 s34, 1
         s_cbranch_scc1 L_reh2_ret''')
    stamp_flush()
    a.label('L_end')
    a('s_endpgm')
    a.raw('.fill 64, 4, 0xbf800000')
    a.raw('''.section .rodata,"a"
.p2align 6
.amdhsa_kernel %s_kernel
  .amdhsa_next_free_vgpr 256
  .amdhsa_next_free_sgpr 102
  .amdhsa_accum_offset 256
  .amdhsa_group_segment_fixed_size 0
  .amdhsa_kernarg_size 104
  .amdhsa_user_sgpr_count 2
  .amdhsa_user_sgpr_kernarg_segment_ptr 1
  .amdhsa_system_sgpr_workgroup_id_x 1
  .amdhsa_float_denorm_mode_32 3
.end_amdhsa_kernel''' % NAME)
    return a.text()


if __name__ == '__main__':
    out = sys.argv[1]
    kw = eval('dict(%s)' % (sys.argv[2] if len(sys.argv) > 2 else ''))
    open(out, 'w').write(gen(**kw))
```

```python
import sys
from asmlib import Asm

NAME = 'adaLN_cond__gqa_block_cached__dense_activation_relu__decode'

DEFAULTS = dict(
    D=[5],
    stamps=False,
    rehearse=True,
    ld='sc1', st='sc1',
    wpol='nt',
    spin=1 << 17,
    sleep=1,
    prio=1,
)

WS_EPOCH = 0x0
WS_MOD = 0x1000
WS_Q = 0x5000
WS_H1S = 0x9000
WS_H2 = 0xA000
WS_H1O = 0x20000
WS_H3 = 0x60000
WS_SIZE = 0x100000
WS_STAMP = 0x100000
L_CNT = 0x0
L_Q = 0x100
L_XV = 0x300
XV_STRIDE = 320
L_PART = 0x800
L_PART2 = 0xA00
L_X2 = 0xE00
L_SO = 0x1800
L_SS = 0x2800
LDS_BYTES = 0x2900

FULL = 'row_mask:0xf bank_mask:0xf'


def vr(a, n):
    return 'v[%d:%d]' % (a, a + n - 1) if n > 1 else 'v%d' % a


def gen(**kw):
    P = dict(DEFAULTS)
    P.update(kw)
    a = Asm()
    LD, ST, WPOL = P['ld'], P['st'], P['wpol']
    uid = [0]

    def lab(s):
        uid[0] += 1
        return 'L_%s_%d' % (s, uid[0])

    vST = 15
    sect = [0]

    def stamp(i):
        if P['stamps'] == 'dbg':
            mp = {(0, 0): 0, (0, 1): 1, (0, 2): 2, (0, 4): 3, (1, 1): 4, (1, 2): 5, (1, 4): 6, (1, 7): 7, (1, 9): 8, (1, 10): 9,
                  (1, 11): 10, (1, 12): 11, (1, 14): 12, (1, 15): 13, (1, 16): 14}
            if (sect[0], i) not in mp:
                return
            i = mp[(sect[0], i)]
        if P['stamps']:
            a('s_memrealtime s[90:91]\ns_waitcnt lgkmcnt(0)\nv_writelane_b32 v%d, s90, %d' % (vST, i))

    def stamp_flush():
        if P['stamps'] == 'dbg':
            a('''s_mov_b64 exec, -1
                 s_load_dwordx2 s[92:93], s[0:1], 88
                 v_lshlrev_b32 v1, 2, v0
                 v_not_b32 v2, v%d
                 v_cmp_eq_u32 vcc, 0, v0
                 v_cndmask_b32 v2, v%d, v2, vcc
                 s_waitcnt lgkmcnt(0)
                 s_mov_b32 s94, 64
                 s_mov_b32 s95, 0x20000
                 s_mov_b64 exec, 0x7fff
                 buffer_atomic_umax v2, v1, s[92:95], 0 offen offset:4''' % (vST, vST))
        elif P['stamps']:
            a('''s_mov_b64 exec, -1
                 s_load_dwordx2 s[92:93], s[0:1], 96
                 s_lshl_b32 s90, s2, 11
                 s_lshl_b32 s91, s3, 8
                 s_add_u32 s90, s90, s91
                 s_add_u32 s90, s90, %d
                 v_lshlrev_b32 v1, 2, v0
                 s_waitcnt lgkmcnt(0)
                 s_mov_b32 s94, 0x200000
                 s_mov_b32 s95, 0x20000
                 buffer_store_dword v%d, v1, s[92:95], s90 offen''' % (WS_STAMP, vST))

    def allred(op, x, t, first=1):
        if first <= 1:
            a('%s_dpp v%d, v%d, v%d quad_perm:[1,0,3,2] %s' % (op, x, x, x, FULL))
        if first <= 2:
            a('%s_dpp v%d, v%d, v%d quad_perm:[2,3,0,1] %s' % (op, x, x, x, FULL))
        a('%s_dpp v%d, v%d, v%d row_ror:4 %s' % (op, x, x, x, FULL))
        a('%s_dpp v%d, v%d, v%d row_ror:8 %s' % (op, x, x, x, FULL))
        for sw in ('16', '32'):
            a('v_mov_b32 v%d, v%d' % (t, x))
            a('v_permlane%s_swap_b32 v%d, v%d' % (sw, x, t))
            a('%s v%d, v%d, v%d' % (op, x, x, t))

    def rowred(op, xs):
        for pat in ('quad_perm:[1,0,3,2]', 'quad_perm:[2,3,0,1]', 'row_ror:4', 'row_ror:8'):
            for x in xs:
                a('%s_dpp v%d, v%d, v%d %s %s' % (op, x, x, x, pat, FULL))

    def quadred(qs):
        for q in qs:
            a('v_permlane32_swap_b32 v%d, v%d' % (q, q + 2))
            a('v_permlane32_swap_b32 v%d, v%d' % (q + 1, q + 3))
        for q in qs:
            a('v_add_f32 v%d, v%d, v%d' % (q, q, q + 2))
            a('v_add_f32 v%d, v%d, v%d' % (q + 1, q + 1, q + 3))
        for q in qs:
            a('v_permlane16_swap_b32 v%d, v%d' % (q, q + 1))
        for q in qs:
            a('v_add_f32 v%d, v%d, v%d' % (q, q, q + 1))

    def rbf(d, s):
        a('v_cvt_pk_bf16_f32 v%d, 0, v%d' % (d, s))

    a.raw('; @launch grid=(256,1,1) block=(512,1,1) lds=%d' % LDS_BYTES)
    a.raw('.amdgcn_target "amdgcn-amd-amdhsa--gfx950"\n.text\n.globl %s_kernel\n.p2align 8\n.type %s_kernel,@function\n%s_kernel:' % (NAME, NAME, NAME))
    a('''s_cmp_ge_u32 s2, 256
         s_cbranch_scc1 L_end
         s_load_dwordx4 s[4:7], s[0:1], 8
         v_lshrrev_b32 v1, 6, v0
         v_and_b32 v0, 63, v0
         v_readfirstlane_b32 s3, v1
         s_mov_b32 s19, 0x3fb8aa3b
         s_mov_b32 s34, 0''')
    if P['stamps']:
        a('v_mov_b32 v%d, 0' % vST)
    stamp(0)
    a('''s_cmp_ge_u32 s3, 4
         s_cbranch_scc1 L_service''')

    vK0, vK1, vV0, vV1, vME, vM, vL, vS, vP, vT, vW = 2, 3, 4, 5, 6, 7, 8, 9, 10, 11, 12
    BQ, O, AS, DD, TT, RING = 16, 24, 28, 36, 52, 64
    a('''; ---- stream wave: K lane map row=(l>>2)&3, chunk=(l>>4)*4+(l&3); V lane map linear
         v_bfe_u32 v2, v0, 2, 2
         v_lshlrev_b32 v2, 8, v2
         v_lshrrev_b32 v3, 4, v0
         v_lshlrev_b32 v3, 6, v3
         v_and_b32 v4, 3, v0
         v_lshlrev_b32 v4, 4, v4
         v_add3_u32 v2, v2, v3, v4
         v_add_u32 v3, 0x1000, v2
         v_lshlrev_b32 v4, 4, v0
         v_add_u32 v5, 0x1000, v4
         s_lshl_b32 s17, s2, 20
         s_lshl_b32 s16, s3, 13
         s_mov_b32 s10, 0x100000
         s_mov_b32 s11, 0x20000
         s_mov_b32 s14, 0x100000
         s_mov_b32 s15, 0x20000
         s_waitcnt lgkmcnt(0)
         s_add_u32 s8, s4, s17
         s_addc_u32 s9, s5, 0
         s_add_u32 s12, s6, s17
         s_addc_u32 s13, s7, 0''')
    if P['prio']:
        a('s_setprio %d' % P['prio'])
    Dp = P['D']
    ldn = [0]

    def load(buf, kv, j, wait=True):
        r = RING + 64 * buf + 32 * kv + 4 * j
        voff = (vK0, vV0)[kv] + (j >> 2)
        if wait:
            a('s_waitcnt vmcnt(%d)' % (Dp[ldn[0] % len(Dp)] - 1))
        ldn[0] += 1
        a('buffer_load_dwordx4 %s, v%d, s[%d:%d], s16 offen offset:%d nt' % (vr(r, 4), voff, 8 + 4 * kv, 11 + 4 * kv, (j & 3) * 1024))

    n = 0
    for buf in range(3):
        for kv in range(2):
            for j in range(8):
                load(buf, kv, j, wait=n >= min(Dp))
                n += 1
                if n == min(Dp):
                    a('''s_barrier
                         s_mov_b32 s18, 0x3db504f3
                         v_and_b32 v1, 1, v0
                         v_cmp_eq_u32 vcc, 1, v1
                         v_mov_b32 v6, 0xffff
                         v_mov_b32 v11, 0xffff0000
                         v_cndmask_b32 v6, v6, v11, vcc
                         v_mov_b32 v7, 0xff800000
                         v_mov_b32 v8, 0''')
                    for r in range(O, O + 12):
                        a('v_mov_b32 v%d, 0' % r)
                    a('''v_lshlrev_b32 v1, 8, v1
                         v_lshrrev_b32 v11, 2, v0
                         v_lshl_add_u32 v14, v11, 4, v1''')
        a('s_add_u32 s16, s16, 0x8000')
    stamp(1)
    a('''s_barrier     ; #2 (q ready)
         ds_read_b128 v[16:19], v14 offset:%d
         v_and_b32 v1, 2, v0
         v_cmp_eq_u32 vcc, 0, v1
         s_mov_b32 s17, 10
         s_waitcnt lgkmcnt(0)''' % L_Q)
    for r in range(4):
        a('v_cndmask_b32 v%d, v%d, 0, vcc' % (BQ + 4 + r, BQ + r))
    for r in range(4):
        a('v_cndmask_b32 v%d, 0, v%d, vcc' % (BQ + r, BQ + r))
    stamp(2)

    def tile(buf, refill, last=False):
        K = RING + 64 * buf
        V = K + 32
        for p in range(4):
            d = vr(DD + 4 * p, 4)
            a('v_mfma_f32_16x16x32_bf16 %s, %s, %s, 0' % (d, vr(K + 8 * p, 4), vr(BQ, 4)))
            if refill:
                load(buf, 0, 2 * p)
            a('v_mfma_f32_16x16x32_bf16 %s, %s, %s, %s' % (d, vr(K + 8 * p + 4, 4), vr(BQ + 4, 4), d))
            if refill:
                load(buf, 0, 2 * p + 1)
        for step in (1, 2, 3):
            for p in range(4):
                c = (p + step) & 3
                rot = 4 * ((p - c) & 3)
                src1 = DD + 4 * p + p if step == 1 else TT + p
                if step < 3:
                    a('v_add_f32_dpp v%d, v%d, v%d row_ror:%d %s' % (TT + p, DD + 4 * p + c, src1, rot, FULL))
                else:
                    a('v_add_f32_dpp v%d, v%d, v%d row_ror:%d row_mask:0xf bank_mask:0x%x' % (vS, DD + 4 * p + c, src1, rot, 1 << p))
        rbf(vS, vS)
        a('v_mul_f32 v%d, s18, v%d' % (vS, vS))
        rbf(vS, vS)
        skip = lab('nors')
        a('v_cmp_gt_f32 vcc, v%d, v%d' % (vS, vM))
        a('s_cbranch_vccz %s' % skip)
        a('s_call_b64 s[30:31], L_rescale')
        a.label(skip)
        a('''v_sub_f32 v{P}, v{S}, v{M}
             v_mul_f32 v{P}, s19, v{P}
             v_exp_f32 v{P}, v{P}
             v_add_f32 v{L}, v{L}, v{P}
             v_cvt_pk_bf16_f32 v{P}, v{P}, v{P}'''.format(P=vP, S=vS, M=vM, L=vL))
        a('v_and_b32_dpp v%d, v%d, v%d quad_perm:[0,0,1,1] %s' % (vW, vP, vME, FULL))
        a('v_and_b32_dpp v%d, v%d, v%d quad_perm:[2,2,3,3] %s' % (vW + 1, vP, vME, FULL))

        def build(jv):
            p, u = jv >> 1, jv & 1
            A = AS + 4 * u
            for t in range(4):
                rot = 4 * ((t - p) & 3)
                pat = 'row_ror:%d' % rot if rot else 'quad_perm:[0,1,2,3]'
                a('v_mov_b32_dpp v%d, v%d %s row_mask:0xf bank_mask:0x%x' % (A + t, vW + u, pat, 1 << t))
        build(0)
        for jv in range(8):
            if jv < 7:
                build(jv + 1)
            if last and 7 - jv < max(Dp):
                a('s_waitcnt vmcnt(%d)' % (7 - jv))
            a('v_mfma_f32_16x16x32_bf16 %s, %s, %s, %s' % (vr(O, 4), vr(AS + 4 * (jv & 1), 4), vr(V + 4 * jv, 4), vr(O, 4)))
            if refill:
                load(buf, 1, jv)
        if refill:
            a('s_add_u32 s16, s16, 0x8000')

    assert max(Dp) <= 8 and 48 % len(Dp) == 0
    a.label('L_loop')
    tile(0, True)
    tile(1, True)
    a('''s_sub_u32 s17, s17, 1
         s_cmp_eq_u32 s17, 0
         s_cbranch_scc1 L_drain''')
    tile(2, True)
    a('s_branch L_loop')
    a.fence()
    a.label('L_rescale')
    a('s_nop 1\nv_mov_b32 v%d, v%d' % (vT, vS))
    allred('v_max_f32', vT, 1, first=2)
    a('''v_max_f32 v{T}, v{T}, v{M}
         v_sub_f32 v1, v{M}, v{T}
         v_mul_f32 v1, s19, v1
         v_exp_f32 v1, v1
         v_mov_b32 v{M}, v{T}
         v_mul_f32 v{L}, v{L}, v1
         v_readlane_b32 s20, v1, 0
         v_readlane_b32 s21, v1, 1
         v_mul_f32 v24, s20, v24
         v_mul_f32 v25, s20, v25
         v_mul_f32 v26, s21, v26
         v_mul_f32 v27, s21, v27
         s_setpc_b64 s[30:31]'''.format(T=vT, M=vM, L=vL))
    a.fence()
    a.label('L_drain')
    a('s_nop 1')
    stamp(3)
    tile(2, False)
    tile(0, False)
    tile(1, False, last=True)
    allred('v_add_f32', vL, 1, first=2)
    a('''s_and_b32 s20, s3, 3
         s_lshl_b32 s21, s20, 10
         s_lshl_b32 s20, s20, 4
         v_lshl_add_u32 v1, v0, 4, s21
         v_lshl_add_u32 v2, v0, 2, s20
         ds_write_b128 v1, v[24:27] offset:%d
         s_mov_b64 exec, 3
         v_add_u32 v2, %d, v2
         ds_write2_b32 v2, v7, v8 offset0:0 offset1:2
         s_mov_b64 exec, -1
         s_cmp_eq_u32 s34, 1
         s_cbranch_scc1 L_reh1_ret
         s_waitcnt lgkmcnt(0)''' % (L_SO, L_SS))
    stamp(4)
    a('s_barrier')
    stamp_flush()
    a('s_endpgm')
    a.fence()

    sW, sWS, sIN, sOUT, sDBG = 's[36:39]', 's[40:43]', 's[44:47]', 's[48:51]', 's[52:55]'
    RAW, WA, WO, W2, XB, DR = 16, 64, 100, 132, 180, 200
    vGQ, vN, vXVw, vXVr, vPW = 216, 217, 218, 219, 220
    vSH, vSC = 224, 228
    vX, vGA = 232, 236
    AM = 240
    vA1, vA2, vA3, vA4 = 252, 253, 254, 255
    a.label('L_service')
    sect[0] = 1
    a('''s_load_dwordx2 s[56:57], s[0:1], 0
         s_load_dwordx4 s[60:63], s[0:1], 24
         s_load_dwordx4 s[64:67], s[0:1], 48
         s_load_dwordx4 s[68:71], s[0:1], 64
         s_load_dwordx4 s[72:75], s[0:1], 80
         s_load_dwordx2 s[76:77], s[0:1], 96
         v_mov_b32 v1, 0
         ds_write_b32 v1, v1 offset:%d
         s_sub_u32 s33, s3, 4
         v_lshrrev_b32 v%d, 4, v0
         v_and_b32 v%d, 15, v0
         s_mov_b32 s39, 0x20000
         s_mov_b32 s42, %d
         s_mov_b32 s43, 0x20000
         s_mov_b32 s46, 1152
         s_mov_b32 s47, 0x20000
         s_mov_b32 s50, 1152
         s_mov_b32 s51, 0x20000
         s_mov_b32 s54, 256
         s_mov_b32 s55, 0x20000
         s_mov_b32 s81, 0
         s_mov_b32 s82, 0x05040100
         s_mov_b32 s83, 0x07060302
         s_mov_b32 s84, -1
         s_mov_b32 s85, 15
         ; j = g*8 + (s&3)*2 + (s>>3)
         s_lshr_b32 s80, s2, 4
         s_lshl_b32 s80, s80, 3
         s_and_b32 s86, s2, 3
         s_lshl_b32 s86, s86, 1
         s_add_u32 s80, s80, s86
         s_bfe_u32 s86, s2, 0x10003
         s_add_u32 s80, s80, s86
         s_waitcnt lgkmcnt(0)
         s_barrier     ; #1
         s_load_dword s35, s[76:77], %d
         s_mov_b32 s40, s76
         s_mov_b32 s41, s77
         s_mov_b32 s48, s72
         s_mov_b32 s49, s73
         s_mov_b32 s52, s74
         s_mov_b32 s53, s75
         s_bitcmp1_b32 s2, 2
         s_cselect_b32 s36, s70, s60
         s_cselect_b32 s37, s71, s61
         s_cselect_b32 s78, 1, 0
         s_cselect_b32 s44, s68, s56
         s_cselect_b32 s45, s69, s57
         s_mul_i32 s78, s78, 1280
         s_sub_u32 s78, 8192, s78
         s_mul_i32 s38, s78, 576
         ; LDS addresses
         s_mul_i32 s86, s33, %d
         s_add_u32 s86, s86, %d
         v_lshl_add_u32 v%d, v0, 3, s86
         v_mul_u32_u24 v1, 72, v%d
         v_add_u32 v%d, s86, v1
         s_lshl_b32 s86, s33, 7
         v_lshl_add_u32 v%d, v%d, 3, s86
         s_bitcmp1_b32 s2, 2
         s_cbranch_scc0 L_gemv_go
         s_cmp_ge_u32 s80, 108
         s_cbranch_scc1 L_pro_done''' % (L_CNT, vGQ, vN, WS_SIZE, WS_EPOCH, XV_STRIDE, L_XV, vXVw, vGQ, vXVr, vPW, vN))
    a.label('L_gemv_go')

    def gemv32_loads(sj):
        a('''s_mul_i32 s86, s33, 144
             v_mul_u32_u24 v1, 36, v%d
             v_add_u32 v1, s86, v1
             v_mul_lo_u32 v1, v1, s78
             v_lshl_add_u32 v1, v%d, 2, v1
             s_lshl_b32 s79, %s, 6''' % (vGQ, vN, sj))
        for i in range(36):
            a('buffer_load_dword v%d, v1, %s, s79 offen %s' % (RAW + i, sW, WPOL))
            if i < 35:
                a('s_add_u32 s79, s79, s78')

    def gemv32_perm():
        for cc in range(2):
            for ip in range(18):
                a('v_perm_b32 v%d, v%d, v%d, s%d' % (WA + 18 * cc + ip, RAW + 2 * ip + 1, RAW + 2 * ip, 82 + cc))

    def gemv32_run():
        a('s_mov_b64 exec, -1')
        for z in range(4):
            a('ds_read2_b64 %s, v%d offset0:%d offset1:%d' % (vr(XB + 4 * z, 4), vXVr, 2 * z, 2 * z + 1))
        a('ds_read_b64 %s, v%d offset:64' % (vr(XB + 16, 2), vXVr))
        for z in range(4):
            a('s_waitcnt lgkmcnt(%d)' % (4 - z))
            for cc in range(2):
                d = vr(DR + 4 * cc, 4)
                a('v_mfma_f32_16x16x32_bf16 %s, %s, %s, %s' % (d, vr(XB + 4 * z, 4), vr(WA + 18 * cc + 4 * z, 4), d if z else '0'))
        a('s_waitcnt lgkmcnt(0)')
        for cc in range(2):
            a('v_mfma_f32_16x16x16_bf16 %s, %s, %s, 0' % (vr(DR + 8 + 4 * cc, 4), vr(XB + 16, 2), vr(WA + 18 * cc + 16, 2)))
        a('''v_add_f32 v2, v%d, v%d
             v_add_f32 v3, v%d, v%d
             s_mov_b64 exec, 0xffff
             ds_write_b64 v%d, v[2:3] offset:%d''' % (DR, DR + 8, DR + 4, DR + 12, vPW, L_PART))

    def unpack(dst, src, n):
        for i in range(n):
            a('v_lshlrev_b32 v%d, 16, v%d' % (dst + 2 * i, src[i]))
            a('v_and_b32 v%d, 0xffff0000, v%d' % (dst + 2 * i + 1, src[i]))

    def layernorm(X):
        a('''s_mov_b64 exec, -1
             v_mov_b32 v2, 0
             v_mov_b32 v3, 0
             s_mov_b64 exec, s[84:85]''')
        for i in range(4):
            a('v_add_f32 v%d, v%d, v%d' % (4 + i, X + i, X + 4 + i))
        for i in range(4):
            a('v_add_f32 v%d, v%d, v%d' % (8 + i, X + 8 + i, X + 12 + i))
        for i in range(4):
            a('v_add_f32 v%d, v%d, v%d' % (4 + i, 4 + i, 8 + i))
        a('''v_add_f32 v4, v4, v5
             v_add_f32 v6, v6, v7
             v_add_f32 v2, v4, v6
             s_mov_b64 exec, -1''')
        allred('v_add_f32', 2, 1)
        a('''v_mul_f32 v2, 0x3ae38e39, v2
             s_mov_b64 exec, s[84:85]''')
        for i in range(4):
            a('v_sub_f32 v%d, v%d, v2' % (4 + i, X + i))
        for i in range(4):
            a('v_mul_f32 v%d, v%d, v%d' % (4 + i, 4 + i, 4 + i))
        for k in range(1, 4):
            for i in range(4):
                a('v_sub_f32 v%d, v%d, v2' % (8 + i, X + 4 * k + i))
            for i in range(4):
                a('v_fmac_f32 v%d, v%d, v%d' % (4 + i, 8 + i, 8 + i))
        a('''v_add_f32 v4, v4, v5
             v_add_f32 v6, v6, v7
             v_add_f32 v3, v4, v6
             s_mov_b64 exec, -1''')
        rbf(2, 2)
        allred('v_add_f32', 3, 1)
        a('v_mul_f32 v3, 0x3ae38e39, v3')
        for i in range(4):
            a('v_sub_f32 v%d, v%d, v2' % (X + i, X + i))
        rbf(3, 3)
        a('v_add_f32 v3, 0x3727c5ac, v3')
        rbf(3, 3)
        a('v_sqrt_f32 v3, v3')
        for i in range(4):
            rbf(X + i, X + i)
        rbf(3, 3)
        a('v_rcp_f32 v3, v3')
        a('s_mov_b64 exec, s[84:85]')
        for i in range(4):
            a('v_mul_f32 v%d, v%d, v3' % (X + i, X + i))
        for i in range(4):
            rbf(X + i, X + i)

    def modulate(X):
        for i in range(4):
            a('v_mul_f32 v%d, v%d, v%d' % (X + i, X + i, vSC + i))
        for i in range(4):
            rbf(X + i, X + i)
        for i in range(4):
            a('v_add_f32 v%d, v%d, v%d' % (X + i, X + i, vSH + i))
        a('''v_cvt_pk_bf16_f32 v2, v%d, v%d
             v_cvt_pk_bf16_f32 v3, v%d, v%d
             ds_write_b64 v%d, v[2:3]''' % (X, X + 1, X + 2, X + 3, vXVw))

    def spin_tail(loop, done):
        a('s_cbranch_vccz %s' % done)
        if P['sleep']:
            a('s_sleep %d' % P['sleep'])
        a('''s_add_u32 s81, s81, 1
             s_cmp_lt_u32 s81, %d
             s_cbranch_scc1 %s''' % (P['spin'], loop))
        a.label(done)

    def poll_tag(loads, tags):
        loop, done = lab('pt'), lab('ptd')
        a.label(loop)
        for l in loads:
            a(l + ' ' + LD)
        a('s_waitcnt vmcnt(0)')
        a('v_cmp_ne_u32 vcc, s35, v%d' % tags[0])
        for t in tags[1:]:
            a('v_cmp_ne_u32 s[86:87], s35, v%d' % t)
            a('s_or_b64 vcc, vcc, s[86:87]')
        spin_tail(loop, done)

    def poll_sent(loads, first, n):
        loop, done = lab('ps'), lab('psd')
        a.label(loop)
        for l in loads:
            a(l + ' ' + LD)
        nq = n // 4
        for q in range(nq):
            r = first + 4 * q
            a('s_waitcnt vmcnt(%d)' % (nq - 1 - q))
            if q == 0:
                a('v_max_u32 v2, v%d, v%d' % (r, r + 1))
                a('v_max_u32 v3, v%d, v%d' % (r + 2, r + 3))
            else:
                a('v_max3_u32 v2, v2, v%d, v%d' % (r, r + 1))
                a('v_max3_u32 v3, v3, v%d, v%d' % (r + 2, r + 3))
        a('v_max_u32 v2, v2, v3')
        a('v_cmp_eq_u32 vcc, -1, v2')
        spin_tail(loop, done)

    def load_shift_scale(first):
        a('''s_mul_i32 s86, s33, 576
             s_add_u32 s86, s86, %d
             v_lshl_add_u32 v1, v0, 4, s86''' % (WS_MOD + first * 2304))
        poll_tag(['buffer_load_dwordx4 v[4:7], v1, %s, 0 offen' % sWS,
                  'buffer_load_dwordx4 v[8:11], v1, %s, 0 offen offset:2304' % sWS], [5, 7, 9, 11])
        unpack(vSH, [4, 6], 2)
        unpack(vSC, [8, 10], 2)
        for i in range(4):
            a('v_add_f32 v%d, 1.0, v%d' % (vSC + i, vSC + i))
        for i in range(4):
            rbf(vSC + i, vSC + i)

    XI = 52
    XF = W2
    a('''s_mov_b64 exec, s[84:85]
         v_lshlrev_b32 v2, 3, v0''')
    for k in range(4):
        a('''s_add_u32 s86, s33, %d
             s_and_b32 s86, s86, 3
             s_mul_i32 s86, s86, 288
             buffer_load_dwordx2 %s, v2, %s, s86 offen''' % (k, vr(XI + 2 * k, 2), sIN))
    a('s_mov_b64 exec, -1')
    gemv32_loads('s80')
    a('''s_waitcnt lgkmcnt(0)
         s_mul_i32 s35, s35, 0x9e3779b1
         s_add_u32 s35, s35, 0x7f4a7c15
         s_waitcnt vmcnt(36)''')
    unpack(XF, list(range(XI, XI + 8)), 8)
    a('''s_bitcmp1_b32 s2, 2
         s_cbranch_scc0 L_qrole''')
    a('s_mov_b64 exec, s[84:85]\ns_mov_b32 s86, 0x32a57060\ns_mov_b32 s87, 0x7f7fffff')
    T, R, E = 4, 8, XF + 4
    X = XF
    seq = ['v_mul_f32 v{t}, 0xbfb8aa3b, v{x}',
           'v_fma_f32 v{r}, -v{x}, s19, -v{t}',
           'v_exp_f32 v{t}, v{t}',
           'v_fma_f32 v{r}, -v{x}, s86, v{r}',
           'v_mul_f32 v{r}, 0x3f317218, v{r}',
           'v_med3_f32 v{r}, v{r}, -0.5, 0.5',
           'v_min_f32 v{e}, s87, v{t}',
           'v_fma_f32 v{t}, v{e}, v{r}, v{t}',
           'v_add_f32 v{t}, 1.0, v{t}',
           'v_rcp_f32 v{r}, v{t}',
           'v_mul_f32 v{e}, v{x}, v{r}',
           'v_fma_f32 v{f}, -v{e}, v{t}, v{x}',
           'v_fma_f32 v{e}, v{f}, v{r}, v{e}',
           'v_div_fixup_f32 v{t}, v{e}, v{t}, v{x}']
    for ins in seq:
        for i in range(4):
            a(ins.format(t=T + i, r=R + i, e=E + i, f=E + 4 + i, x=X + i))
    a('''v_cvt_pk_bf16_f32 v2, v4, v5
         v_cvt_pk_bf16_f32 v3, v6, v7
         ds_write_b64 v%d, v[2:3]
         s_mov_b64 exec, -1
         s_mov_b32 s88, %d
         s_waitcnt vmcnt(0)''' % (vXVw, WS_MOD))
    stamp(1)
    gemv32_perm()
    a('s_branch L_gemv_run')
    a.fence()
    a.label('L_qrole')
    layernorm(XF)
    a('''s_mov_b64 exec, -1
         s_mov_b32 s88, %d
         s_waitcnt vmcnt(0)''' % WS_Q)
    stamp(1)
    gemv32_perm()
    a('s_mov_b64 exec, s[84:85]')
    load_shift_scale(0)
    stamp(2)
    modulate(XF)
    a.label('L_gemv_run')
    gemv32_run()
    a('''s_mov_b64 exec, 1
         v_mov_b32 v1, 0
         v_mov_b32 v2, 1
         s_waitcnt lgkmcnt(0)
         ds_add_u32 v1, v2 offset:%d
         s_cmp_lg_u32 s33, 0
         s_cbranch_scc1 L_pro_done''' % L_CNT)
    a.label('L_svc_spin')
    a('''ds_read_b32 v2, v1 offset:%d
         s_add_u32 s81, s81, 1
         s_cmp_ge_u32 s81, %d
         s_cbranch_scc1 L_svc_ok
         s_waitcnt lgkmcnt(0)
         v_cmp_ne_u32 vcc, 4, v2
         s_cbranch_vccnz L_svc_spin''' % (L_CNT, P['spin']))
    a.label('L_svc_ok')
    a('''s_mov_b64 exec, 0xffff
         ds_read2_b64 v[4:7], v{PW} offset0:{o0} offset1:{o1}
         ds_read2_b64 v[8:11], v{PW} offset0:{o2} offset1:{o3}
         s_lshl_b32 s86, s80, 7
         s_add_u32 s88, s88, s86
         v_mov_b32 v3, s35
         s_waitcnt lgkmcnt(0)
         v_add_f32 v4, v4, v6
         v_add_f32 v5, v5, v7
         v_add_f32 v8, v8, v10
         v_add_f32 v9, v9, v11
         v_add_f32 v4, v4, v8
         v_add_f32 v5, v5, v9
         v_cvt_pk_bf16_f32 v2, v4, v5
         buffer_store_dwordx2 v[2:3], v{PW}, {ws}, s88 offen {st}'''.format(
        PW=vPW, o0=0, o1=16, o2=32, o3=48, ws=sWS, st=ST).replace('v%d offset0' % vPW, 'v12 offset0').replace(
        's_mov_b64 exec, 0xffff', 's_mov_b64 exec, 0xffff\nv_add_u32 v12, %d, v%d' % (L_PART, vPW)))
    stamp(3)
    a('s_branch L_pro_done2')
    a.fence()
    a.label('L_pro_done')
    a('''s_bitcmp1_b32 s2, 2
         s_cbranch_scc0 L_pro_done2
         s_cmp_lt_u32 s80, 108
         s_cbranch_scc1 L_pro_done2
         s_waitcnt lgkmcnt(0)
         s_mul_i32 s35, s35, 0x9e3779b1
         s_add_u32 s35, s35, 0x7f4a7c15''')
    a.label('L_pro_done2')
    a('''s_mov_b64 exec, -1
         s_cmp_lg_u32 s33, 1
         s_cbranch_scc1 L_q_done
         s_lshr_b32 s86, s2, 4
         s_lshl_b32 s86, s86, 10
         s_add_u32 s86, s86, %d
         v_lshl_add_u32 v1, v0, 4, s86''' % WS_Q)
    poll_tag(['buffer_load_dwordx4 v[4:7], v1, %s, 0 offen' % sWS], [5, 7])
    a('''v_lshlrev_b32 v1, 3, v0
         v_mov_b32 v5, v6
         ds_write_b64 v1, v[4:5] offset:%d''' % L_Q)
    stamp(4)
    a.label('L_q_done')
    if P['rehearse']:
        a('''s_cmp_lg_u32 s33, 3
             s_cbranch_scc1 L_reh1_skip
             s_mov_b32 s34, 1
             s_branch L_drain''')
        a.fence()
    a.label('L_reh1_ret')
    a('s_mov_b32 s34, 0')
    a.label('L_reh1_skip')
    a('''s_waitcnt lgkmcnt(0)
         s_barrier     ; #2''')
    stamp(5)
    a('''s_and_b32 s29, s2, 15
         s_lshr_b32 s32, s2, 4
         s_sub_u32 s80, s32, 7
         s_lshl_b32 s80, s80, 4
         s_and_b32 s86, s2, 7
         s_lshl_b32 s86, s86, 1
         s_add_u32 s80, s80, s86
         s_bfe_u32 s86, s2, 0x10003
         s_add_u32 s80, s80, s86
         s_mov_b32 s22, 4096
         s_mov_b32 s23, 8192
         ; publish offsets: s24 H1O, s25 H1S, s26 H2, s27 H3
         s_lshl_b32 s24, s2, 10
         s_add_u32 s24, s24, %d
         s_lshl_b32 s25, s2, 4
         s_add_u32 s25, s25, %d
         s_lshl_b32 s26, s2, 8
         s_add_u32 s26, s26, %d
         s_mul_i32 s27, s80, 2304
         s_add_u32 s27, s27, %d
         v_lshlrev_b32 v14, 4, v0
         v_mov_b32 v252, 0
         v_mov_b32 v253, 0
         v_mov_b32 v254, 0
         v_mov_b32 v255, 0
         s_cmp_lg_u32 s33, 2
         s_cbranch_scc1 L_clear_done
         v_mov_b32 v4, -1
         v_mov_b32 v5, -1
         v_mov_b32 v6, -1
         v_mov_b32 v7, -1
         buffer_store_dwordx4 v[4:7], v14, {ws}, s24 offen {st}
         s_mov_b64 exec, 1
         buffer_store_dwordx4 v[4:7], v14, {ws}, s25 offen {st}
         s_cmp_ge_u32 s2, 144
         s_cbranch_scc1 L_clear_h3
         s_mov_b64 exec, 0xffff
         buffer_store_dwordx4 v[4:7], v14, {ws}, s26 offen {st}
         L_clear_h3:
         s_cmp_lt_u32 s2, 112
         s_cbranch_scc1 L_clear_cnt
         s_mov_b64 exec, -1
         buffer_store_dwordx4 v[4:7], v14, {ws}, s27 offen {st}
         buffer_store_dwordx4 v[4:7], v14, {ws}, s27 offen offset:1024 {st}
         s_mov_b64 exec, 0xffff
         buffer_store_dwordx4 v[4:7], v14, {ws}, s27 offen offset:2048 {st}
         L_clear_cnt:
         s_mov_b64 exec, 1
         v_mov_b32 v8, 1
         s_waitcnt vmcnt(0)
         buffer_atomic_add v8, v14, {dbg}, 0 offen
         s_mov_b64 exec, -1
         L_clear_done:'''.format(ws=sWS, st=ST, dbg=sDBG) % (WS_H1O, WS_H1S, WS_H2, WS_H3))
    a('''s_cmp_ge_u32 s2, 144
         s_cbranch_scc1 L_no_wo
         s_mov_b32 s36, s62
         s_mov_b32 s37, s63
         s_mov_b32 s38, %d
         v_lshrrev_b32 v1, 1, v{GQ}
         v_lshlrev_b32 v1, 7, v1
         v_and_b32 v2, 1, v{GQ}
         s_lshl_b32 s86, s29, 8
         s_lshl_b32 s87, s33, 1
         s_add_u32 s86, s86, s87
         v_add3_u32 v1, v1, v2, s86
         v_mul_u32_u24 v1, 1152, v1
         v_lshl_add_u32 v1, v{N}, 3, v1
         s_lshl_b32 s79, s32, 7'''.format(GQ=vGQ, N=vN) % (4096 * 1152))
    for i in range(16):
        a('buffer_load_dwordx2 %s, v1, %s, s79 offen %s' % (vr(RAW + 2 * i, 2), sW, WPOL))
        if i < 15:
            a('s_add_u32 s79, s79, 9216')
    a('''s_lshl_b32 s86, s29, 14
         s_lshl_b32 s87, s33, 8
         s_add_u32 s86, s86, s87
         s_add_u32 s86, s86, {h1o}
         v_lshlrev_b32 v1, 12, v{GQ}
         v_lshl_add_u32 v1, v{N}, 4, v1
         v_add_u32 v{A1}, s86, v1
         v_lshl_add_u32 v1, v{GQ}, 2, v{N}
         v_and_b32 v1, 15, v1
         s_lshl_b32 s86, s29, 8
         s_add_u32 s86, s86, {h1s}
         v_lshl_add_u32 v{A2}, v1, 4, s86
         s_waitcnt vmcnt(0)'''.format(GQ=vGQ, N=vN, A1=vA1, A2=vA2, h1o=WS_H1O, h1s=WS_H1S))
    for cc in range(4):
        for ip in range(8):
            a('v_perm_b32 v%d, v%d, v%d, s%d' % (WO + 8 * cc + ip, RAW + 2 * (2 * ip + 1) + (cc >> 1), RAW + 2 * (2 * ip) + (cc >> 1), 82 + (cc & 1)))
    a.label('L_no_wo')
    a('''s_cmp_lt_u32 s2, 112
         s_cbranch_scc1 L_no_ffn
         s_mov_b32 s36, s64
         s_mov_b32 s37, s65
         s_mov_b32 s38, %d
         s_mov_b32 s78, 9216''' % (576 * 9216))
    gemv32_loads('s80')
    a('s_waitcnt vmcnt(0)')
    gemv32_perm()
    a('''s_mov_b32 s44, s56
         s_mov_b32 s45, s57
         s_cmp_eq_u32 s33, 3
         s_cbranch_scc1 L_w3_prep
         s_mov_b32 s36, s66
         s_mov_b32 s37, s67
         s_lshl_b32 s86, s80, 5
         v_lshl_add_u32 v1, v{GQ}, 3, s86
         v_mul_u32_u24 v1, 1152, v1
         v_lshl_add_u32 v1, v{N}, 3, v1
         s_mul_i32 s79, s33, 384'''.format(GQ=vGQ, N=vN))
    for jj in range(8):
        for blk in range(3):
            a('buffer_load_dwordx2 %s, v1, %s, s79 offen offset:%d %s' % (vr(RAW + 2 * (blk * 8 + jj), 2), sW, blk * 128, WPOL))
        if jj < 7:
            a('s_add_u32 s79, s79, 1152')
    for r in range(AM, AM + 12):
        a('v_mov_b32 v%d, 0' % r)
    a('''s_mul_i32 s86, s33, 192
         v_lshl_add_u32 v1, v{N}, 2, v{GQ}
         v_add_u32 v1, s86, v1
         v_lshlrev_b32 v{A4}, 2, v1
         v_lshlrev_b32 v2, 1, v1
         s_mul_i32 s86, s33, 12288
         s_add_u32 s86, s86, {h2}
         v_add_u32 v{A3}, s86, v14
         s_waitcnt vmcnt(0)'''.format(GQ=vGQ, N=vN, A4=vA4, A3=vA3, h2=WS_H2))
    for blk in range(3):
        for cc in range(4):
            for ip in range(4):
                a('v_perm_b32 v%d, v%d, v%d, s%d' % (W2 + (blk * 4 + cc) * 4 + ip, RAW + 2 * (blk * 8 + 2 * ip + 1) + (cc >> 1),
                                                    RAW + 2 * (blk * 8 + 2 * ip) + (cc >> 1), 82 + (cc & 1)))
    for i in range(3):
        a('buffer_load_ushort v%d, v2, %s, 0 offen offset:%d' % (vX + i, sIN, 128 * i))
    a('''v_lshrrev_b32 v1, 1, v1
         v_lshlrev_b32 v1, 3, v1
         v_add_u32 v1, %d, v1''' % (WS_MOD + 2 * 2304))
    poll_tag(['buffer_load_dwordx2 %s, v1, %s, 0 offen offset:%d' % (vr(4 + 2 * i, 2), sWS, 256 * i) for i in range(3)], [5, 7, 9])
    a('''v_and_b32 v1, 1, v%d
         v_lshlrev_b32 v1, 4, v1''' % vGQ)
    for i in range(3):
        a('v_lshlrev_b32 v%d, 16, v%d' % (vX + i, vX + i))
        a('v_lshrrev_b32 v%d, v1, v%d' % (vGA + i, 4 + 2 * i))
        a('v_lshlrev_b32 v%d, 16, v%d' % (vGA + i, vGA + i))
    a('s_branch L_prep_join')
    a.fence()
    a.label('L_w3_prep')
    a('''s_lshl_b32 s86, s80, 2
         v_add_u32 v1, s86, v{GQ}
         v_lshlrev_b32 v{A4}, 2, v1
         v_mul_u32_u24 v2, 2304, v0
         s_lshl_b32 s86, s80, 4
         s_add_u32 s86, s86, {h3}
         v_add_u32 v{A3}, s86, v2
         s_mov_b32 s22, {k1}
         s_mov_b32 s23, {k2}
         v_lshrrev_b32 v1, 1, v1
         v_lshlrev_b32 v1, 3, v1
         v_add_u32 v1, {gb}, v1'''.format(GQ=vGQ, A4=vA4, A3=vA3, h3=WS_H3, k1=48 * 2304, k2=96 * 2304, gb=WS_MOD + 5 * 2304))
    poll_tag(['buffer_load_dwordx2 v[4:5], v1, %s, 0 offen' % sWS], [5])
    a('''v_and_b32 v1, 1, v{GQ}
         v_lshlrev_b32 v1, 4, v1
         v_lshrrev_b32 v{GA}, v1, v4
         v_lshlrev_b32 v{GA}, 16, v{GA}'''.format(GQ=vGQ, GA=vGA))
    a.label('L_prep_join')
    a('s_mov_b64 exec, s[84:85]')
    load_shift_scale(3)
    a('s_mov_b64 exec, -1')
    a.label('L_no_ffn')
    a('''s_cmp_lg_u32 s33, 2
         s_cbranch_scc1 L_cnt_done
         s_mov_b64 exec, 1''')
    a.label('L_cnt_spin')
    a('''s_sleep 32
         buffer_load_dword v4, v14, %s, 0 offen %s
         s_movk_i32 s86, 0x100
         s_waitcnt vmcnt(0)
         v_cmp_gt_u32 vcc, s86, v4''' % (sDBG, LD))
    spin_tail('L_cnt_spin', 'L_cnt_ok')
    a('''s_cmp_lg_u32 s2, 0
         s_cbranch_scc1 L_cnt_done
         v_mov_b32 v4, s35
         buffer_store_dword v4, v14, %s, 0 offen offset:%d %s''' % (sWS, WS_EPOCH, ST))
    a.label('L_cnt_done')
    a('s_mov_b64 exec, -1')
    stamp(6)
    if P['rehearse']:
        a('''s_waitcnt vmcnt(0)
             s_mov_b32 s34, 1
             s_mov_b32 s42, 0
             s_mov_b32 s50, 0
             s_branch L_tail''')
        a.fence()
    a.label('L_reh2_ret')
    a('''s_waitcnt vmcnt(0) lgkmcnt(0)
         s_mov_b64 exec, -1
         s_mov_b32 s34, 0
         s_mov_b32 s42, %d
         s_mov_b32 s50, 1152''' % WS_SIZE)
    stamp(7)
    a('s_barrier     ; #3')

    def tbarrier():
        skip = lab('nb')
        a('''s_waitcnt lgkmcnt(0)
             s_cmp_eq_u32 s34, 1
             s_cbranch_scc1 %s
             s_barrier''' % skip)
        a.label(skip)

    a.label('L_tail')
    stamp(8)
    a('''s_cmp_lg_u32 s33, 0
         s_cbranch_scc1 L_t1
         v_mov_b32 v1, 0''')
    SS, SO = RAW, RAW + 16
    for w in range(4):
        a('ds_read_b128 %s, v1 offset:%d' % (vr(SS + 4 * w, 4), L_SS + 16 * w))
    for w in range(4):
        a('ds_read_b128 %s, v14 offset:%d' % (vr(SO + 4 * w, 4), L_SO + 1024 * w))
    a('s_waitcnt lgkmcnt(4)')
    for h in range(2):
        a('v_max3_f32 v%d, v%d, v%d, v%d' % (4 + h, SS + h, SS + 4 + h, SS + 8 + h))
    for h in range(2):
        a('v_max_f32 v%d, v%d, v%d' % (4 + h, 4 + h, SS + 12 + h))
    for w in range(4):
        for h in range(2):
            a('v_sub_f32 v%d, v%d, v%d' % (SS + 4 * w + h, SS + 4 * w + h, 4 + h))
    for w in range(4):
        for h in range(2):
            a('v_mul_f32 v%d, s19, v%d' % (SS + 4 * w + h, SS + 4 * w + h))
    for w in range(4):
        for h in range(2):
            a('v_exp_f32 v%d, v%d' % (SS + 4 * w + h, SS + 4 * w + h))
    a('s_waitcnt lgkmcnt(0)')
    for w in range(4):
        for r in range(4):
            op = 'v_mul_f32' if w == 0 else 'v_fmac_f32'
            a('%s v%d, v%d, v%d' % (op, 8 + r, SS + 4 * w + (r >> 1), SO + 4 * w + r))
    for r in range(4):
        a('v_min_u32 v%d, -2, v%d' % (8 + r, 8 + r))
    a('buffer_store_dwordx4 v[8:11], v14, %s, s24 offen %s' % (sWS, ST))
    for w in range(4):
        for h in range(2):
            op = 'v_mul_f32' if w == 0 else 'v_fmac_f32'
            a('%s v%d, v%d, v%d' % (op, 6 + h, SS + 4 * w + h, SS + 4 * w + 2 + h))
    for r in range(4):
        a('v_min_u32 v%d, -2, v%d' % (4 + r, 4 + r))
    a('''s_mov_b64 exec, 1
         buffer_store_dwordx4 v[4:7], v14, %s, s25 offen %s
         s_mov_b64 exec, -1''' % (sWS, ST))
    stamp(9)
    a.label('L_t1')
    a('''s_cmp_ge_u32 s2, 144
         s_cbranch_scc1 L_t2''')
    poll_sent(['buffer_load_dwordx4 %s, v%d, %s, 0 offen' % (vr(RAW, 4), vA2, sWS)] +
              ['buffer_load_dwordx4 %s, v%d, %s, 0 offen offset:%d' % (vr(RAW + 4 + 4 * k, 4), vA1, sWS, 1024 * k) for k in range(4)], RAW, 20)
    stamp(10)
    a('v_mov_b32 v4, v%d\nv_mov_b32 v5, v%d' % (RAW, RAW + 1))
    rowred('v_max_f32', [4, 5])
    for h in range(2):
        a('v_sub_f32 v%d, v%d, v%d' % (4 + h, RAW + h, 4 + h))
    for h in range(2):
        a('v_mul_f32 v%d, s19, v%d' % (4 + h, 4 + h))
    for h in range(2):
        a('v_exp_f32 v%d, v%d' % (4 + h, 4 + h))
    for h in range(2):
        a('v_mul_f32 v%d, v%d, v%d' % (6 + h, 4 + h, RAW + 2 + h))
    for k in range(4):
        for r in range(4):
            op = 'v_mul_f32_dpp' if k == 0 else 'v_fmac_f32_dpp'
            a('%s v%d, v%d, v%d row_newbcast:%d %s' % (op, 8 + r, 4 + (r >> 1), RAW + 4 + 4 * k + r, k, FULL))
    rowred('v_add_f32', [6, 7])
    for h in range(2):
        a('v_rcp_f32 v%d, v%d' % (6 + h, 6 + h))
    for r in range(4):
        a('v_mul_f32 v%d, v%d, v%d' % (8 + r, 8 + r, 6 + (r >> 1)))
    quadred([8])
    a('''s_mul_i32 s86, s33, {xs}
         s_add_u32 s86, s86, {xv}
         v_cvt_pk_bf16_f32 v8, v8, v8
         v_lshl_add_u32 v1, v0, 1, s86
         v_lshl_add_u32 v2, v{GQ}, 5, s86
         ds_write_b16 v1, v8
         ds_read_b128 {a0}, v2
         ds_read_b128 {a1}, v2 offset:16
         s_lshl_b32 s86, s33, 8
         v_add_u32 v1, s86, v14
         s_waitcnt lgkmcnt(1)'''.format(xs=XV_STRIDE, xv=L_XV, GQ=vGQ, a0=vr(XB, 4), a1=vr(XB + 4, 4)))
    for cc in range(4):
        a('v_mfma_f32_16x16x32_bf16 %s, %s, %s, 0' % (vr(DR + 4 * cc, 4), vr(XB, 4), vr(WO + 8 * cc, 4)))
    a('s_waitcnt lgkmcnt(0)')
    for cc in range(4):
        d = vr(DR + 4 * cc, 4)
        a('v_mfma_f32_16x16x32_bf16 %s, %s, %s, %s' % (d, vr(XB + 4, 4), vr(WO + 8 * cc + 4, 4), d))
    for cc in range(1, 4):
        a('v_mov_b32 v%d, v%d' % (DR + cc, DR + 4 * cc))
    a('''s_mov_b64 exec, 0xffff
         ds_write_b128 v1, %s offset:%d''' % (vr(DR, 4), L_PART2))
    tbarrier()
    a('''s_cmp_lg_u32 s33, 3
         s_cbranch_scc1 L_t2a''')
    for w in range(4):
        a('ds_read_b128 %s, v14 offset:%d' % (vr(RAW + 4 * w, 4), L_PART2 + 256 * w))
    a('s_waitcnt lgkmcnt(2)')
    for r in range(4):
        a('v_add_f32 v%d, v%d, v%d' % (4 + r, RAW + r, RAW + 4 + r))
    a('s_waitcnt lgkmcnt(0)')
    for r in range(4):
        a('v_add_f32 v%d, v%d, v%d' % (8 + r, RAW + 8 + r, RAW + 12 + r))
    for r in range(4):
        a('v_add_f32 v%d, v%d, v%d' % (4 + r, 4 + r, 8 + r))
    for r in range(4):
        a('v_min_u32 v%d, -2, v%d' % (4 + r, 4 + r))
    a('buffer_store_dwordx4 v[4:7], v14, %s, s26 offen %s' % (sWS, ST))
    stamp(11)
    a.label('L_t2a')
    a('s_mov_b64 exec, -1')
    a.label('L_t2')
    a('''s_cmp_lt_u32 s2, 112
         s_cbranch_scc1 L_exit
         s_cmp_eq_u32 s33, 3
         s_cbranch_scc1 L_t2b''')
    poll_sent(['buffer_load_dwordx4 %s, v%d, %s, %s offen offset:%d' % (vr(RAW + 16 * i + 4 * k, 4), vA3, sWS, ('0', 's22', 's23')[i], 1024 * k)
               for i in range(3) for k in range(4)], RAW, 48)
    stamp(12)
    for i in range(3):
        for r in range(4):
            a('v_add_f32 v%d, v%d, v%d' % (RAW + 16 * i + r, RAW + 16 * i + r, RAW + 16 * i + 4 + r))
        for r in range(4):
            a('v_add_f32 v%d, v%d, v%d' % (RAW + 16 * i + 8 + r, RAW + 16 * i + 8 + r, RAW + 16 * i + 12 + r))
        for r in range(4):
            a('v_add_f32 v%d, v%d, v%d' % (RAW + 16 * i + r, RAW + 16 * i + r, RAW + 16 * i + 8 + r))
    quadred([RAW, RAW + 16, RAW + 32])
    for i in range(3):
        rbf(4 + i, RAW + 16 * i)
    for i in range(3):
        a('v_mul_f32 v%d, v%d, v%d' % (4 + i, 4 + i, vGA + i))
    for i in range(3):
        rbf(4 + i, 4 + i)
    for i in range(3):
        a('v_add_f32 v%d, v%d, v%d' % (4 + i, 4 + i, vX + i))
    for i in range(3):
        rbf(4 + i, 4 + i)
    for i in range(3):
        a('ds_write_b32 v%d, v%d offset:%d' % (vA4, 4 + i, L_X2 + 256 * i))
    a.label('L_t2b')
    tbarrier()
    a('s_mov_b64 exec, s[84:85]')
    for k in range(4):
        a('''s_add_u32 s86, s33, %d
             s_and_b32 s86, s86, 3
             s_mul_i32 s86, s86, 576
             v_add_u32 v1, s86, v14
             ds_read_b128 %s, v1 offset:%d''' % (k, vr(RAW + 4 * k, 4), L_X2))
    a('s_waitcnt lgkmcnt(0)')
    layernorm(RAW)
    modulate(RAW)
    gemv32_run()
    tbarrier()
    stamp(13)
    a('''s_mov_b64 exec, -1
         s_cmp_eq_u32 s33, 3
         s_cbranch_scc1 L_t3
         v_lshlrev_b32 v1, 5, v%d''' % vGQ)
    for w in range(4):
        for hh in range(2):
            a('ds_read_b128 %s, v1 offset:%d' % (vr(RAW + 8 * w + 4 * hh, 4), L_PART + 128 * w + 16 * hh))
    a('s_mul_i32 s86, s33, 768\ns_add_u32 s86, s86, s27')
    a('s_waitcnt lgkmcnt(4)')
    for r in range(8):
        a('v_add_f32 v%d, v%d, v%d' % (RAW + r, RAW + r, RAW + 8 + r))
    a('s_waitcnt lgkmcnt(0)')
    for r in range(8):
        a('v_add_f32 v%d, v%d, v%d' % (RAW + 16 + r, RAW + 16 + r, RAW + 24 + r))
    for r in range(8):
        a('v_add_f32 v%d, v%d, v%d' % (RAW + r, RAW + r, RAW + 16 + r))
    for r in range(8):
        a('v_maximum3_f32 v%d, v%d, 0, 0' % (RAW + r, RAW + r))
    for t in range(4):
        a('v_cvt_pk_bf16_f32 v%d, v%d, v%d' % (4 + t, RAW + 2 * t, RAW + 2 * t + 1))
    for blk in range(3):
        for t in range(4):
            a('v_mov_b32_dpp v%d, v%d quad_perm:[0,1,2,3] row_mask:0xf bank_mask:0x%x' % (AM + 4 * blk + t, 4 + t, 1 << blk))
    for blk in range(3):
        for cc in range(4):
            d = vr(DR + 4 * cc, 4)
            a('v_mfma_f32_16x16x32_bf16 %s, %s, %s, %s' % (d, vr(AM + 4 * blk, 4), vr(W2 + (blk * 4 + cc) * 4, 4), d if blk else '0'))
    for cc in range(4):
        a('v_min_u32 v%d, -2, v%d' % (4 + cc, DR + 4 * cc))
    a('''s_mov_b32 exec_hi, 0xffff
         buffer_store_dwordx4 v[4:7], v14, %s, s86 offen %s''' % (sWS, ST))
    stamp(14)
    a('s_branch L_exit')
    a.fence()
    a.label('L_t3')
    a('ds_read_b32 v12, v%d offset:%d' % (vA4, L_X2))
    for r in range(12):
        a('v_mov_b32 v%d, 0' % (RAW + r))
    a('s_mov_b32 exec_hi, 0xffff')
    poll_sent(['buffer_load_dwordx4 %s, v%d, %s, %s offen' % (vr(RAW + 4 * k, 4), vA3, sWS, ('0', 's22', 's23')[k]) for k in range(3)], RAW, 12)
    stamp(15)
    a('s_mov_b64 exec, -1')
    for r in range(4):
        a('v_add_f32 v%d, v%d, v%d' % (RAW + r, RAW + r, RAW + 4 + r))
    for r in range(4):
        a('v_add_f32 v%d, v%d, v%d' % (RAW + r, RAW + r, RAW + 8 + r))
    quadred([RAW])
    rowred('v_add_f32', [RAW])
    rbf(4, RAW)
    a('v_mul_f32 v4, v4, v%d' % vGA)
    rbf(4, 4)
    a('''s_waitcnt lgkmcnt(0)
         v_add_f32 v4, v4, v12
         v_cvt_pk_bf16_f32 v4, v4, v4
         v_lshrrev_b32 v1, 1, v%d
         s_mov_b32 exec_lo, 0x00010001
         s_mov_b32 exec_hi, 0x00010001
         buffer_store_short v4, v1, %s, 0 offen''' % (vA4, sOUT))
    stamp(16)
    a.label('L_exit')
    a('''s_cmp_eq_u32 s34, 1
         s_cbranch_scc1 L_reh2_ret''')
    stamp_flush()
    a.label('L_end')
    a('s_endpgm')
    a.raw('.fill 64, 4, 0xbf800000')
    a.raw('''.section .rodata,"a"
.p2align 6
.amdhsa_kernel %s_kernel
  .amdhsa_next_free_vgpr 256
  .amdhsa_next_free_sgpr 102
  .amdhsa_accum_offset 256
  .amdhsa_group_segment_fixed_size 0
  .amdhsa_kernarg_size 104
  .amdhsa_user_sgpr_count 2
  .amdhsa_user_sgpr_kernarg_segment_ptr 1
  .amdhsa_system_sgpr_workgroup_id_x 1
  .amdhsa_float_denorm_mode_32 3
.end_amdhsa_kernel''' % NAME)
    return a.text()


if __name__ == '__main__':
    out = sys.argv[1]
    kw = eval('dict(%s)' % (sys.argv[2] if len(sys.argv) > 2 else ''))
    open(out, 'w').write(gen(**kw))
```

```python
import sys
from asmlib import Asm

NAME = 'adaLN_cond__gqa_block_cached__dense_activation_relu__decode'

DEFAULTS = dict(
    D=[5],
    stamps=False,
    rehearse=True,
    ld='sc1', st='sc1',
    wpol='nt',
    spin=1 << 17,
    sleep=1,
    prio=1,
)

WS_EPOCH = 0x0
WS_MOD = 0x1000
WS_Q = 0x5000
WS_H1S = 0x9000
WS_H2 = 0xA000
WS_H1O = 0x20000
WS_H3 = 0x60000
WS_SIZE = 0x100000
WS_STAMP = 0x100000
L_CNT = 0x0
L_Q = 0x100
L_XV = 0x300
XV_STRIDE = 320
L_PART = 0x800
L_PART2 = 0xA00
L_X2 = 0xE00
L_SO = 0x1800
L_SS = 0x2800
LDS_BYTES = 0x2900

FULL = 'row_mask:0xf bank_mask:0xf'


def vr(a, n):
    return 'v[%d:%d]' % (a, a + n - 1) if n > 1 else 'v%d' % a


def gen(**kw):
    P = dict(DEFAULTS)
    P.update(kw)
    a = Asm()
    LD, ST, WPOL = P['ld'], P['st'], P['wpol']
    uid = [0]

    def lab(s):
        uid[0] += 1
        return 'L_%s_%d' % (s, uid[0])

    vST = 15
    sect = [0]

    def stamp(i):
        if P['stamps'] == 'dbg':
            mp = {(0, 0): 0, (0, 1): 1, (0, 2): 2, (0, 4): 3, (1, 1): 4, (1, 2): 5, (1, 4): 6, (1, 7): 7, (1, 9): 8, (1, 10): 9,
                  (1, 11): 10, (1, 12): 11, (1, 14): 12, (1, 15): 13, (1, 16): 14}
            if (sect[0], i) not in mp:
                return
            i = mp[(sect[0], i)]
        if P['stamps']:
            a('s_memrealtime s[90:91]\ns_waitcnt lgkmcnt(0)\nv_writelane_b32 v%d, s90, %d' % (vST, i))

    def stamp_flush():
        if P['stamps'] == 'dbg':
            a('''s_mov_b64 exec, -1
                 s_load_dwordx2 s[92:93], s[0:1], 88
                 v_lshlrev_b32 v1, 2, v0
                 v_not_b32 v2, v%d
                 v_cmp_eq_u32 vcc, 0, v0
                 v_cndmask_b32 v2, v%d, v2, vcc
                 s_waitcnt lgkmcnt(0)
                 s_mov_b32 s94, 64
                 s_mov_b32 s95, 0x20000
                 s_mov_b64 exec, 0x7fff
                 buffer_atomic_umax v2, v1, s[92:95], 0 offen offset:4''' % (vST, vST))
        elif P['stamps']:
            a('''s_mov_b64 exec, -1
                 s_load_dwordx2 s[92:93], s[0:1], 96
                 s_lshl_b32 s90, s2, 11
                 s_lshl_b32 s91, s3, 8
                 s_add_u32 s90, s90, s91
                 s_add_u32 s90, s90, %d
                 v_lshlrev_b32 v1, 2, v0
                 s_waitcnt lgkmcnt(0)
                 s_mov_b32 s94, 0x200000
                 s_mov_b32 s95, 0x20000
                 buffer_store_dword v%d, v1, s[92:95], s90 offen''' % (WS_STAMP, vST))

    def allred(op, x, t, first=1):
        if first <= 1:
            a('%s_dpp v%d, v%d, v%d quad_perm:[1,0,3,2] %s' % (op, x, x, x, FULL))
        if first <= 2:
            a('%s_dpp v%d, v%d, v%d quad_perm:[2,3,0,1] %s' % (op, x, x, x, FULL))
        a('%s_dpp v%d, v%d, v%d row_ror:4 %s' % (op, x, x, x, FULL))
        a('%s_dpp v%d, v%d, v%d row_ror:8 %s' % (op, x, x, x, FULL))
        for sw in ('16', '32'):
            a('v_mov_b32 v%d, v%d' % (t, x))
            a('v_permlane%s_swap_b32 v%d, v%d' % (sw, x, t))
            a('%s v%d, v%d, v%d' % (op, x, x, t))

    def rowred(op, xs):
        for pat in ('quad_perm:[1,0,3,2]', 'quad_perm:[2,3,0,1]', 'row_ror:4', 'row_ror:8'):
            for x in xs:
                a('%s_dpp v%d, v%d, v%d %s %s' % (op, x, x, x, pat, FULL))

    def quadred(qs):
        for q in qs:
            a('v_permlane32_swap_b32 v%d, v%d' % (q, q + 2))
            a('v_permlane32_swap_b32 v%d, v%d' % (q + 1, q + 3))
        for q in qs:
            a('v_add_f32 v%d, v%d, v%d' % (q, q, q + 2))
            a('v_add_f32 v%d, v%d, v%d' % (q + 1, q + 1, q + 3))
        for q in qs:
            a('v_permlane16_swap_b32 v%d, v%d' % (q, q + 1))
        for q in qs:
            a('v_add_f32 v%d, v%d, v%d' % (q, q, q + 1))

    def rbf(d, s):
        a('v_cvt_pk_bf16_f32 v%d, 0, v%d' % (d, s))

    a.raw('; @launch grid=(256,1,1) block=(512,1,1) lds=%d' % LDS_BYTES)
    a.raw('.amdgcn_target "amdgcn-amd-amdhsa--gfx950"\n.text\n.globl %s_kernel\n.p2align 8\n.type %s_kernel,@function\n%s_kernel:' % (NAME, NAME, NAME))
    a('''s_cmp_ge_u32 s2, 256
         s_cbranch_scc1 L_end
         s_load_dwordx4 s[4:7], s[0:1], 8
         v_lshrrev_b32 v1, 6, v0
         v_and_b32 v0, 63, v0
         v_readfirstlane_b32 s3, v1
         s_mov_b32 s19, 0x3fb8aa3b
         s_mov_b32 s34, 0''')
    if P['stamps']:
        a('v_mov_b32 v%d, 0' % vST)
    stamp(0)
    if P.get('probe'):
        a('s_memrealtime s[96:97]')
    a('''s_cmp_ge_u32 s3, 4
         s_cbranch_scc1 L_service''')

    vK0, vK1, vV0, vV1, vME, vM, vL, vS, vP, vT, vW = 2, 3, 4, 5, 6, 7, 8, 9, 10, 11, 12
    BQ, O, AS, DD, TT, RING = 16, 24, 28, 36, 52, 64
    a('''; ---- stream wave: K lane map row=(l>>2)&3, chunk=(l>>4)*4+(l&3); V lane map linear
         v_bfe_u32 v2, v0, 2, 2
         v_lshlrev_b32 v2, 8, v2
         v_lshrrev_b32 v3, 4, v0
         v_lshlrev_b32 v3, 6, v3
         v_and_b32 v4, 3, v0
         v_lshlrev_b32 v4, 4, v4
         v_add3_u32 v2, v2, v3, v4
         v_add_u32 v3, 0x1000, v2
         v_lshlrev_b32 v4, 4, v0
         v_add_u32 v5, 0x1000, v4
         s_lshl_b32 s17, s2, 20
         s_lshl_b32 s16, s3, 13
         s_mov_b32 s10, 0x100000
         s_mov_b32 s11, 0x20000
         s_mov_b32 s14, 0x100000
         s_mov_b32 s15, 0x20000
         s_waitcnt lgkmcnt(0)
         s_add_u32 s8, s4, s17
         s_addc_u32 s9, s5, 0
         s_add_u32 s12, s6, s17
         s_addc_u32 s13, s7, 0''')
    if P['prio']:
        a('s_setprio %d' % P['prio'])
    Dp = P['D']
    ldn = [0]

    def load(buf, kv, j, wait=True):
        r = RING + 64 * buf + 32 * kv + 4 * j
        voff = (vK0, vV0)[kv] + (j >> 2)
        if wait:
            a('s_waitcnt vmcnt(%d)' % (Dp[ldn[0] % len(Dp)] - 1))
        ldn[0] += 1
        a('buffer_load_dwordx4 %s, v%d, s[%d:%d], s16 offen offset:%d nt' % (vr(r, 4), voff, 8 + 4 * kv, 11 + 4 * kv, (j & 3) * 1024))

    n = 0
    for buf in range(3):
        for kv in range(2):
            for j in range(8):
                load(buf, kv, j, wait=n >= min(Dp))
                n += 1
                if n == min(Dp):
                    a('''s_barrier
                         s_mov_b32 s18, 0x3db504f3
                         v_and_b32 v1, 1, v0
                         v_cmp_eq_u32 vcc, 1, v1
                         v_mov_b32 v6, 0xffff
                         v_mov_b32 v11, 0xffff0000
                         v_cndmask_b32 v6, v6, v11, vcc
                         v_mov_b32 v7, 0xff800000
                         v_mov_b32 v8, 0''')
                    for r in range(O, O + 12):
                        a('v_mov_b32 v%d, 0' % r)
                    a('''v_lshlrev_b32 v1, 8, v1
                         v_lshrrev_b32 v11, 2, v0
                         v_lshl_add_u32 v14, v11, 4, v1''')
        a('s_add_u32 s16, s16, 0x8000')
    stamp(1)
    a('''s_barrier     ; #2 (q ready)
         ds_read_b128 v[16:19], v14 offset:%d
         v_and_b32 v1, 2, v0
         v_cmp_eq_u32 vcc, 0, v1
         s_mov_b32 s17, 10
         s_waitcnt lgkmcnt(0)''' % L_Q)
    for r in range(4):
        a('v_cndmask_b32 v%d, v%d, 0, vcc' % (BQ + 4 + r, BQ + r))
    for r in range(4):
        a('v_cndmask_b32 v%d, 0, v%d, vcc' % (BQ + r, BQ + r))
    stamp(2)

    def tile(buf, refill, last=False):
        K = RING + 64 * buf
        V = K + 32
        for p in range(4):
            d = vr(DD + 4 * p, 4)
            a('v_mfma_f32_16x16x32_bf16 %s, %s, %s, 0' % (d, vr(K + 8 * p, 4), vr(BQ, 4)))
            if refill:
                load(buf, 0, 2 * p)
            a('v_mfma_f32_16x16x32_bf16 %s, %s, %s, %s' % (d, vr(K + 8 * p + 4, 4), vr(BQ + 4, 4), d))
            if refill:
                load(buf, 0, 2 * p + 1)
        for step in (1, 2, 3):
            for p in range(4):
                c = (p + step) & 3
                rot = 4 * ((p - c) & 3)
                src1 = DD + 4 * p + p if step == 1 else TT + p
                if step < 3:
                    a('v_add_f32_dpp v%d, v%d, v%d row_ror:%d %s' % (TT + p, DD + 4 * p + c, src1, rot, FULL))
                else:
                    a('v_add_f32_dpp v%d, v%d, v%d row_ror:%d row_mask:0xf bank_mask:0x%x' % (vS, DD + 4 * p + c, src1, rot, 1 << p))
        rbf(vS, vS)
        a('v_mul_f32 v%d, s18, v%d' % (vS, vS))
        rbf(vS, vS)
        skip = lab('nors')
        a('v_cmp_gt_f32 vcc, v%d, v%d' % (vS, vM))
        a('s_cbranch_vccz %s' % skip)
        a('s_call_b64 s[30:31], L_rescale')
        a.label(skip)
        a('''v_sub_f32 v{P}, v{S}, v{M}
             v_mul_f32 v{P}, s19, v{P}
             v_exp_f32 v{P}, v{P}
             v_add_f32 v{L}, v{L}, v{P}
             v_cvt_pk_bf16_f32 v{P}, v{P}, v{P}'''.format(P=vP, S=vS, M=vM, L=vL))
        a('v_and_b32_dpp v%d, v%d, v%d quad_perm:[0,0,1,1] %s' % (vW, vP, vME, FULL))
        a('v_and_b32_dpp v%d, v%d, v%d quad_perm:[2,2,3,3] %s' % (vW + 1, vP, vME, FULL))

        def build(jv):
            p, u = jv >> 1, jv & 1
            A = AS + 4 * u
            for t in range(4):
                rot = 4 * ((t - p) & 3)
                pat = 'row_ror:%d' % rot if rot else 'quad_perm:[0,1,2,3]'
                a('v_mov_b32_dpp v%d, v%d %s row_mask:0xf bank_mask:0x%x' % (A + t, vW + u, pat, 1 << t))
        build(0)
        for jv in range(8):
            if jv < 7:
                build(jv + 1)
            if last and 7 - jv < max(Dp):
                a('s_waitcnt vmcnt(%d)' % (7 - jv))
            a('v_mfma_f32_16x16x32_bf16 %s, %s, %s, %s' % (vr(O, 4), vr(AS + 4 * (jv & 1), 4), vr(V + 4 * jv, 4), vr(O, 4)))
            if refill:
                load(buf, 1, jv)
        if refill:
            a('s_add_u32 s16, s16, 0x8000')

    assert max(Dp) <= 8 and 48 % len(Dp) == 0
    a.label('L_loop')
    tile(0, True)
    tile(1, True)
    a('''s_sub_u32 s17, s17, 1
         s_cmp_eq_u32 s17, 0
         s_cbranch_scc1 L_drain''')
    tile(2, True)
    a('s_branch L_loop')
    a.fence()
    a.label('L_rescale')
    a('s_nop 1\nv_mov_b32 v%d, v%d' % (vT, vS))
    allred('v_max_f32', vT, 1, first=2)
    a('''v_max_f32 v{T}, v{T}, v{M}
         v_sub_f32 v1, v{M}, v{T}
         v_mul_f32 v1, s19, v1
         v_exp_f32 v1, v1
         v_mov_b32 v{M}, v{T}
         v_mul_f32 v{L}, v{L}, v1
         v_readlane_b32 s20, v1, 0
         v_readlane_b32 s21, v1, 1
         v_mul_f32 v24, s20, v24
         v_mul_f32 v25, s20, v25
         v_mul_f32 v26, s21, v26
         v_mul_f32 v27, s21, v27
         s_setpc_b64 s[30:31]'''.format(T=vT, M=vM, L=vL))
    a.fence()
    a.label('L_drain')
    a('s_nop 1')
    stamp(3)
    tile(2, False)
    tile(0, False)
    tile(1, False, last=True)
    allred('v_add_f32', vL, 1, first=2)
    a('''s_and_b32 s20, s3, 3
         s_lshl_b32 s21, s20, 10
         s_lshl_b32 s20, s20, 4
         v_lshl_add_u32 v1, v0, 4, s21
         v_lshl_add_u32 v2, v0, 2, s20
         ds_write_b128 v1, v[24:27] offset:%d
         s_mov_b64 exec, 3
         v_add_u32 v2, %d, v2
         ds_write2_b32 v2, v7, v8 offset0:0 offset1:2
         s_mov_b64 exec, -1
         s_cmp_eq_u32 s34, 1
         s_cbranch_scc1 L_reh1_ret
         s_waitcnt lgkmcnt(0)''' % (L_SO, L_SS))
    stamp(4)
    a('s_barrier')
    stamp_flush()
    a('s_endpgm')
    a.fence()

    sW, sWS, sIN, sOUT, sDBG = 's[36:39]', 's[40:43]', 's[44:47]', 's[48:51]', 's[52:55]'
    RAW, WA, WO, W2, XB, DR = 16, 64, 100, 132, 180, 200
    vGQ, vN, vXVw, vXVr, vPW = 216, 217, 218, 219, 220
    vSH, vSC = 224, 228
    vX, vGA = 232, 236
    AM = 240
    vA1, vA2, vA3, vA4 = 252, 253, 254, 255
    a.label('L_service')
    sect[0] = 1
    a('''s_load_dwordx2 s[56:57], s[0:1], 0
         s_load_dwordx4 s[60:63], s[0:1], 24
         s_load_dwordx4 s[64:67], s[0:1], 48
         s_load_dwordx4 s[68:71], s[0:1], 64
         s_load_dwordx4 s[72:75], s[0:1], 80
         s_load_dwordx2 s[76:77], s[0:1], 96
         v_mov_b32 v1, 0
         ds_write_b32 v1, v1 offset:%d
         s_sub_u32 s33, s3, 4
         v_lshrrev_b32 v%d, 4, v0
         v_and_b32 v%d, 15, v0
         s_mov_b32 s39, 0x20000
         s_mov_b32 s42, %d
         s_mov_b32 s43, 0x20000
         s_mov_b32 s46, 1152
         s_mov_b32 s47, 0x20000
         s_mov_b32 s50, 1152
         s_mov_b32 s51, 0x20000
         s_mov_b32 s54, 256
         s_mov_b32 s55, 0x20000
         s_mov_b32 s81, 0
         s_mov_b32 s82, 0x05040100
         s_mov_b32 s83, 0x07060302
         s_mov_b32 s84, -1
         s_mov_b32 s85, 15
         ; j = g*8 + (s&3)*2 + (s>>3)
         s_lshr_b32 s80, s2, 4
         s_lshl_b32 s80, s80, 3
         s_and_b32 s86, s2, 3
         s_lshl_b32 s86, s86, 1
         s_add_u32 s80, s80, s86
         s_bfe_u32 s86, s2, 0x10003
         s_add_u32 s80, s80, s86
         s_waitcnt lgkmcnt(0)
         s_barrier     ; #1
         s_load_dword s35, s[76:77], %d
         s_mov_b32 s40, s76
         s_mov_b32 s41, s77
         s_mov_b32 s48, s72
         s_mov_b32 s49, s73
         s_mov_b32 s52, s74
         s_mov_b32 s53, s75
         s_bitcmp1_b32 s2, 2
         s_cselect_b32 s36, s70, s60
         s_cselect_b32 s37, s71, s61
         s_cselect_b32 s78, 1, 0
         s_cselect_b32 s44, s68, s56
         s_cselect_b32 s45, s69, s57
         s_mul_i32 s78, s78, 1280
         s_sub_u32 s78, 8192, s78
         s_mul_i32 s38, s78, 576
         ; LDS addresses
         s_mul_i32 s86, s33, %d
         s_add_u32 s86, s86, %d
         v_lshl_add_u32 v%d, v0, 3, s86
         v_mul_u32_u24 v1, 72, v%d
         v_add_u32 v%d, s86, v1
         s_lshl_b32 s86, s33, 7
         v_lshl_add_u32 v%d, v%d, 3, s86
         s_bitcmp1_b32 s2, 2
         s_cbranch_scc0 L_gemv_go
         s_cmp_ge_u32 s80, 108
         s_cbranch_scc1 L_pro_done''' % (L_CNT, vGQ, vN, WS_SIZE, WS_EPOCH, XV_STRIDE, L_XV, vXVw, vGQ, vXVr, vPW, vN))
    a.label('L_gemv_go')

    def gemv32_loads(sj):
        a('''s_mul_i32 s86, s33, 144
             v_mul_u32_u24 v1, 36, v%d
             v_add_u32 v1, s86, v1
             v_mul_lo_u32 v1, v1, s78
             v_lshl_add_u32 v1, v%d, 2, v1
             s_lshl_b32 s79, %s, 6''' % (vGQ, vN, sj))
        for i in range(36):
            a('buffer_load_dword v%d, v1, %s, s79 offen %s' % (RAW + i, sW, WPOL))
            if i < 35:
                a('s_add_u32 s79, s79, s78')

    def gemv32_perm():
        for cc in range(2):
            for ip in range(18):
                a('v_perm_b32 v%d, v%d, v%d, s%d' % (WA + 18 * cc + ip, RAW + 2 * ip + 1, RAW + 2 * ip, 82 + cc))

    def gemv32_run():
        a('s_mov_b64 exec, -1')
        for z in range(4):
            a('ds_read2_b64 %s, v%d offset0:%d offset1:%d' % (vr(XB + 4 * z, 4), vXVr, 2 * z, 2 * z + 1))
        a('ds_read_b64 %s, v%d offset:64' % (vr(XB + 16, 2), vXVr))
        for z in range(4):
            a('s_waitcnt lgkmcnt(%d)' % (4 - z))
            for cc in range(2):
                d = vr(DR + 4 * cc, 4)
                a('v_mfma_f32_16x16x32_bf16 %s, %s, %s, %s' % (d, vr(XB + 4 * z, 4), vr(WA + 18 * cc + 4 * z, 4), d if z else '0'))
        a('s_waitcnt lgkmcnt(0)')
        for cc in range(2):
            a('v_mfma_f32_16x16x16_bf16 %s, %s, %s, 0' % (vr(DR + 8 + 4 * cc, 4), vr(XB + 16, 2), vr(WA + 18 * cc + 16, 2)))
        a('''v_add_f32 v2, v%d, v%d
             v_add_f32 v3, v%d, v%d
             s_mov_b64 exec, 0xffff
             ds_write_b64 v%d, v[2:3] offset:%d''' % (DR, DR + 8, DR + 4, DR + 12, vPW, L_PART))

    def unpack(dst, src, n):
        for i in range(n):
            a('v_lshlrev_b32 v%d, 16, v%d' % (dst + 2 * i, src[i]))
            a('v_and_b32 v%d, 0xffff0000, v%d' % (dst + 2 * i + 1, src[i]))

    def layernorm(X):
        a('''s_mov_b64 exec, -1
             v_mov_b32 v2, 0
             v_mov_b32 v3, 0
             s_mov_b64 exec, s[84:85]''')
        for i in range(4):
            a('v_add_f32 v%d, v%d, v%d' % (4 + i, X + i, X + 4 + i))
        for i in range(4):
            a('v_add_f32 v%d, v%d, v%d' % (8 + i, X + 8 + i, X + 12 + i))
        for i in range(4):
            a('v_add_f32 v%d, v%d, v%d' % (4 + i, 4 + i, 8 + i))
        a('''v_add_f32 v4, v4, v5
             v_add_f32 v6, v6, v7
             v_add_f32 v2, v4, v6
             s_mov_b64 exec, -1''')
        allred('v_add_f32', 2, 1)
        a('''v_mul_f32 v2, 0x3ae38e39, v2
             s_mov_b64 exec, s[84:85]''')
        for i in range(4):
            a('v_sub_f32 v%d, v%d, v2' % (4 + i, X + i))
        for i in range(4):
            a('v_mul_f32 v%d, v%d, v%d' % (4 + i, 4 + i, 4 + i))
        for k in range(1, 4):
            for i in range(4):
                a('v_sub_f32 v%d, v%d, v2' % (8 + i, X + 4 * k + i))
            for i in range(4):
                a('v_fmac_f32 v%d, v%d, v%d' % (4 + i, 8 + i, 8 + i))
        a('''v_add_f32 v4, v4, v5
             v_add_f32 v6, v6, v7
             v_add_f32 v3, v4, v6
             s_mov_b64 exec, -1''')
        rbf(2, 2)
        allred('v_add_f32', 3, 1)
        a('v_mul_f32 v3, 0x3ae38e39, v3')
        for i in range(4):
            a('v_sub_f32 v%d, v%d, v2' % (X + i, X + i))
        rbf(3, 3)
        a('v_add_f32 v3, 0x3727c5ac, v3')
        rbf(3, 3)
        a('v_sqrt_f32 v3, v3')
        for i in range(4):
            rbf(X + i, X + i)
        rbf(3, 3)
        a('v_rcp_f32 v3, v3')
        a('s_mov_b64 exec, s[84:85]')
        for i in range(4):
            a('v_mul_f32 v%d, v%d, v3' % (X + i, X + i))
        for i in range(4):
            rbf(X + i, X + i)

    def modulate(X):
        for i in range(4):
            a('v_mul_f32 v%d, v%d, v%d' % (X + i, X + i, vSC + i))
        for i in range(4):
            rbf(X + i, X + i)
        for i in range(4):
            a('v_add_f32 v%d, v%d, v%d' % (X + i, X + i, vSH + i))
        a('''v_cvt_pk_bf16_f32 v2, v%d, v%d
             v_cvt_pk_bf16_f32 v3, v%d, v%d
             ds_write_b64 v%d, v[2:3]''' % (X, X + 1, X + 2, X + 3, vXVw))

    def spin_tail(loop, done):
        a('s_cbranch_vccz %s' % done)
        if P['sleep']:
            a('s_sleep %d' % P['sleep'])
        a('''s_add_u32 s81, s81, 1
             s_cmp_lt_u32 s81, %d
             s_cbranch_scc1 %s''' % (P['spin'], loop))
        a.label(done)

    def poll_tag(loads, tags):
        loop, done = lab('pt'), lab('ptd')
        a.label(loop)
        for l in loads:
            a(l + ' ' + LD)
        a('s_waitcnt vmcnt(0)')
        a('v_cmp_ne_u32 vcc, s35, v%d' % tags[0])
        for t in tags[1:]:
            a('v_cmp_ne_u32 s[86:87], s35, v%d' % t)
            a('s_or_b64 vcc, vcc, s[86:87]')
        spin_tail(loop, done)

    def poll_sent(loads, first, n):
        loop, done = lab('ps'), lab('psd')
        a.label(loop)
        for l in loads:
            a(l + ' ' + LD)
        nq = n // 4
        for q in range(nq):
            r = first + 4 * q
            a('s_waitcnt vmcnt(%d)' % (nq - 1 - q))
            if q == 0:
                a('v_max_u32 v2, v%d, v%d' % (r, r + 1))
                a('v_max_u32 v3, v%d, v%d' % (r + 2, r + 3))
            else:
                a('v_max3_u32 v2, v2, v%d, v%d' % (r, r + 1))
                a('v_max3_u32 v3, v3, v%d, v%d' % (r + 2, r + 3))
        a('v_max_u32 v2, v2, v3')
        a('v_cmp_eq_u32 vcc, -1, v2')
        spin_tail(loop, done)

    def load_shift_scale(first):
        a('''s_mul_i32 s86, s33, 576
             s_add_u32 s86, s86, %d
             v_lshl_add_u32 v1, v0, 4, s86''' % (WS_MOD + first * 2304))
        poll_tag(['buffer_load_dwordx4 v[4:7], v1, %s, 0 offen' % sWS,
                  'buffer_load_dwordx4 v[8:11], v1, %s, 0 offen offset:2304' % sWS], [5, 7, 9, 11])
        unpack(vSH, [4, 6], 2)
        unpack(vSC, [8, 10], 2)
        for i in range(4):
            a('v_add_f32 v%d, 1.0, v%d' % (vSC + i, vSC + i))
        for i in range(4):
            rbf(vSC + i, vSC + i)

    XI = 52
    XF = W2
    a('''s_mov_b64 exec, s[84:85]
         v_lshlrev_b32 v2, 3, v0''')
    for k in range(4):
        a('''s_add_u32 s86, s33, %d
             s_and_b32 s86, s86, 3
             s_mul_i32 s86, s86, 288
             buffer_load_dwordx2 %s, v2, %s, s86 offen''' % (k, vr(XI + 2 * k, 2), sIN))
    a('s_mov_b64 exec, -1')
    gemv32_loads('s80')
    a('''s_waitcnt lgkmcnt(0)
         s_mul_i32 s35, s35, 0x9e3779b1
         s_add_u32 s35, s35, 0x7f4a7c15
         s_waitcnt vmcnt(36)''')
    unpack(XF, list(range(XI, XI + 8)), 8)
    a('''s_bitcmp1_b32 s2, 2
         s_cbranch_scc0 L_qrole''')
    a('s_mov_b64 exec, s[84:85]\ns_mov_b32 s86, 0x32a57060\ns_mov_b32 s87, 0x7f7fffff')
    T, R, E = 4, 8, XF + 4
    X = XF
    seq = ['v_mul_f32 v{t}, 0xbfb8aa3b, v{x}',
           'v_fma_f32 v{r}, -v{x}, s19, -v{t}',
           'v_exp_f32 v{t}, v{t}',
           'v_fma_f32 v{r}, -v{x}, s86, v{r}',
           'v_mul_f32 v{r}, 0x3f317218, v{r}',
           'v_med3_f32 v{r}, v{r}, -0.5, 0.5',
           'v_min_f32 v{e}, s87, v{t}',
           'v_fma_f32 v{t}, v{e}, v{r}, v{t}',
           'v_add_f32 v{t}, 1.0, v{t}',
           'v_rcp_f32 v{r}, v{t}',
           'v_mul_f32 v{e}, v{x}, v{r}',
           'v_fma_f32 v{f}, -v{e}, v{t}, v{x}',
           'v_fma_f32 v{e}, v{f}, v{r}, v{e}',
           'v_div_fixup_f32 v{t}, v{e}, v{t}, v{x}']
    for ins in seq:
        for i in range(4):
            a(ins.format(t=T + i, r=R + i, e=E + i, f=E + 4 + i, x=X + i))
    a('''v_cvt_pk_bf16_f32 v2, v4, v5
         v_cvt_pk_bf16_f32 v3, v6, v7
         ds_write_b64 v%d, v[2:3]
         s_mov_b64 exec, -1
         s_mov_b32 s88, %d
         s_waitcnt vmcnt(0)''' % (vXVw, WS_MOD))
    stamp(1)
    gemv32_perm()
    a('s_branch L_gemv_run')
    a.fence()
    a.label('L_qrole')
    layernorm(XF)
    a('''s_mov_b64 exec, -1
         s_mov_b32 s88, %d
         s_waitcnt vmcnt(0)''' % WS_Q)
    stamp(1)
    gemv32_perm()
    a('s_mov_b64 exec, s[84:85]')
    load_shift_scale(0)
    stamp(2)
    modulate(XF)
    a.label('L_gemv_run')
    gemv32_run()
    a('''s_mov_b64 exec, 1
         v_mov_b32 v1, 0
         v_mov_b32 v2, 1
         s_waitcnt lgkmcnt(0)
         ds_add_u32 v1, v2 offset:%d
         s_cmp_lg_u32 s33, 0
         s_cbranch_scc1 L_pro_done''' % L_CNT)
    a.label('L_svc_spin')
    a('''ds_read_b32 v2, v1 offset:%d
         s_add_u32 s81, s81, 1
         s_cmp_ge_u32 s81, %d
         s_cbranch_scc1 L_svc_ok
         s_waitcnt lgkmcnt(0)
         v_cmp_ne_u32 vcc, 4, v2
         s_cbranch_vccnz L_svc_spin''' % (L_CNT, P['spin']))
    a.label('L_svc_ok')
    a('''s_mov_b64 exec, 0xffff
         ds_read2_b64 v[4:7], v{PW} offset0:{o0} offset1:{o1}
         ds_read2_b64 v[8:11], v{PW} offset0:{o2} offset1:{o3}
         s_lshl_b32 s86, s80, 7
         s_add_u32 s88, s88, s86
         v_mov_b32 v3, s35
         s_waitcnt lgkmcnt(0)
         v_add_f32 v4, v4, v6
         v_add_f32 v5, v5, v7
         v_add_f32 v8, v8, v10
         v_add_f32 v9, v9, v11
         v_add_f32 v4, v4, v8
         v_add_f32 v5, v5, v9
         v_cvt_pk_bf16_f32 v2, v4, v5
         buffer_store_dwordx2 v[2:3], v{PW}, {ws}, s88 offen {st}'''.format(
        PW=vPW, o0=0, o1=16, o2=32, o3=48, ws=sWS, st=ST).replace('v%d offset0' % vPW, 'v12 offset0').replace(
        's_mov_b64 exec, 0xffff', 's_mov_b64 exec, 0xffff\nv_add_u32 v12, %d, v%d' % (L_PART, vPW)))
    stamp(3)
    a('s_branch L_pro_done2')
    a.fence()
    a.label('L_pro_done')
    a('''s_bitcmp1_b32 s2, 2
         s_cbranch_scc0 L_pro_done2
         s_cmp_lt_u32 s80, 108
         s_cbranch_scc1 L_pro_done2
         s_waitcnt lgkmcnt(0)
         s_mul_i32 s35, s35, 0x9e3779b1
         s_add_u32 s35, s35, 0x7f4a7c15''')
    a.label('L_pro_done2')
    a('''s_mov_b64 exec, -1
         s_cmp_lg_u32 s33, 1
         s_cbranch_scc1 L_q_done
         s_lshr_b32 s86, s2, 4
         s_lshl_b32 s86, s86, 10
         s_add_u32 s86, s86, %d
         v_lshl_add_u32 v1, v0, 4, s86''' % WS_Q)
    poll_tag(['buffer_load_dwordx4 v[4:7], v1, %s, 0 offen' % sWS], [5, 7])
    a('''v_lshlrev_b32 v1, 3, v0
         v_mov_b32 v5, v6
         ds_write_b64 v1, v[4:5] offset:%d''' % L_Q)
    stamp(4)
    a.label('L_q_done')
    if P['rehearse']:
        a('''s_cmp_lg_u32 s33, 3
             s_cbranch_scc1 L_reh1_skip
             s_mov_b32 s34, 1
             s_branch L_drain''')
        a.fence()
    a.label('L_reh1_ret')
    a('s_mov_b32 s34, 0')
    a.label('L_reh1_skip')
    a('''s_waitcnt lgkmcnt(0)
         s_barrier     ; #2''')
    stamp(5)
    if P.get('probe') and P['probe'][3] == 5:
        a('s_memrealtime s[98:99]\ns_waitcnt lgkmcnt(0)')
    a('''s_and_b32 s29, s2, 15
         s_lshr_b32 s32, s2, 4
         s_sub_u32 s80, s32, 7
         s_lshl_b32 s80, s80, 4
         s_and_b32 s86, s2, 7
         s_lshl_b32 s86, s86, 1
         s_add_u32 s80, s80, s86
         s_bfe_u32 s86, s2, 0x10003
         s_add_u32 s80, s80, s86
         s_mov_b32 s22, 4096
         s_mov_b32 s23, 8192
         ; publish offsets: s24 H1O, s25 H1S, s26 H2, s27 H3
         s_lshl_b32 s24, s2, 10
         s_add_u32 s24, s24, %d
         s_lshl_b32 s25, s2, 4
         s_add_u32 s25, s25, %d
         s_lshl_b32 s26, s2, 8
         s_add_u32 s26, s26, %d
         s_mul_i32 s27, s80, 2304
         s_add_u32 s27, s27, %d
         v_lshlrev_b32 v14, 4, v0
         v_mov_b32 v252, 0
         v_mov_b32 v253, 0
         v_mov_b32 v254, 0
         v_mov_b32 v255, 0
         s_cmp_lg_u32 s33, 2
         s_cbranch_scc1 L_clear_done
         v_mov_b32 v4, -1
         v_mov_b32 v5, -1
         v_mov_b32 v6, -1
         v_mov_b32 v7, -1
         buffer_store_dwordx4 v[4:7], v14, {ws}, s24 offen {st}
         s_mov_b64 exec, 1
         buffer_store_dwordx4 v[4:7], v14, {ws}, s25 offen {st}
         s_cmp_ge_u32 s2, 144
         s_cbranch_scc1 L_clear_h3
         s_mov_b64 exec, 0xffff
         buffer_store_dwordx4 v[4:7], v14, {ws}, s26 offen {st}
         L_clear_h3:
         s_cmp_lt_u32 s2, 112
         s_cbranch_scc1 L_clear_cnt
         s_mov_b64 exec, -1
         buffer_store_dwordx4 v[4:7], v14, {ws}, s27 offen {st}
         buffer_store_dwordx4 v[4:7], v14, {ws}, s27 offen offset:1024 {st}
         s_mov_b64 exec, 0xffff
         buffer_store_dwordx4 v[4:7], v14, {ws}, s27 offen offset:2048 {st}
         L_clear_cnt:
         s_mov_b64 exec, 1
         v_mov_b32 v8, 1
         s_waitcnt vmcnt(0)
         buffer_atomic_add v8, v14, {dbg}, 0 offen
         s_mov_b64 exec, -1
         L_clear_done:'''.format(ws=sWS, st=ST, dbg=sDBG) % (WS_H1O, WS_H1S, WS_H2, WS_H3))
    a('''s_cmp_ge_u32 s2, 144
         s_cbranch_scc1 L_no_wo
         s_mov_b32 s36, s62
         s_mov_b32 s37, s63
         s_mov_b32 s38, %d
         v_lshrrev_b32 v1, 1, v{GQ}
         v_lshlrev_b32 v1, 7, v1
         v_and_b32 v2, 1, v{GQ}
         s_lshl_b32 s86, s29, 8
         s_lshl_b32 s87, s33, 1
         s_add_u32 s86, s86, s87
         v_add3_u32 v1, v1, v2, s86
         v_mul_u32_u24 v1, 1152, v1
         v_lshl_add_u32 v1, v{N}, 3, v1
         s_lshl_b32 s79, s32, 7'''.format(GQ=vGQ, N=vN) % (4096 * 1152))
    for i in range(16):
        a('buffer_load_dwordx2 %s, v1, %s, s79 offen %s' % (vr(RAW + 2 * i, 2), sW, WPOL))
        if i < 15:
            a('s_add_u32 s79, s79, 9216')
    a('''s_lshl_b32 s86, s29, 14
         s_lshl_b32 s87, s33, 8
         s_add_u32 s86, s86, s87
         s_add_u32 s86, s86, {h1o}
         v_lshlrev_b32 v1, 12, v{GQ}
         v_lshl_add_u32 v1, v{N}, 4, v1
         v_add_u32 v{A1}, s86, v1
         v_lshl_add_u32 v1, v{GQ}, 2, v{N}
         v_and_b32 v1, 15, v1
         s_lshl_b32 s86, s29, 8
         s_add_u32 s86, s86, {h1s}
         v_lshl_add_u32 v{A2}, v1, 4, s86
         s_waitcnt vmcnt(0)'''.format(GQ=vGQ, N=vN, A1=vA1, A2=vA2, h1o=WS_H1O, h1s=WS_H1S))
    for cc in range(4):
        for ip in range(8):
            a('v_perm_b32 v%d, v%d, v%d, s%d' % (WO + 8 * cc + ip, RAW + 2 * (2 * ip + 1) + (cc >> 1), RAW + 2 * (2 * ip) + (cc >> 1), 82 + (cc & 1)))
    a.label('L_no_wo')
    a('''s_cmp_lt_u32 s2, 112
         s_cbranch_scc1 L_no_ffn
         s_mov_b32 s36, s64
         s_mov_b32 s37, s65
         s_mov_b32 s38, %d
         s_mov_b32 s78, 9216''' % (576 * 9216))
    gemv32_loads('s80')
    a('s_waitcnt vmcnt(0)')
    gemv32_perm()
    a('''s_mov_b32 s44, s56
         s_mov_b32 s45, s57
         s_cmp_eq_u32 s33, 3
         s_cbranch_scc1 L_w3_prep
         s_mov_b32 s36, s66
         s_mov_b32 s37, s67
         s_lshl_b32 s86, s80, 5
         v_lshl_add_u32 v1, v{GQ}, 3, s86
         v_mul_u32_u24 v1, 1152, v1
         v_lshl_add_u32 v1, v{N}, 3, v1
         s_mul_i32 s79, s33, 384'''.format(GQ=vGQ, N=vN))
    for jj in range(8):
        for blk in range(3):
            a('buffer_load_dwordx2 %s, v1, %s, s79 offen offset:%d %s' % (vr(RAW + 2 * (blk * 8 + jj), 2), sW, blk * 128, WPOL))
        if jj < 7:
            a('s_add_u32 s79, s79, 1152')
    for r in range(AM, AM + 12):
        a('v_mov_b32 v%d, 0' % r)
    a('''s_mul_i32 s86, s33, 192
         v_lshl_add_u32 v1, v{N}, 2, v{GQ}
         v_add_u32 v1, s86, v1
         v_lshlrev_b32 v{A4}, 2, v1
         v_lshlrev_b32 v2, 1, v1
         s_mul_i32 s86, s33, 12288
         s_add_u32 s86, s86, {h2}
         v_add_u32 v{A3}, s86, v14
         s_waitcnt vmcnt(0)'''.format(GQ=vGQ, N=vN, A4=vA4, A3=vA3, h2=WS_H2))
    for blk in range(3):
        for cc in range(4):
            for ip in range(4):
                a('v_perm_b32 v%d, v%d, v%d, s%d' % (W2 + (blk * 4 + cc) * 4 + ip, RAW + 2 * (blk * 8 + 2 * ip + 1) + (cc >> 1),
                                                    RAW + 2 * (blk * 8 + 2 * ip) + (cc >> 1), 82 + (cc & 1)))
    for i in range(3):
        a('buffer_load_ushort v%d, v2, %s, 0 offen offset:%d' % (vX + i, sIN, 128 * i))
    a('''v_lshrrev_b32 v1, 1, v1
         v_lshlrev_b32 v1, 3, v1
         v_add_u32 v1, %d, v1''' % (WS_MOD + 2 * 2304))
    poll_tag(['buffer_load_dwordx2 %s, v1, %s, 0 offen offset:%d' % (vr(4 + 2 * i, 2), sWS, 256 * i) for i in range(3)], [5, 7, 9])
    a('''v_and_b32 v1, 1, v%d
         v_lshlrev_b32 v1, 4, v1''' % vGQ)
    for i in range(3):
        a('v_lshlrev_b32 v%d, 16, v%d' % (vX + i, vX + i))
        a('v_lshrrev_b32 v%d, v1, v%d' % (vGA + i, 4 + 2 * i))
        a('v_lshlrev_b32 v%d, 16, v%d' % (vGA + i, vGA + i))
    a('s_branch L_prep_join')
    a.fence()
    a.label('L_w3_prep')
    a('''s_lshl_b32 s86, s80, 2
         v_add_u32 v1, s86, v{GQ}
         v_lshlrev_b32 v{A4}, 2, v1
         v_mul_u32_u24 v2, 2304, v0
         s_lshl_b32 s86, s80, 4
         s_add_u32 s86, s86, {h3}
         v_add_u32 v{A3}, s86, v2
         s_mov_b32 s22, {k1}
         s_mov_b32 s23, {k2}
         v_lshrrev_b32 v1, 1, v1
         v_lshlrev_b32 v1, 3, v1
         v_add_u32 v1, {gb}, v1'''.format(GQ=vGQ, A4=vA4, A3=vA3, h3=WS_H3, k1=48 * 2304, k2=96 * 2304, gb=WS_MOD + 5 * 2304))
    poll_tag(['buffer_load_dwordx2 v[4:5], v1, %s, 0 offen' % sWS], [5])
    a('''v_and_b32 v1, 1, v{GQ}
         v_lshlrev_b32 v1, 4, v1
         v_lshrrev_b32 v{GA}, v1, v4
         v_lshlrev_b32 v{GA}, 16, v{GA}'''.format(GQ=vGQ, GA=vGA))
    a.label('L_prep_join')
    a('s_mov_b64 exec, s[84:85]')
    load_shift_scale(3)
    a('s_mov_b64 exec, -1')
    a.label('L_no_ffn')
    a('''s_cmp_lg_u32 s33, 2
         s_cbranch_scc1 L_cnt_done
         s_mov_b64 exec, 1''')
    a.label('L_cnt_spin')
    a('''s_sleep 32
         buffer_load_dword v4, v14, %s, 0 offen %s
         s_movk_i32 s86, 0x100
         s_waitcnt vmcnt(0)
         v_cmp_gt_u32 vcc, s86, v4''' % (sDBG, LD))
    spin_tail('L_cnt_spin', 'L_cnt_ok')
    a('''s_cmp_lg_u32 s2, 0
         s_cbranch_scc1 L_cnt_done
         v_mov_b32 v4, s35
         buffer_store_dword v4, v14, %s, 0 offen offset:%d %s''' % (sWS, WS_EPOCH, ST))
    a.label('L_cnt_done')
    a('s_mov_b64 exec, -1')
    stamp(6)
    if P['rehearse']:
        a('''s_waitcnt vmcnt(0)
             s_mov_b32 s34, 1
             s_mov_b32 s42, 0
             s_mov_b32 s50, 0
             s_branch L_tail''')
        a.fence()
    a.label('L_reh2_ret')
    a('''s_waitcnt vmcnt(0) lgkmcnt(0)
         s_mov_b64 exec, -1
         s_mov_b32 s34, 0
         s_mov_b32 s42, %d
         s_mov_b32 s50, 1152''' % WS_SIZE)
    stamp(7)
    a('s_barrier     ; #3')

    def tbarrier():
        skip = lab('nb')
        a('''s_waitcnt lgkmcnt(0)
             s_cmp_eq_u32 s34, 1
             s_cbranch_scc1 %s
             s_barrier''' % skip)
        a.label(skip)

    a.label('L_tail')
    stamp(8)
    if P.get('probe') and P['probe'][3] == 8:
        a('s_memrealtime s[98:99]\ns_waitcnt lgkmcnt(0)')
    a('''s_cmp_lg_u32 s33, 0
         s_cbranch_scc1 L_t1
         v_mov_b32 v1, 0''')
    SS, SO = RAW, RAW + 16
    for w in range(4):
        a('ds_read_b128 %s, v1 offset:%d' % (vr(SS + 4 * w, 4), L_SS + 16 * w))
    for w in range(4):
        a('ds_read_b128 %s, v14 offset:%d' % (vr(SO + 4 * w, 4), L_SO + 1024 * w))
    a('s_waitcnt lgkmcnt(4)')
    for h in range(2):
        a('v_max3_f32 v%d, v%d, v%d, v%d' % (4 + h, SS + h, SS + 4 + h, SS + 8 + h))
    for h in range(2):
        a('v_max_f32 v%d, v%d, v%d' % (4 + h, 4 + h, SS + 12 + h))
    for w in range(4):
        for h in range(2):
            a('v_sub_f32 v%d, v%d, v%d' % (SS + 4 * w + h, SS + 4 * w + h, 4 + h))
    for w in range(4):
        for h in range(2):
            a('v_mul_f32 v%d, s19, v%d' % (SS + 4 * w + h, SS + 4 * w + h))
    for w in range(4):
        for h in range(2):
            a('v_exp_f32 v%d, v%d' % (SS + 4 * w + h, SS + 4 * w + h))
    a('s_waitcnt lgkmcnt(0)')
    for w in range(4):
        for r in range(4):
            op = 'v_mul_f32' if w == 0 else 'v_fmac_f32'
            a('%s v%d, v%d, v%d' % (op, 8 + r, SS + 4 * w + (r >> 1), SO + 4 * w + r))
    for r in range(4):
        a('v_min_u32 v%d, -2, v%d' % (8 + r, 8 + r))
    a('buffer_store_dwordx4 v[8:11], v14, %s, s24 offen %s' % (sWS, ST))
    for w in range(4):
        for h in range(2):
            op = 'v_mul_f32' if w == 0 else 'v_fmac_f32'
            a('%s v%d, v%d, v%d' % (op, 6 + h, SS + 4 * w + h, SS + 4 * w + 2 + h))
    for r in range(4):
        a('v_min_u32 v%d, -2, v%d' % (4 + r, 4 + r))
    a('''s_mov_b64 exec, 1
         buffer_store_dwordx4 v[4:7], v14, %s, s25 offen %s
         s_mov_b64 exec, -1''' % (sWS, ST))
    stamp(9)
    a.label('L_t1')
    a('''s_cmp_ge_u32 s2, 144
         s_cbranch_scc1 L_t2''')
    poll_sent(['buffer_load_dwordx4 %s, v%d, %s, 0 offen' % (vr(RAW, 4), vA2, sWS)] +
              ['buffer_load_dwordx4 %s, v%d, %s, 0 offen offset:%d' % (vr(RAW + 4 + 4 * k, 4), vA1, sWS, 1024 * k) for k in range(4)], RAW, 20)
    stamp(10)
    a('v_mov_b32 v4, v%d\nv_mov_b32 v5, v%d' % (RAW, RAW + 1))
    rowred('v_max_f32', [4, 5])
    for h in range(2):
        a('v_sub_f32 v%d, v%d, v%d' % (4 + h, RAW + h, 4 + h))
    for h in range(2):
        a('v_mul_f32 v%d, s19, v%d' % (4 + h, 4 + h))
    for h in range(2):
        a('v_exp_f32 v%d, v%d' % (4 + h, 4 + h))
    for h in range(2):
        a('v_mul_f32 v%d, v%d, v%d' % (6 + h, 4 + h, RAW + 2 + h))
    for k in range(4):
        for r in range(4):
            op = 'v_mul_f32_dpp' if k == 0 else 'v_fmac_f32_dpp'
            a('%s v%d, v%d, v%d row_newbcast:%d %s' % (op, 8 + r, 4 + (r >> 1), RAW + 4 + 4 * k + r, k, FULL))
    rowred('v_add_f32', [6, 7])
    for h in range(2):
        a('v_rcp_f32 v%d, v%d' % (6 + h, 6 + h))
    for r in range(4):
        a('v_mul_f32 v%d, v%d, v%d' % (8 + r, 8 + r, 6 + (r >> 1)))
    quadred([8])
    a('''s_mul_i32 s86, s33, {xs}
         s_add_u32 s86, s86, {xv}
         v_cvt_pk_bf16_f32 v8, v8, v8
         v_lshl_add_u32 v1, v0, 1, s86
         v_lshl_add_u32 v2, v{GQ}, 5, s86
         ds_write_b16 v1, v8
         ds_read_b128 {a0}, v2
         ds_read_b128 {a1}, v2 offset:16
         s_lshl_b32 s86, s33, 8
         v_add_u32 v1, s86, v14
         s_waitcnt lgkmcnt(1)'''.format(xs=XV_STRIDE, xv=L_XV, GQ=vGQ, a0=vr(XB, 4), a1=vr(XB + 4, 4)))
    for cc in range(4):
        a('v_mfma_f32_16x16x32_bf16 %s, %s, %s, 0' % (vr(DR + 4 * cc, 4), vr(XB, 4), vr(WO + 8 * cc, 4)))
    a('s_waitcnt lgkmcnt(0)')
    for cc in range(4):
        d = vr(DR + 4 * cc, 4)
        a('v_mfma_f32_16x16x32_bf16 %s, %s, %s, %s' % (d, vr(XB + 4, 4), vr(WO + 8 * cc + 4, 4), d))
    for cc in range(1, 4):
        a('v_mov_b32 v%d, v%d' % (DR + cc, DR + 4 * cc))
    a('''s_mov_b64 exec, 0xffff
         ds_write_b128 v1, %s offset:%d''' % (vr(DR, 4), L_PART2))
    tbarrier()
    a('''s_cmp_lg_u32 s33, 3
         s_cbranch_scc1 L_t2a''')
    for w in range(4):
        a('ds_read_b128 %s, v14 offset:%d' % (vr(RAW + 4 * w, 4), L_PART2 + 256 * w))
    a('s_waitcnt lgkmcnt(2)')
    for r in range(4):
        a('v_add_f32 v%d, v%d, v%d' % (4 + r, RAW + r, RAW + 4 + r))
    a('s_waitcnt lgkmcnt(0)')
    for r in range(4):
        a('v_add_f32 v%d, v%d, v%d' % (8 + r, RAW + 8 + r, RAW + 12 + r))
    for r in range(4):
        a('v_add_f32 v%d, v%d, v%d' % (4 + r, 4 + r, 8 + r))
    for r in range(4):
        a('v_min_u32 v%d, -2, v%d' % (4 + r, 4 + r))
    a('buffer_store_dwordx4 v[4:7], v14, %s, s26 offen %s' % (sWS, ST))
    stamp(11)
    a.label('L_t2a')
    a('s_mov_b64 exec, -1')
    a.label('L_t2')
    a('''s_cmp_lt_u32 s2, 112
         s_cbranch_scc1 L_exit
         s_cmp_eq_u32 s33, 3
         s_cbranch_scc1 L_t2b''')
    poll_sent(['buffer_load_dwordx4 %s, v%d, %s, %s offen offset:%d' % (vr(RAW + 16 * i + 4 * k, 4), vA3, sWS, ('0', 's22', 's23')[i], 1024 * k)
               for i in range(3) for k in range(4)], RAW, 48)
    stamp(12)
    for i in range(3):
        for r in range(4):
            a('v_add_f32 v%d, v%d, v%d' % (RAW + 16 * i + r, RAW + 16 * i + r, RAW + 16 * i + 4 + r))
        for r in range(4):
            a('v_add_f32 v%d, v%d, v%d' % (RAW + 16 * i + 8 + r, RAW + 16 * i + 8 + r, RAW + 16 * i + 12 + r))
        for r in range(4):
            a('v_add_f32 v%d, v%d, v%d' % (RAW + 16 * i + r, RAW + 16 * i + r, RAW + 16 * i + 8 + r))
    quadred([RAW, RAW + 16, RAW + 32])
    for i in range(3):
        rbf(4 + i, RAW + 16 * i)
    for i in range(3):
        a('v_mul_f32 v%d, v%d, v%d' % (4 + i, 4 + i, vGA + i))
    for i in range(3):
        rbf(4 + i, 4 + i)
    for i in range(3):
        a('v_add_f32 v%d, v%d, v%d' % (4 + i, 4 + i, vX + i))
    for i in range(3):
        rbf(4 + i, 4 + i)
    for i in range(3):
        a('ds_write_b32 v%d, v%d offset:%d' % (vA4, 4 + i, L_X2 + 256 * i))
    a.label('L_t2b')
    tbarrier()
    a('s_mov_b64 exec, s[84:85]')
    for k in range(4):
        a('''s_add_u32 s86, s33, %d
             s_and_b32 s86, s86, 3
             s_mul_i32 s86, s86, 576
             v_add_u32 v1, s86, v14
             ds_read_b128 %s, v1 offset:%d''' % (k, vr(RAW + 4 * k, 4), L_X2))
    a('s_waitcnt lgkmcnt(0)')
    layernorm(RAW)
    modulate(RAW)
    gemv32_run()
    tbarrier()
    stamp(13)
    a('''s_mov_b64 exec, -1
         s_cmp_eq_u32 s33, 3
         s_cbranch_scc1 L_t3
         v_lshlrev_b32 v1, 5, v%d''' % vGQ)
    for w in range(4):
        for hh in range(2):
            a('ds_read_b128 %s, v1 offset:%d' % (vr(RAW + 8 * w + 4 * hh, 4), L_PART + 128 * w + 16 * hh))
    a('s_mul_i32 s86, s33, 768\ns_add_u32 s86, s86, s27')
    a('s_waitcnt lgkmcnt(4)')
    for r in range(8):
        a('v_add_f32 v%d, v%d, v%d' % (RAW + r, RAW + r, RAW + 8 + r))
    a('s_waitcnt lgkmcnt(0)')
    for r in range(8):
        a('v_add_f32 v%d, v%d, v%d' % (RAW + 16 + r, RAW + 16 + r, RAW + 24 + r))
    for r in range(8):
        a('v_add_f32 v%d, v%d, v%d' % (RAW + r, RAW + r, RAW + 16 + r))
    for r in range(8):
        a('v_maximum3_f32 v%d, v%d, 0, 0' % (RAW + r, RAW + r))
    for t in range(4):
        a('v_cvt_pk_bf16_f32 v%d, v%d, v%d' % (4 + t, RAW + 2 * t, RAW + 2 * t + 1))
    for blk in range(3):
        for t in range(4):
            a('v_mov_b32_dpp v%d, v%d quad_perm:[0,1,2,3] row_mask:0xf bank_mask:0x%x' % (AM + 4 * blk + t, 4 + t, 1 << blk))
    for blk in range(3):
        for cc in range(4):
            d = vr(DR + 4 * cc, 4)
            a('v_mfma_f32_16x16x32_bf16 %s, %s, %s, %s' % (d, vr(AM + 4 * blk, 4), vr(W2 + (blk * 4 + cc) * 4, 4), d if blk else '0'))
    for cc in range(4):
        a('v_min_u32 v%d, -2, v%d' % (4 + cc, DR + 4 * cc))
    a('''s_mov_b32 exec_hi, 0xffff
         buffer_store_dwordx4 v[4:7], v14, %s, s86 offen %s''' % (sWS, ST))
    stamp(14)
    a('s_branch L_exit')
    a.fence()
    a.label('L_t3')
    a('ds_read_b32 v12, v%d offset:%d' % (vA4, L_X2))
    for r in range(12):
        a('v_mov_b32 v%d, 0' % (RAW + r))
    a('s_mov_b32 exec_hi, 0xffff')
    poll_sent(['buffer_load_dwordx4 %s, v%d, %s, %s offen' % (vr(RAW + 4 * k, 4), vA3, sWS, ('0', 's22', 's23')[k]) for k in range(3)], RAW, 12)
    stamp(15)
    a('s_mov_b64 exec, -1')
    for r in range(4):
        a('v_add_f32 v%d, v%d, v%d' % (RAW + r, RAW + r, RAW + 4 + r))
    for r in range(4):
        a('v_add_f32 v%d, v%d, v%d' % (RAW + r, RAW + r, RAW + 8 + r))
    quadred([RAW])
    rowred('v_add_f32', [RAW])
    rbf(4, RAW)
    a('v_mul_f32 v4, v4, v%d' % vGA)
    rbf(4, 4)
    a('''s_waitcnt lgkmcnt(0)
         v_add_f32 v4, v4, v12
         v_cvt_pk_bf16_f32 v4, v4, v4
         v_lshrrev_b32 v1, 1, v%d
         s_mov_b32 exec_lo, 0x00010001
         s_mov_b32 exec_hi, 0x00010001
         buffer_store_short v4, v1, %s, 0 offen''' % (vA4, sOUT))
    stamp(16)
    a.label('L_exit')
    a('''s_cmp_eq_u32 s34, 1
         s_cbranch_scc1 L_reh2_ret''')
    if P.get('probe'):
        b0, C, K, which = P['probe']
        if which == 16:
            a('s_memrealtime s[98:99]\ns_waitcnt lgkmcnt(0)')
        a('''s_cmp_lg_u32 s2, %d
             s_cbranch_scc1 L_end
             s_cmp_lg_u32 s33, 3
             s_cbranch_scc1 L_end
             s_sub_u32 s98, s98, s96
             s_mul_i32 s98, s98, %d
             s_add_u32 s98, s98, %d
             s_min_u32 s98, s98, 100000
             L_probe:
             s_sleep 1
             s_memrealtime s[100:101]
             s_waitcnt lgkmcnt(0)
             s_sub_u32 s100, s100, s96
             s_cmp_lt_u32 s100, s98
             s_cbranch_scc1 L_probe''' % (b0, K, C * 100))
    stamp_flush()
    a.label('L_end')
    a('s_endpgm')
    a.raw('.fill 64, 4, 0xbf800000')
    a.raw('''.section .rodata,"a"
.p2align 6
.amdhsa_kernel %s_kernel
  .amdhsa_next_free_vgpr 256
  .amdhsa_next_free_sgpr 102
  .amdhsa_accum_offset 256
  .amdhsa_group_segment_fixed_size 0
  .amdhsa_kernarg_size 104
  .amdhsa_user_sgpr_count 2
  .amdhsa_user_sgpr_kernarg_segment_ptr 1
  .amdhsa_system_sgpr_workgroup_id_x 1
  .amdhsa_float_denorm_mode_32 3
.end_amdhsa_kernel''' % NAME)
    return a.text()


if __name__ == '__main__':
    out = sys.argv[1]
    kw = eval('dict(%s)' % (sys.argv[2] if len(sys.argv) > 2 else ''))
    open(out, 'w').write(gen(**kw))
```

```python
import sys
from asmlib import Asm

NAME = 'adaLN_cond__gqa_block_cached__dense_activation_relu__decode'

DEFAULTS = dict(
    D=[5],
    stamps=False,
    rehearse=True,
    ld='sc1', st='sc1',
    wpol='nt',
    spin=1 << 17,
    sleep=1,
    prio=1,
    npre=6, nl=4, abl=(), skew=0, psl=12, trig=(1, 1), nboth=96, gate=(2, 8), gsleep=6, D0=(0, 5),
    cpf=False,
    pace=10, psleep=0, ppace=0,
)

WS_EPOCH = 0x0
WS_MOD = 0x1000
WS_Q = 0x5000
WS_H1S = 0x9000
WS_H2 = 0xA000
WS_H1O = 0x20000
WS_H3 = 0x60000
WS_SIZE = 0x100000
WS_STAMP = 0x100000
L_CNT = 0x0
L_TRIG = 0x4
L_TICK = 0x8
L_SCNT = 0xc
L_Q = 0x100
L_XV = 0x300
XV_STRIDE = 320
L_PART = 0x800
L_PART2 = 0xA00
L_X2 = 0xE00
L_SO = 0x1800
L_SS = 0x2800
L_SC = 0x3000
L_PF = 0x7000

FULL = 'row_mask:0xf bank_mask:0xf'
TAGGEN = '''s_add_u32 s28, s35, 1
         s_and_b32 s28, s28, 0xff
         s_mul_i32 s35, s35, 0x9e3779b1
         s_add_u32 s35, s35, 0x7f4a7c15
         s_and_b32 s35, s35, 0xffffff00
         s_or_b32 s35, s35, s28'''


def vr(a, n):
    return 'v[%d:%d]' % (a, a + n - 1) if n > 1 else 'v%d' % a


def gen(**kw):
    P = dict(DEFAULTS)
    P.update(kw)
    a = Asm()
    LD, ST, WPOL = P['ld'], P['st'], P['wpol']
    uid = [0]

    def lab(s):
        uid[0] += 1
        return 'L_%s_%d' % (s, uid[0])

    vST = 15
    sect = [0]

    def stamp(i):
        if P['stamps'] == 'dbg':
            mp = {(0, 0): 0, (0, 1): 1, (0, 2): 2, (0, 4): 3, (1, 1): 4, (1, 2): 5, (1, 4): 6, (1, 7): 7, (1, 9): 8, (1, 10): 9,
                  (1, 11): 10, (1, 12): 11, (1, 14): 12, (1, 15): 13, (1, 16): 14}
            if (sect[0], i) not in mp:
                return
            i = mp[(sect[0], i)]
        if P['stamps']:
            a('s_memrealtime s[90:91]\ns_waitcnt lgkmcnt(0)\nv_writelane_b32 v%d, s90, %d' % (vST, i))

    def stamp_flush():
        if P['stamps'] == 'dbg':
            a('''s_mov_b64 exec, -1
                 s_load_dwordx2 s[92:93], s[0:1], 88
                 v_lshlrev_b32 v1, 2, v0
                 v_not_b32 v2, v%d
                 v_cmp_eq_u32 vcc, 0, v0
                 v_cndmask_b32 v2, v%d, v2, vcc
                 s_waitcnt lgkmcnt(0)
                 s_mov_b32 s94, 64
                 s_mov_b32 s95, 0x20000
                 s_mov_b64 exec, 0x7fff
                 buffer_atomic_umax v2, v1, s[92:95], 0 offen offset:4''' % (vST, vST))
        elif P['stamps']:
            a('''s_mov_b64 exec, -1
                 s_load_dwordx2 s[92:93], s[0:1], 96
                 s_lshl_b32 s90, s2, 11
                 s_lshl_b32 s91, s3, 8
                 s_add_u32 s90, s90, s91
                 s_add_u32 s90, s90, %d
                 v_lshlrev_b32 v1, 2, v0
                 s_waitcnt lgkmcnt(0)
                 s_mov_b32 s94, 0x200000
                 s_mov_b32 s95, 0x20000
                 buffer_store_dword v%d, v1, s[92:95], s90 offen''' % (WS_STAMP, vST))

    def allred(op, x, t, first=1):
        if first <= 1:
            a('%s_dpp v%d, v%d, v%d quad_perm:[1,0,3,2] %s' % (op, x, x, x, FULL))
        if first <= 2:
            a('%s_dpp v%d, v%d, v%d quad_perm:[2,3,0,1] %s' % (op, x, x, x, FULL))
        a('%s_dpp v%d, v%d, v%d row_ror:4 %s' % (op, x, x, x, FULL))
        a('%s_dpp v%d, v%d, v%d row_ror:8 %s' % (op, x, x, x, FULL))
        for sw in ('16', '32'):
            a('v_mov_b32 v%d, v%d' % (t, x))
            a('v_permlane%s_swap_b32 v%d, v%d' % (sw, x, t))
            a('%s v%d, v%d, v%d' % (op, x, x, t))

    def rowred(op, xs):
        for pat in ('quad_perm:[1,0,3,2]', 'quad_perm:[2,3,0,1]', 'row_ror:4', 'row_ror:8'):
            for x in xs:
                a('%s_dpp v%d, v%d, v%d %s %s' % (op, x, x, x, pat, FULL))

    def quadred(qs):
        for q in qs:
            a('v_permlane32_swap_b32 v%d, v%d' % (q, q + 2))
            a('v_permlane32_swap_b32 v%d, v%d' % (q + 1, q + 3))
        for q in qs:
            a('v_add_f32 v%d, v%d, v%d' % (q, q, q + 2))
            a('v_add_f32 v%d, v%d, v%d' % (q + 1, q + 1, q + 3))
        for q in qs:
            a('v_permlane16_swap_b32 v%d, v%d' % (q, q + 1))
        for q in qs:
            a('v_add_f32 v%d, v%d, v%d' % (q, q, q + 1))

    def rbf(d, s):
        a('v_cvt_pk_bf16_f32 v%d, 0, v%d' % (d, s))

    a.raw('; @launch grid=(256,1,1) block=(512,1,1) lds=%d' % (L_PF + 4 * 8192 * P['nl']))
    a.raw('.amdgcn_target "amdgcn-amd-amdhsa--gfx950"\n.text\n.globl %s_kernel\n.p2align 8\n.type %s_kernel,@function\n%s_kernel:' % (NAME, NAME, NAME))
    a('''s_cmp_ge_u32 s2, 256
         s_cbranch_scc1 L_end
         s_load_dwordx4 s[4:7], s[0:1], 8
         v_lshrrev_b32 v1, 6, v0
         v_and_b32 v0, 63, v0
         v_readfirstlane_b32 s3, v1
         s_mov_b32 s19, 0x3fb8aa3b
         s_mov_b32 s34, 0''')
    if P['stamps']:
        a('v_mov_b32 v%d, 0' % vST)
    stamp(0)
    if P.get('probe'):
        a('s_memrealtime s[96:97]')
    a('''s_cmp_ge_u32 s3, 4
         s_cbranch_scc1 L_service''')

    vO0, vO1, vV0, vV1, vME, vM, vL, vS, vP, vT, vW, vSA = 2, 3, 4, 5, 6, 7, 8, 9, 10, 11, 12, 14
    BQ, O, AS, DD, TT, RING = 16, 24, 28, 36, 52, 64
    vS2 = 56
    NR, NL = P['npre'], P['nl']
    NP = NR + NL
    a('''; ---- stream wave: K lane map row=(l>>2)&3, chunk=(l>>4)*4+(l&3); V lane map linear
         v_bfe_u32 v2, v0, 2, 2
         v_lshlrev_b32 v2, 8, v2
         v_lshrrev_b32 v3, 4, v0
         v_lshlrev_b32 v3, 6, v3
         v_and_b32 v4, 3, v0
         v_lshlrev_b32 v4, 4, v4
         v_add3_u32 v2, v2, v3, v4
         v_add_u32 v3, 0x1000, v2
         s_lshl_b32 s17, s2, 20
         s_lshl_b32 s16, s3, 13
         s_mov_b32 s10, 0x100000
         s_mov_b32 s11, 0x20000
         s_waitcnt lgkmcnt(0)
         s_add_u32 s8, s4, s17
         s_addc_u32 s9, s5, 0''')
    if P['prio']:
        a('s_setprio %d' % P['prio'])
    Dp = P['D']
    ldn = [0]

    def load(buf, j, wait=True):
        r = RING + 32 * buf + 4 * j
        if buf >= NR and j % 4 == 0:
            a('s_add_u32 m0, s21, %d' % ((buf - NR) * 8192 + (j >> 2) * 4096))
        if ldn[0] < P['D0'][0]:
            if ldn[0] >= P['D0'][1]:
                a('s_waitcnt vmcnt(%d)' % (P['D0'][1] - 1))
        elif wait:
            a('s_waitcnt vmcnt(%d)' % (Dp[ldn[0] % len(Dp)] - 1))
        ldn[0] += 1
        if buf >= NR:
            a('buffer_load_dwordx4 v%d, s[8:11], s16 offen offset:%d nt lds' % (vO0 + (j >> 2), (j & 3) * 1024))
        else:
            a('buffer_load_dwordx4 %s, v%d, s[8:11], s16 offen offset:%d nt' % (vr(r, 4), vO0 + (j >> 2), (j & 3) * 1024))
        if j == 7:
            a('s_add_u32 s16, s16, 0x8000')

    if P.get('hold'):
        a('s_barrier\ns_barrier')
    n = 0
    for buf in range(NP):
        for j in range(8):
            load(buf, j, wait=n >= min(Dp))
            n += 1
            if n == min(min(Dp), P['D0'][1]):
                if not P.get('hold'):
                    a('s_barrier')
                a('''s_load_dwordx2 s[24:25], s[0:1], 96
                     s_add_u32 s12, s6, s17
                     s_addc_u32 s13, s7, 0
                     s_mov_b32 s18, 0x3db504f3
                     v_lshlrev_b32 v4, 4, v0
                     v_add_u32 v5, 0x1000, v4
                     v_and_b32 v1, 1, v0
                     v_cmp_eq_u32 vcc, 1, v1
                     v_mov_b32 v6, 0xffff
                     v_mov_b32 v11, 0xffff0000
                     v_cndmask_b32 v6, v6, v11, vcc
                     v_mov_b32 v7, 0xff800000
                     v_mov_b32 v8, 0''')
                for r in range(O, O + 12):
                    a('v_mov_b32 v%d, 0' % r)
                a('''v_lshlrev_b32 v1, 8, v1
                     v_lshrrev_b32 v11, 2, v0
                     v_lshl_add_u32 v13, v11, 4, v1
                     s_lshl_b32 s20, s3, 12
                     s_add_u32 s20, s20, %d
                     v_lshl_add_u32 v14, v0, 1, s20
                     s_mul_i32 s21, s3, %d
                     s_add_u32 s21, s21, %d
                     v_add_u32 v58, s21, v4
                     v_mov_b32 v56, 0
                     v_mov_b32 v57, 0
                     s_mov_b32 s26, %d
                     s_mov_b32 s27, 0x20000
                     s_waitcnt lgkmcnt(0)
                     s_load_dword s28, s[24:25], %d''' % (L_SC, 8192 * NL, L_PF, WS_SIZE, WS_EPOCH))
    stamp(1)
    a('''s_barrier     ; #2 (q ready)
         ds_read_b128 v[16:19], v13 offset:%d
         v_and_b32 v1, 2, v0
         v_cmp_eq_u32 vcc, 0, v1
         s_mov_b32 s17, %d
         s_waitcnt lgkmcnt(0)
         s_add_u32 s28, s28, 1
         s_and_b32 s28, s28, 0xff''' % (L_Q, (32 - NP) // 2))
    for r in range(4):
        a('v_cndmask_b32 v%d, v%d, 0, vcc' % (BQ + 4 + r, BQ + r))
    for r in range(4):
        a('v_cndmask_b32 v%d, 0, v%d, vcc' % (BQ + r, BQ + r))
    stamp(2)

    def ktile(buf, refill, slot):
        K = RING + 32 * buf
        for p in range(4):
            d = vr(DD + 4 * p, 4)
            a('v_mfma_f32_16x16x32_bf16 %s, %s, %s, 0' % (d, vr(K + 8 * p, 4), vr(BQ, 4)))
            if refill:
                load(buf, 2 * p)
            a('v_mfma_f32_16x16x32_bf16 %s, %s, %s, %s' % (d, vr(K + 8 * p + 4, 4), vr(BQ + 4, 4), d))
            if refill:
                load(buf, 2 * p + 1)
        for step in (1, 2, 3):
            for p in range(4):
                c = (p + step) & 3
                rot = 4 * ((p - c) & 3)
                src1 = DD + 4 * p + p if step == 1 else TT + p
                if step < 3:
                    a('v_add_f32_dpp v%d, v%d, v%d row_ror:%d %s' % (TT + p, DD + 4 * p + c, src1, rot, FULL))
                else:
                    a('v_add_f32_dpp v%d, v%d, v%d row_ror:%d row_mask:0xf bank_mask:0x%x' % (vS, DD + 4 * p + c, src1, rot, 1 << p))
        rbf(vS, vS)
        a('v_mul_f32 v%d, s18, v%d' % (vS, vS))
        rbf(vP, vS)
        a('v_max_f32 v%d, v%d, v%d' % (vM, vM, vP))
        a('ds_write_b16_d16_hi v%d, v%d offset:%d' % (vSA, vP, 128 * slot))

    def vtile(buf, refill, nxt, last=False):
        V = RING + 32 * buf
        a('s_waitcnt lgkmcnt(%d)' % (0 if last else 1))
        a('''v_sub_f32 v{P}, v{S}, v{M}
             v_mul_f32 v{P}, s19, v{P}
             v_exp_f32 v{P}, v{P}'''.format(P=vP, S=vS2 + buf, M=vM))
        if nxt is not None:
            a('ds_read_u16_d16_hi v%d, v%d offset:%d' % (vS2 + buf, vSA, 128 * nxt))
        a('''v_add_f32 v{L}, v{L}, v{P}
             v_cvt_pk_bf16_f32 v{P}, v{P}, v{P}'''.format(P=vP, L=vL))
        a('v_and_b32_dpp v%d, v%d, v%d quad_perm:[0,0,1,1] %s' % (vW, vP, vME, FULL))
        a('v_and_b32_dpp v%d, v%d, v%d quad_perm:[2,2,3,3] %s' % (vW + 1, vP, vME, FULL))

        def build(jv):
            p, u = jv >> 1, jv & 1
            A = AS + 4 * u
            for t in range(4):
                rot = 4 * ((t - p) & 3)
                pat = 'row_ror:%d' % rot if rot else 'quad_perm:[0,1,2,3]'
                a('v_mov_b32_dpp v%d, v%d %s row_mask:0xf bank_mask:0x%x' % (A + t, vW + u, pat, 1 << t))
        build(0)
        for jv in range(8):
            if jv < 7:
                build(jv + 1)
            if last and jv == 2:
                allred('v_add_f32', vL, 1, first=2)
                a('''s_and_b32 s20, s3, 3
                     s_lshl_b32 s21, s20, 10
                     s_lshl_b32 s20, s20, 4
                     s_add_u32 s20, s20, %d
                     v_lshl_add_u32 v1, v0, 4, s21
                     v_lshl_add_u32 v2, v0, 2, s20
                     s_mov_b64 exec, 3
                     ds_write2_b32 v2, v7, v8 offset0:0 offset1:2
                     s_mov_b64 exec, -1''' % L_SS)
            if last and jv == 7:
                a('''s_lshl_b32 s22, s2, 10
                     s_add_u32 s22, s22, %d
                     s_lshl_b32 s23, s2, 4
                     s_add_u32 s23, s23, %d
                     s_lshl_b32 s20, s34, 2
                     v_mov_b32 v10, s20
                     v_mov_b32 v11, 0xffffff00
                     v_mov_b32 v12, 1
                     v_mov_b32 v13, 0''' % (WS_H1O, WS_H1S))
            if last and 7 - jv < max(Dp):
                a('s_waitcnt vmcnt(%d)' % (7 - jv))
            a('v_mfma_f32_16x16x32_bf16 %s, %s, %s, %s' % (vr(O, 4), vr(AS + 4 * (jv & 1), 4), vr(V + 4 * jv, 4), vr(O, 4)))
            if refill:
                load(buf, jv)

    assert max(Dp) <= 8 and 16 % len(Dp) == 0 and NP % 2 == 0
    assert NL <= NR - 2
    nld = 0
    for t in range(NP):
        if t >= NR:
            a('s_waitcnt lgkmcnt(0)')
        ktile(t if t < NR else t - NR + 2, False, t)
        lt = t - (NR - 1)
        if 0 <= lt < NL:
            assert nld >= max(Dp) and lt + 2 <= t
            for j in range(8):
                a('ds_read_b128 %s, v58 offset:%d' % (vr(RING + 32 * (lt + 2) + 4 * j, 4), lt * 8192 + j * 1024))
        upto = min(16, max(2 * (t + 1) if t < 4 else 0, -(-16 * (t + 1) // NP)))
        while nld < upto:
            load(nld >> 3, nld & 7)
            nld += 1
    assert nld == 16
    a('v_add_u32 v%d, %d, v%d' % (vSA, 128 * NP, vSA))
    a.label('L_kloop')
    a('''s_cmp_lg_u32 s17, 1
         s_cbranch_scc1 L_kbody
         s_mov_b32 s8, s12
         s_mov_b32 s9, s13
         s_lshl_b32 s16, s3, 13
         v_mov_b32 v2, v4
         v_mov_b32 v3, v5
         L_kbody:''')
    ktile(0, True, 0)
    ktile(1, True, 1)
    a('''v_add_u32 v%d, 256, v%d
         s_sub_u32 s17, s17, 1
         s_cmp_lg_u32 s17, 0
         s_cbranch_scc1 L_kloop''' % (vSA, vSA))
    stamp(5)
    a.label('L_vphase')
    a('v_subrev_u32 v%d, 0x1000, v%d' % (vSA, vSA))
    a('ds_read_u16_d16_hi v%d, v%d\nds_read_u16_d16_hi v%d, v%d offset:128' % (vS2, vSA, vS2 + 1, vSA))
    allred('v_max_f32', vM, 1, first=2)
    a('s_cmp_eq_u32 s34, 1\ns_cselect_b32 s17, 1, 15')
    def trigger():
        skip = lab('trg')
        a('''s_lshl_b32 s20, s3, 8
             s_or_b32 s20, s20, s17
             s_cmp_lg_u32 s20, %d
             s_cbranch_scc1 %s
             v_mov_b32 v1, 0
             v_mov_b32 v11, 1
             ds_write_b32 v1, v11 offset:%d
             s_waitcnt lgkmcnt(0)''' % (P['trig'][0], skip, L_TRIG))
        a.label(skip)
    a.label('L_vloop')
    if P['trig'][1] == 0:
        trigger()
    vtile(0, True, 2)
    if P['trig'][1] == 1:
        trigger()
    vtile(1, True, 3)
    a('''v_add_u32 v%d, 256, v%d
         s_sub_u32 s17, s17, 1
         s_cmp_lg_u32 s17, 0
         s_cbranch_scc1 L_vloop''' % (vSA, vSA))
    stamp(3)
    vtile(0, False, None)
    vtile(1, False, None, last=True)
    SS, SO = 64, 80
    a('''ds_write_b128 v1, v[24:27] offset:%d
         s_mov_b64 exec, 1
         ds_add_rtn_u32 v9, v10, v12 offset:%d
         s_mov_b64 exec, -1''' % (L_SO, L_SCNT))
    for w in range(4):
        a('ds_read_b128 %s, v13 offset:%d' % (vr(SS + 4 * w, 4), L_SS + 16 * w))
    for w in range(4):
        a('ds_read_b128 %s, v4 offset:%d' % (vr(SO + 4 * w, 4), L_SO + 1024 * w))
    stamp(4)
    a('''s_waitcnt lgkmcnt(8)
         v_readfirstlane_b32 s20, v9
         s_cmp_eq_u32 s34, 1
         s_cselect_b32 s20, 3, s20
         s_cmp_lg_u32 s20, 3
         s_cbranch_scc1 L_sdone
         s_waitcnt lgkmcnt(4)''')
    for h in range(2):
        a('v_max3_f32 v%d, v%d, v%d, v%d' % (40 + h, SS + h, SS + 4 + h, SS + 8 + h))
    for h in range(2):
        a('v_max_f32 v%d, v%d, v%d' % (40 + h, 40 + h, SS + 12 + h))
    for op in ('v_sub_f32 v{r}, v{r}, v{m}', 'v_mul_f32 v{r}, s19, v{r}', 'v_exp_f32 v{r}, v{r}'):
        for w in range(4):
            for h in range(2):
                a(op.format(r=SS + 4 * w + h, m=40 + h))
    a('s_waitcnt lgkmcnt(0)')
    for w in range(4):
        for r in range(4):
            op = 'v_mul_f32' if w == 0 else 'v_fmac_f32'
            a('%s v%d, v%d, v%d' % (op, 36 + r, SS + 4 * w + (r >> 1), SO + 4 * w + r))
    for r in range(4):
        a('v_and_or_b32 v%d, v%d, v11, s28' % (36 + r, 36 + r))
    a('buffer_store_dwordx4 v[36:39], v4, s[24:27], s22 offen %s' % ('' if 'noh1' in P['abl'] else ST))
    for w in range(4):
        for h in range(2):
            op = 'v_mul_f32' if w == 0 else 'v_fmac_f32'
            a('%s v%d, v%d, v%d' % (op, 42 + h, SS + 4 * w + h, SS + 4 * w + 2 + h))
    for r in range(4):
        a('v_and_or_b32 v%d, v%d, v11, s28' % (40 + r, 40 + r))
    a('''s_mov_b64 exec, 1
         buffer_store_dwordx4 v[40:43], v4, s[24:27], s23 offen %s
         s_mov_b64 exec, -1''' % ('' if 'noh1' in P['abl'] else ST))
    stamp(6)
    a('''s_cmp_eq_u32 s34, 1
         s_cbranch_scc1 L_reh1_ret''')
    a.label('L_sdone')
    stamp_flush()
    a('s_endpgm')
    a.fence()

    sW, sWS, sIN, sOUT, sDBG = 's[36:39]', 's[40:43]', 's[44:47]', 's[48:51]', 's[52:55]'
    RAW = 16
    XB, DR = RAW + 16, RAW + 36
    WL, WH, PB = 68, 88, 108
    vGQ, vN, vXVw, vXVr, vPW, vMK = 216, 217, 218, 219, 220, 221
    vSH, vSC = 224, 228
    vX, vGA = 232, 236
    AM = 240
    vA1, vA2, vA3, vA4, vA5 = 252, 253, 254, 255, 222
    a.label('L_service')
    sect[0] = 1
    if P['cpf']:
        a('''s_getpc_b64 s[86:87]
             L_pc:
             s_sub_u32 s88, s3, 4
             s_lshl_b32 s88, s88, 13
             v_lshl_add_u32 v4, v0, 7, s88
             v_min_u32 v4, L_codeend-%s_kernel, v4
             s_sub_u32 s86, s86, L_pc-%s_kernel
             s_subb_u32 s87, s87, 0
             v_mov_b32 v5, s87
             v_add_co_u32 v4, vcc, s86, v4
             v_addc_co_u32 v5, vcc, 0, v5, vcc
             global_load_dword v6, v[4:5], off''' % (NAME, NAME))
    a('''s_load_dwordx2 s[56:57], s[0:1], 0
         s_load_dwordx4 s[60:63], s[0:1], 24
         s_load_dwordx4 s[64:67], s[0:1], 48
         s_load_dwordx4 s[68:71], s[0:1], 64
         s_load_dwordx4 s[72:75], s[0:1], 80
         s_load_dwordx2 s[76:77], s[0:1], 96
         v_mov_b32 v1, 0
         v_and_b32 v2, 3, v0
         v_lshlrev_b32 v2, 2, v2
         ds_write_b32 v2, v1 offset:%d
         s_sub_u32 s33, s3, 4
         v_lshrrev_b32 v%d, 4, v0
         v_and_b32 v%d, 15, v0
         s_mov_b32 s39, 0x20000
         s_mov_b32 s42, %d
         s_mov_b32 s43, 0x20000
         s_mov_b32 s46, 1152
         s_mov_b32 s47, 0x20000
         s_mov_b32 s50, 1152
         s_mov_b32 s51, 0x20000
         s_mov_b32 s54, 256
         s_mov_b32 s55, 0x20000
         s_mov_b32 s81, 0
         s_mov_b32 s82, 0x05040100
         s_mov_b32 s83, 0x07060302
         s_mov_b32 s84, -1
         s_mov_b32 s85, 15
         ; j = g*8 + (s&3)*2 + (s>>3)
         s_lshr_b32 s80, s2, 4
         s_lshl_b32 s80, s80, 3
         s_lshr_b32 s86, s2, 5
         s_mul_i32 s86, s86, SKEW
         s_add_u32 s86, s86, s2
         s_and_b32 s86, s86, 3
         s_lshl_b32 s86, s86, 1
         ; s89 bit 2 = prologue role (0: wq slice, 1: w_mod slice)
         s_lshr_b32 s89, s2, 5
         s_mul_i32 s89, s89, SKEW
         s_xor_b32 s89, s89, s2
         s_add_u32 s80, s80, s86
         s_bfe_u32 s86, s2, 0x10003
         s_add_u32 s80, s80, s86
         s_waitcnt lgkmcnt(0)
         s_barrier     ; #1
         s_load_dword s35, s[76:77], %d
         s_mov_b32 s40, s76
         s_mov_b32 s41, s77
         s_mov_b32 s48, s72
         s_mov_b32 s49, s73
         s_mov_b32 s52, s74
         s_mov_b32 s53, s75
         s_bitcmp1_b32 s89, 2
         s_cselect_b32 s36, s70, s60
         s_cselect_b32 s37, s71, s61
         s_cselect_b32 s78, 1, 0
         s_cselect_b32 s44, s68, s56
         s_cselect_b32 s45, s69, s57
         s_mul_i32 s78, s78, 1280
         s_sub_u32 s78, 8192, s78
         s_mul_i32 s38, s78, PROSZ
         ; LDS addresses
         s_mul_i32 s86, s33, %d
         s_add_u32 s86, s86, %d
         v_lshl_add_u32 v%d, v0, 3, s86
         v_mul_u32_u24 v1, 72, v%d
         v_add_u32 v%d, s86, v1
         s_lshl_b32 s86, s33, 7
         v_lshl_add_u32 v%d, v%d, 3, s86
         s_bitcmp1_b32 s89, 2
         s_cbranch_scc0 L_gemv_go
         s_cmp_ge_u32 s80, 108
         s_cbranch_scc1 L_pro_done''' % (L_CNT, vGQ, vN, WS_SIZE, WS_EPOCH, XV_STRIDE, L_XV, vXVw, vGQ, vXVr, vPW, vN))
    a.out = [l.replace('PROSZ', '0' if 'noprow' in P['abl'] else '576') for l in a.out]
    a.label('L_gemv_go')
    stamp(17)

    def pace(on=True):
        if on and P['pace']:
            a('s_waitcnt vmcnt(%d)' % (P['pace'] - 1))
            if P['psleep']:
                a('s_sleep %d' % P['psleep'])

    def gemv32_loads(sj, paced=False):
        a('''s_mul_i32 s86, s33, 144
             v_mul_u32_u24 v1, 36, v%d
             v_add_u32 v1, s86, v1
             v_mul_lo_u32 v1, v1, s78
             v_lshl_add_u32 v1, v%d, 2, v1
             s_lshl_b32 s79, %s, 6''' % (vGQ, vN, sj))
        for i in range(36):
            pace(paced)
            if not paced and P['ppace'] and i >= P['ppace']:
                a('s_waitcnt vmcnt(%d)' % (P['ppace'] - 1))
            a('buffer_load_dword v%d, v1, %s, s79 offen %s' % ((WH if i & 1 else WL + 1) + (i >> 1), sW, WPOL))
            if i < 35:
                a('s_add_u32 s79, s79, s78')

    def gemv32_perm():
        for ip in range(18):
            a('v_perm_b32 v%d, v%d, v%d, s82' % (WL + ip, WH + ip, WL + 1 + ip))
            a('v_perm_b32 v%d, v%d, v%d, s83' % (WH + ip, WH + ip, WL + 1 + ip))

    def blk_perm(n):
        src, dst = PB + 16 * (n + 1), PB + 16 * n
        for cc in range(4):
            for ip in range(4):
                a('v_perm_b32 v%d, v%d, v%d, s%d' % (dst + 4 * cc + ip, src + 2 * (2 * ip + 1) + (cc >> 1), src + 2 * (2 * ip) + (cc >> 1), 82 + (cc & 1)))

    def gemv32_run():
        a('s_mov_b64 exec, -1')
        for z in range(4):
            a('ds_read2_b64 %s, v%d offset0:%d offset1:%d' % (vr(XB + 4 * z, 4), vXVr, 2 * z, 2 * z + 1))
        a('ds_read_b64 %s, v%d offset:64' % (vr(XB + 16, 2), vXVr))
        for z in range(4):
            a('s_waitcnt lgkmcnt(%d)' % (4 - z))
            for cc in range(2):
                d = vr(DR + 4 * cc, 4)
                a('v_mfma_f32_16x16x32_bf16 %s, %s, %s, %s' % (d, vr(XB + 4 * z, 4), vr((WL, WH)[cc] + 4 * z, 4), d if z else '0'))
        a('s_waitcnt lgkmcnt(0)')
        for cc in range(2):
            a('v_mfma_f32_16x16x16_bf16 %s, %s, %s, 0' % (vr(DR + 8 + 4 * cc, 4), vr(XB + 16, 2), vr((WL, WH)[cc] + 16, 2)))
        a('''v_add_f32 v2, v%d, v%d
             v_add_f32 v3, v%d, v%d
             s_mov_b64 exec, 0xffff
             ds_write_b64 v%d, v[2:3] offset:%d''' % (DR, DR + 8, DR + 4, DR + 12, vPW, L_PART))

    def unpack(dst, src, n):
        for i in range(n):
            a('v_lshlrev_b32 v%d, 16, v%d' % (dst + 2 * i, src[i]))
            a('v_and_b32 v%d, 0xffff0000, v%d' % (dst + 2 * i + 1, src[i]))

    def layernorm(X):
        a('''s_mov_b64 exec, -1
             v_mov_b32 v2, 0
             v_mov_b32 v3, 0
             s_mov_b64 exec, s[84:85]''')
        for i in range(4):
            a('v_add_f32 v%d, v%d, v%d' % (4 + i, X + i, X + 4 + i))
        for i in range(4):
            a('v_add_f32 v%d, v%d, v%d' % (8 + i, X + 8 + i, X + 12 + i))
        for i in range(4):
            a('v_add_f32 v%d, v%d, v%d' % (4 + i, 4 + i, 8 + i))
        a('''v_add_f32 v4, v4, v5
             v_add_f32 v6, v6, v7
             v_add_f32 v2, v4, v6
             s_mov_b64 exec, -1''')
        allred('v_add_f32', 2, 1)
        a('''v_mul_f32 v2, 0x3ae38e39, v2
             s_mov_b64 exec, s[84:85]''')
        for i in range(4):
            a('v_sub_f32 v%d, v%d, v2' % (4 + i, X + i))
        for i in range(4):
            a('v_mul_f32 v%d, v%d, v%d' % (4 + i, 4 + i, 4 + i))
        for k in range(1, 4):
            for i in range(4):
                a('v_sub_f32 v%d, v%d, v2' % (8 + i, X + 4 * k + i))
            for i in range(4):
                a('v_fmac_f32 v%d, v%d, v%d' % (4 + i, 8 + i, 8 + i))
        a('''v_add_f32 v4, v4, v5
             v_add_f32 v6, v6, v7
             v_add_f32 v3, v4, v6
             s_mov_b64 exec, -1''')
        rbf(2, 2)
        allred('v_add_f32', 3, 1)
        a('v_mul_f32 v3, 0x3ae38e39, v3')
        for i in range(4):
            a('v_sub_f32 v%d, v%d, v2' % (X + i, X + i))
        rbf(3, 3)
        a('v_add_f32 v3, 0x3727c5ac, v3')
        rbf(3, 3)
        a('v_sqrt_f32 v3, v3')
        for i in range(4):
            rbf(X + i, X + i)
        rbf(3, 3)
        a('v_rcp_f32 v3, v3')
        a('s_mov_b64 exec, s[84:85]')
        for i in range(4):
            a('v_mul_f32 v%d, v%d, v3' % (X + i, X + i))
        for i in range(4):
            rbf(X + i, X + i)

    def modulate(X):
        for i in range(4):
            a('v_mul_f32 v%d, v%d, v%d' % (X + i, X + i, vSC + i))
        for i in range(4):
            rbf(X + i, X + i)
        for i in range(4):
            a('v_add_f32 v%d, v%d, v%d' % (X + i, X + i, vSH + i))
        a('''v_cvt_pk_bf16_f32 v2, v%d, v%d
             v_cvt_pk_bf16_f32 v3, v%d, v%d
             ds_write_b64 v%d, v[2:3]''' % (X, X + 1, X + 2, X + 3, vXVw))

    def spin_tail(loop, done, sl=None):
        a('s_cbranch_vccz %s' % done)
        sl = P['sleep'] if sl is None else sl
        if sl:
            a('s_sleep %d' % sl)
        a('''s_add_u32 s81, s81, 1
             s_cmp_lt_u32 s81, %d
             s_cbranch_scc1 %s''' % (P['spin'], loop))
        a.label(done)

    def poll_tag(loads, tags):
        if 'nopoll' in P['abl']:
            return
        loop, done = lab('pt'), lab('ptd')
        a.label(loop)
        for l in loads:
            a(l + ' ' + LD)
        a('s_waitcnt vmcnt(0)')
        a('v_cmp_ne_u32 vcc, s35, v%d' % tags[0])
        for t in tags[1:]:
            a('v_cmp_ne_u32 s[86:87], s35, v%d' % t)
            a('s_or_b64 vcc, vcc, s[86:87]')
        spin_tail(loop, done, P['psl'])

    def poll_sent(loads, first, n):
        loop, done = lab('ps'), lab('psd')
        a.label(loop)
        for l in loads:
            a(l + ' ' + LD)
        nq = n // 4
        for q in range(nq):
            r = first + 4 * q
            a('s_waitcnt vmcnt(%d)' % (nq - 1 - q))
            for i in range(4):
                a('v_xor_b32 v%d, s28, v%d' % (r + i, r + i))
            if q == 0:
                a('v_or_b32 v2, v%d, v%d' % (r, r + 1))
                a('v_or_b32 v3, v%d, v%d' % (r + 2, r + 3))
            else:
                a('v_or3_b32 v2, v2, v%d, v%d' % (r, r + 1))
                a('v_or3_b32 v3, v3, v%d, v%d' % (r + 2, r + 3))
        a('v_or_b32 v2, v2, v3')
        a('v_and_b32 v2, 0xff, v2')
        a('v_cmp_ne_u32 vcc, 0, v2')
        spin_tail(loop, done)

    def tagq(dst, srcs):
        for i, r in enumerate(srcs):
            a('v_and_or_b32 v%d, v%d, v%d, s28' % (dst + i, r, vMK))

    def load_shift_scale(first):
        a('''s_mul_i32 s86, s33, 576
             s_add_u32 s86, s86, %d
             v_lshl_add_u32 v1, v0, 4, s86''' % (WS_MOD + first * 2304))
        poll_tag(['buffer_load_dwordx4 v[4:7], v1, %s, 0 offen' % sWS,
                  'buffer_load_dwordx4 v[8:11], v1, %s, 0 offen offset:2304' % sWS], [5, 7, 9, 11])
        unpack(vSH, [4, 6], 2)
        unpack(vSC, [8, 10], 2)
        for i in range(4):
            a('v_add_f32 v%d, 1.0, v%d' % (vSC + i, vSC + i))
        for i in range(4):
            rbf(vSC + i, vSC + i)

    XI = PB
    XF = PB + 16
    a('''s_mov_b64 exec, s[84:85]
         v_lshlrev_b32 v2, 3, v0''')
    for k in range(4):
        a('''s_add_u32 s86, s33, %d
             s_and_b32 s86, s86, 3
             s_mul_i32 s86, s86, 288
             buffer_load_dwordx2 %s, v2, %s, s86 offen nt''' % (k, vr(XI + 2 * k, 2), sIN))
    a('s_mov_b64 exec, -1')
    gemv32_loads('s80')
    if P.get('hold') == 2:
        a('s_waitcnt vmcnt(0)')
    if P.get('hold'):
        a('s_barrier')
    stamp(18)
    a('''s_waitcnt lgkmcnt(0)
         %s
         s_waitcnt vmcnt(36)''' % TAGGEN)
    stamp(19)
    unpack(XF, list(range(XI, XI + 8)), 8)
    a('''s_bitcmp1_b32 s89, 2
         s_cbranch_scc0 L_qrole''')
    a('s_mov_b64 exec, s[84:85]\ns_mov_b32 s86, 0x32a57060\ns_mov_b32 s87, 0x7f7fffff')
    T, R, E = 4, 8, XF + 4
    X = XF
    seq = ['v_mul_f32 v{t}, 0xbfb8aa3b, v{x}',
           'v_fma_f32 v{r}, -v{x}, s19, -v{t}',
           'v_exp_f32 v{t}, v{t}',
           'v_fma_f32 v{r}, -v{x}, s86, v{r}',
           'v_mul_f32 v{r}, 0x3f317218, v{r}',
           'v_med3_f32 v{r}, v{r}, -0.5, 0.5',
           'v_min_f32 v{e}, s87, v{t}',
           'v_fma_f32 v{t}, v{e}, v{r}, v{t}',
           'v_add_f32 v{t}, 1.0, v{t}',
           'v_rcp_f32 v{r}, v{t}',
           'v_mul_f32 v{e}, v{x}, v{r}',
           'v_fma_f32 v{f}, -v{e}, v{t}, v{x}',
           'v_fma_f32 v{e}, v{f}, v{r}, v{e}',
           'v_div_fixup_f32 v{t}, v{e}, v{t}, v{x}']
    for ins in seq:
        for i in range(4):
            a(ins.format(t=T + i, r=R + i, e=E + i, f=E + 4 + i, x=X + i))
    a('''v_cvt_pk_bf16_f32 v2, v4, v5
         v_cvt_pk_bf16_f32 v3, v6, v7
         ds_write_b64 v%d, v[2:3]
         s_mov_b64 exec, -1
         s_mov_b32 s88, %d
         s_waitcnt vmcnt(0)''' % (vXVw, WS_MOD))
    stamp(1)
    gemv32_perm()
    a('s_branch L_gemv_run')
    a.fence()
    a.label('L_qrole')
    layernorm(XF)
    a('''s_mov_b64 exec, -1
         s_mov_b32 s88, %d
         s_waitcnt vmcnt(0)''' % WS_Q)
    stamp(1)
    gemv32_perm()
    a('s_mov_b64 exec, s[84:85]')
    load_shift_scale(0)
    stamp(2)
    modulate(XF)
    a.label('L_gemv_run')
    gemv32_run()
    a('''s_mov_b64 exec, 1
         v_mov_b32 v1, 0
         v_mov_b32 v2, 1
         s_waitcnt lgkmcnt(0)
         ds_add_u32 v1, v2 offset:%d
         s_cmp_lg_u32 s33, 0
         s_cbranch_scc1 L_pro_done''' % L_CNT)
    a.label('L_svc_spin')
    a('''ds_read_b32 v2, v1 offset:%d
         s_add_u32 s81, s81, 1
         s_cmp_ge_u32 s81, %d
         s_cbranch_scc1 L_svc_ok
         s_waitcnt lgkmcnt(0)
         v_cmp_ne_u32 vcc, 4, v2
         s_cbranch_vccnz L_svc_spin''' % (L_CNT, P['spin']))
    a.label('L_svc_ok')
    a('''s_mov_b64 exec, 0xffff
         ds_read2_b64 v[4:7], v{PW} offset0:{o0} offset1:{o1}
         ds_read2_b64 v[8:11], v{PW} offset0:{o2} offset1:{o3}
         s_lshl_b32 s86, s80, 7
         s_add_u32 s88, s88, s86
         v_mov_b32 v3, s35
         s_waitcnt lgkmcnt(0)
         v_add_f32 v4, v4, v6
         v_add_f32 v5, v5, v7
         v_add_f32 v8, v8, v10
         v_add_f32 v9, v9, v11
         v_add_f32 v4, v4, v8
         v_add_f32 v5, v5, v9
         v_cvt_pk_bf16_f32 v2, v4, v5
         buffer_store_dwordx2 v[2:3], v{PW}, {ws}, s88 offen {st}'''.format(
        PW=vPW, o0=0, o1=16, o2=32, o3=48, ws=sWS, st='' if 'nopoll' in P['abl'] else ST).replace('v%d offset0' % vPW, 'v12 offset0').replace(
        's_mov_b64 exec, 0xffff', 's_mov_b64 exec, 0xffff\nv_add_u32 v12, %d, v%d' % (L_PART, vPW)))
    stamp(3)
    a('s_branch L_pro_done2')
    a.fence()
    a.label('L_pro_done')
    a('''s_bitcmp1_b32 s89, 2
         s_cbranch_scc0 L_pro_done2
         s_cmp_lt_u32 s80, 108
         s_cbranch_scc1 L_pro_done2
         s_waitcnt lgkmcnt(0)
         %s''' % TAGGEN)
    if P.get('hold'):
        a('s_barrier')
    a.label('L_pro_done2')
    a('''s_mov_b64 exec, -1
         s_cmp_lg_u32 s33, 1
         s_cbranch_scc1 L_q_done
         s_lshr_b32 s86, s2, 4
         s_lshl_b32 s86, s86, 10
         s_add_u32 s86, s86, %d
         v_lshl_add_u32 v1, v0, 4, s86''' % WS_Q)
    poll_tag(['buffer_load_dwordx4 v[4:7], v1, %s, 0 offen' % sWS], [5, 7])
    a('''v_lshlrev_b32 v1, 3, v0
         v_mov_b32 v5, v6
         ds_write_b64 v1, v[4:5] offset:%d''' % L_Q)
    stamp(4)
    a.label('L_q_done')
    a('''s_waitcnt lgkmcnt(0)
         s_barrier     ; #2''')
    if P['rehearse']:
        a('''s_cmp_lg_u32 s33, 3
             s_cbranch_scc1 L_reh1_skip
             s_mov_b32 s34, 1
             s_mov_b32 s8, s76
             s_mov_b32 s9, s77
             s_mov_b32 s10, 0
             s_mov_b32 s11, 0x20000
             s_mov_b32 s16, 0
             s_mov_b32 s24, s76
             s_mov_b32 s25, s77
             s_mov_b32 s26, 0
             s_mov_b32 s27, 0x20000
             v_mov_b32 v4, 0
             v_mov_b32 v2, 0
             v_mov_b32 v3, 0
             v_mov_b32 v14, 0x1000
             s_branch L_vphase''')
        a.fence()
    a.label('L_reh1_ret')
    a('s_waitcnt vmcnt(0) lgkmcnt(0)\ns_mov_b32 s34, 0')
    a.label('L_reh1_skip')
    stamp(5)
    if P.get('probe') and P['probe'][3] == 5:
        a('s_memrealtime s[98:99]\ns_waitcnt lgkmcnt(0)')
    a('''v_lshlrev_b32 v14, 4, v0
         v_mov_b32 v{MK}, 0xffffff00
         s_mov_b32 s44, s56
         s_mov_b32 s45, s57
         s_mul_i32 s86, s33, 192
         v_lshl_add_u32 v1, v{N}, 2, v{GQ}
         v_add_u32 v1, s86, v1
         v_lshlrev_b32 v{A4}, 2, v1
         v_lshlrev_b32 v2, 1, v1
         s_mul_i32 s86, s33, 12288
         s_add_u32 s86, s86, {h2}
         v_add_u32 v{A3}, s86, v14
         v_lshl_add_u32 v{A5}, v{N}, 8, s86
         v_mov_b32 v{A1}, 0
         v_mov_b32 v{A2}, 0
         s_mov_b32 s22, 4096
         s_mov_b32 s23, 8192'''.format(GQ=vGQ, N=vN, A4=vA4, A3=vA3, A1=vA1, A2=vA2, A5=vA5, h2=WS_H2, MK=vMK))
    for r in range(AM, AM + 12):
        a('v_mov_b32 v%d, 0' % r)
    a('''s_cmp_eq_u32 s33, 3
         s_cbranch_scc1 L_prep_join''')
    for i in range(3):
        a('buffer_load_ushort v%d, v2, %s, 0 offen offset:%d nt' % (vX + i, sIN, 128 * i))
    a('''v_lshrrev_b32 v1, 1, v1
         v_lshlrev_b32 v1, 3, v1
         v_add_u32 v1, %d, v1''' % (WS_MOD + 2 * 2304))
    poll_tag(['buffer_load_dwordx2 %s, v1, %s, 0 offen offset:%d' % (vr(4 + 2 * i, 2), sWS, 256 * i) for i in range(3)], [5, 7, 9])
    a('''s_waitcnt vmcnt(0)
         v_and_b32 v1, 1, v%d
         v_lshlrev_b32 v1, 4, v1''' % vGQ)
    for i in range(3):
        a('v_lshlrev_b32 v%d, 16, v%d' % (vX + i, vX + i))
        a('v_lshrrev_b32 v%d, v1, v%d' % (vGA + i, 4 + 2 * i))
        a('v_lshlrev_b32 v%d, 16, v%d' % (vGA + i, vGA + i))
    a.label('L_prep_join')
    a('s_mov_b64 exec, s[84:85]')
    load_shift_scale(3)
    a('s_mov_b64 exec, -1')
    stamp(6)
    SZO, SZF = (0 if 'nowo' in P['abl'] else 4096 * 1152), (0 if 'noffn' in P['abl'] else 576 * 9216)
    if P['rehearse']:
        a('''s_waitcnt vmcnt(0)
             s_mov_b32 s34, 1
             s_mov_b32 s42, 0
             s_mov_b32 s50, 0
             s_mov_b32 s28, 0
             s_mov_b32 s89, s35
             s_mov_b32 s35, 0
             s_mov_b32 s30, 0
             s_mov_b32 s31, 0
             s_mov_b32 s21, 0
             s_branch L_roles''')
        a.fence()
        a.label('L_reh2_ret')
        a('''s_waitcnt vmcnt(0) lgkmcnt(0)
             s_mov_b64 exec, -1
             s_mov_b32 s35, s89''')
    else:
        a.label('L_reh2_ret')
    a('''s_mov_b32 s34, 0
         s_mov_b32 s42, %d
         s_mov_b32 s50, 1152
         s_and_b32 s28, s35, 0xff
         s_mov_b32 s30, %d
         s_mov_b32 s31, %d
         v_mov_b32 v1, 0''' % (WS_SIZE, SZO, SZF))
    stamp(7)
    a('''s_cmp_lg_u32 s33, 0
         s_cbranch_scc1 L_wait_ticket
         L_wait_trig:
         s_sleep 4
         ds_read_b32 v2, v1 offset:{trig}
         s_waitcnt lgkmcnt(0)
         v_cmp_eq_u32 vcc, 0, v2
         s_cbranch_vccnz L_wait_trig
         s_mov_b64 exec, 1
         {atom}
         s_waitcnt vmcnt(0)
         v_and_b32 v2, 0xff, v2
         v_add_u32 v2, 1, v2
         ds_write_b32 v1, v2 offset:{tick}
         s_mov_b64 exec, -1
         s_branch L_have_ticket
         L_wait_ticket:
         s_sleep 2
         ds_read_b32 v2, v1 offset:{tick}
         s_waitcnt lgkmcnt(0)
         v_cmp_eq_u32 vcc, 0, v2
         s_cbranch_vccnz L_wait_ticket
         L_have_ticket:
         v_readfirstlane_b32 s21, v2
         s_sub_u32 s21, s21, 1'''.format(trig=L_TRIG, tick=L_TICK, atom='s_nop 0' if P.get('static_roles') else 'buffer_atomic_add v2, v1, %s, 0 offen sc0' % sDBG))
    if P.get('static_roles'):
        a('s_mov_b32 s21, s2')
    a.label('L_roles')
    stamp(8)
    NB = P['nboth']
    a('''s_and_b32 s29, s21, 15
         s_lshr_b32 s32, s21, 4
         s_sub_u32 s80, s21, {d}
         s_cmp_lt_u32 s21, 144
         s_cselect_b32 s80, 0xff, s80
         s_cmp_lt_u32 s21, {nb}
         s_cselect_b32 s80, s21, s80
         s_lshl_b32 s26, s21, 8
         s_add_u32 s26, s26, {h2}
         s_mul_i32 s27, s80, 2304
         s_add_u32 s27, s27, {h3}
         s_cmp_ge_u32 s21, 144
         s_cbranch_scc1 L_no_wo
         s_mov_b32 s36, s62
         s_mov_b32 s37, s63
         s_mov_b32 s38, s30
         v_lshrrev_b32 v1, 1, v{GQ}
         v_lshlrev_b32 v1, 7, v1
         v_and_b32 v2, 1, v{GQ}
         s_lshl_b32 s86, s29, 8
         s_lshl_b32 s87, s33, 1
         s_add_u32 s86, s86, s87
         v_add3_u32 v1, v1, v2, s86
         v_mul_u32_u24 v1, 1152, v1
         v_lshl_add_u32 v1, v{N}, 3, v1
         s_lshl_b32 s79, s32, 7'''.format(GQ=vGQ, N=vN, d=144 - NB, nb=NB, h2=WS_H2, h3=WS_H3))
    for i in range(16):
        pace()
        a('buffer_load_dwordx2 %s, v1, %s, s79 offen %s' % (vr(PB + 16 + 2 * i, 2), sW, WPOL))
        if i < 15:
            a('s_add_u32 s79, s79, 9216')
    a('''s_lshl_b32 s86, s29, 14
         s_lshl_b32 s87, s33, 8
         s_add_u32 s86, s86, s87
         s_add_u32 s86, s86, {h1o}
         v_lshlrev_b32 v1, 12, v{GQ}
         v_lshl_add_u32 v1, v{N}, 4, v1
         v_add_u32 v{A1}, s86, v1
         v_lshl_add_u32 v1, v{GQ}, 2, v{N}
         v_and_b32 v1, 15, v1
         s_lshl_b32 s86, s29, 8
         s_add_u32 s86, s86, {h1s}
         v_lshl_add_u32 v{A2}, v1, 4, s86'''.format(GQ=vGQ, N=vN, A1=vA1, A2=vA2, h1o=WS_H1O, h1s=WS_H1S))
    a.label('L_no_wo')
    a('''s_cmp_ge_u32 s80, 144
         s_cbranch_scc1 L_no_ffn
         s_mov_b32 s36, s64
         s_mov_b32 s37, s65
         s_mov_b32 s38, s31
         s_mov_b32 s78, 9216''')
    gemv32_loads('s80', True)
    a('''s_cmp_eq_u32 s33, 3
         s_cbranch_scc1 L_w3_prep
         s_mov_b32 s36, s66
         s_mov_b32 s37, s67
         s_lshl_b32 s86, s80, 5
         v_lshl_add_u32 v1, v{GQ}, 3, s86
         v_mul_u32_u24 v1, 1152, v1
         v_lshl_add_u32 v1, v{N}, 3, v1
         s_mul_i32 s79, s33, 384'''.format(GQ=vGQ, N=vN))
    for jj in range(8):
        for blk in range(3):
            pace()
            a('buffer_load_dwordx2 %s, v1, %s, s79 offen offset:%d %s' % (vr(PB + 48 + 16 * blk + 2 * jj, 2), sW, blk * 128, WPOL))
        if jj < 7:
            a('s_add_u32 s79, s79, 1152')
    a('s_branch L_ffn_join')
    a.fence()
    a.label('L_w3_prep')
    a('''s_lshl_b32 s86, s80, 2
         v_add_u32 v1, s86, v{GQ}
         v_lshlrev_b32 v{A4}, 2, v1
         v_mul_u32_u24 v2, 2304, v0
         s_lshl_b32 s86, s80, 4
         s_add_u32 s86, s86, {h3}
         v_add_u32 v{A3}, s86, v2
         s_mov_b32 s22, {k1}
         s_mov_b32 s23, {k2}
         v_lshrrev_b32 v1, 1, v1
         v_lshlrev_b32 v1, 3, v1
         v_add_u32 v1, {gb}, v1'''.format(GQ=vGQ, A4=vA4, A3=vA3, h3=WS_H3, k1=48 * 2304, k2=96 * 2304, gb=WS_MOD + 5 * 2304))
    poll_tag(['buffer_load_dwordx2 v[4:5], v1, %s, 0 offen' % sWS], [5])
    a('''v_and_b32 v1, 1, v{GQ}
         v_lshlrev_b32 v1, 4, v1
         v_lshrrev_b32 v{GA}, v1, v4
         v_lshlrev_b32 v{GA}, 16, v{GA}'''.format(GQ=vGQ, GA=vGA))
    a.label('L_ffn_join')
    a('s_waitcnt vmcnt(24)')
    gemv32_perm()
    blk_perm(0)
    blk_perm(1)
    a('s_waitcnt vmcnt(0)')
    for n in range(2, 5):
        blk_perm(n)
    a('s_branch L_loaded')
    a.fence()
    a.label('L_no_ffn')
    a('''s_cmp_ge_u32 s21, 144
         s_cbranch_scc1 L_exit
         s_waitcnt vmcnt(0)''')
    blk_perm(0)
    blk_perm(1)
    a.label('L_loaded')
    stamp(9)
    if 'notail' in P['abl']:
        a('s_branch L_exit')

    def tbarrier():
        skip = lab('nb')
        a('''s_waitcnt lgkmcnt(0)
             s_cmp_eq_u32 s34, 1
             s_cbranch_scc1 %s
             s_barrier''' % skip)
        a.label(skip)

    def gate(load, maxmiss):
        if maxmiss >= 16:
            return
        loop, done = lab('gt'), lab('gtd')
        a('s_mov_b64 exec, 0xffff')
        a.label(loop)
        a(load + ' ' + LD)
        a('''s_waitcnt vmcnt(0)
             v_xor_b32 v4, s28, v4
             v_xor_b32 v5, s28, v5
             v_or_b32 v4, v4, v5
             v_and_b32 v4, 0xff, v4
             v_cmp_ne_u32 vcc, 0, v4
             s_bcnt1_i32_b64 s86, vcc
             s_cmp_le_u32 s86, %d
             s_cbranch_scc1 %s
             s_sleep %d
             s_add_u32 s81, s81, 1
             s_cmp_lt_u32 s81, %d
             s_cbranch_scc1 %s''' % (maxmiss, done, P['gsleep'], P['spin'], loop))
        a.label(done)
        a('s_mov_b64 exec, -1')

    a('''s_cmp_ge_u32 s21, 144
         s_cbranch_scc1 L_t2''')
    gate('buffer_load_dwordx2 v[4:5], v%d, %s, 0 offen' % (vA2, sWS), P['gate'][0])
    poll_sent(['buffer_load_dwordx4 %s, v%d, %s, 0 offen' % (vr(RAW, 4), vA2, sWS)] +
              ['buffer_load_dwordx4 %s, v%d, %s, 0 offen offset:%d' % (vr(RAW + 4 + 4 * k, 4), vA1, sWS, 1024 * k) for k in range(4)], RAW, 20)
    stamp(10)
    a('v_mov_b32 v4, v%d\nv_mov_b32 v5, v%d' % (RAW, RAW + 1))
    rowred('v_max_f32', [4, 5])
    for h in range(2):
        a('v_sub_f32 v%d, v%d, v%d' % (4 + h, RAW + h, 4 + h))
    for h in range(2):
        a('v_mul_f32 v%d, s19, v%d' % (4 + h, 4 + h))
    for h in range(2):
        a('v_exp_f32 v%d, v%d' % (4 + h, 4 + h))
    for h in range(2):
        a('v_mul_f32 v%d, v%d, v%d' % (6 + h, 4 + h, RAW + 2 + h))
    for k in range(4):
        for r in range(4):
            op = 'v_mul_f32_dpp' if k == 0 else 'v_fmac_f32_dpp'
            a('%s v%d, v%d, v%d row_newbcast:%d %s' % (op, 8 + r, 4 + (r >> 1), RAW + 4 + 4 * k + r, k, FULL))
    rowred('v_add_f32', [6, 7])
    for h in range(2):
        a('v_rcp_f32 v%d, v%d' % (6 + h, 6 + h))
    for r in range(4):
        a('v_mul_f32 v%d, v%d, v%d' % (8 + r, 8 + r, 6 + (r >> 1)))
    quadred([8])
    a('''s_mul_i32 s86, s33, {xs}
         s_add_u32 s86, s86, {xv}
         v_cvt_pk_bf16_f32 v8, v8, v8
         v_lshl_add_u32 v1, v0, 1, s86
         v_lshl_add_u32 v2, v{GQ}, 5, s86
         ds_write_b16 v1, v8
         ds_read_b128 {a0}, v2
         ds_read_b128 {a1}, v2 offset:16
         s_lshl_b32 s86, s33, 8
         v_add_u32 v1, s86, v14
         s_waitcnt lgkmcnt(1)'''.format(xs=XV_STRIDE, xv=L_XV, GQ=vGQ, a0=vr(XB, 4), a1=vr(XB + 4, 4)))
    for cc in range(4):
        a('v_mfma_f32_16x16x32_bf16 %s, %s, %s, 0' % (vr(DR + 4 * cc, 4), vr(XB, 4), vr(PB + 4 * cc, 4)))
    a('s_waitcnt lgkmcnt(0)')
    for cc in range(4):
        d = vr(DR + 4 * cc, 4)
        a('v_mfma_f32_16x16x32_bf16 %s, %s, %s, %s' % (d, vr(XB + 4, 4), vr(PB + 16 + 4 * cc, 4), d))
    for cc in range(1, 4):
        a('v_mov_b32 v%d, v%d' % (DR + cc, DR + 4 * cc))
    a('''s_mov_b64 exec, 0xffff
         ds_write_b128 v1, %s offset:%d''' % (vr(DR, 4), L_PART2))
    tbarrier()
    a('''s_cmp_lg_u32 s33, 3
         s_cbranch_scc1 L_t2a''')
    for w in range(4):
        a('ds_read_b128 %s, v14 offset:%d' % (vr(RAW + 4 * w, 4), L_PART2 + 256 * w))
    a('s_waitcnt lgkmcnt(2)')
    for r in range(4):
        a('v_add_f32 v%d, v%d, v%d' % (4 + r, RAW + r, RAW + 4 + r))
    a('s_waitcnt lgkmcnt(0)')
    for r in range(4):
        a('v_add_f32 v%d, v%d, v%d' % (8 + r, RAW + 8 + r, RAW + 12 + r))
    for r in range(4):
        a('v_add_f32 v%d, v%d, v%d' % (4 + r, 4 + r, 8 + r))
    tagq(4, range(4, 8))
    a('buffer_store_dwordx4 v[4:7], v14, %s, s26 offen %s' % (sWS, ST))
    stamp(11)
    a.label('L_t2a')
    a('s_mov_b64 exec, -1')
    a.label('L_t2')
    a('''s_cmp_ge_u32 s80, 144
         s_cbranch_scc1 L_exit
         s_cmp_eq_u32 s33, 3
         s_cbranch_scc1 L_t2b''')
    gate('buffer_load_dwordx2 v[4:5], v%d, %s, 0 offen' % (vA5, sWS), P['gate'][1])
    poll_sent(['buffer_load_dwordx4 %s, v%d, %s, %s offen offset:%d' % (vr(RAW + 16 * i + 4 * k, 4), vA3, sWS, ('0', 's22', 's23')[i], 1024 * k)
               for i in range(3) for k in range(4)], RAW, 48)
    stamp(12)
    for i in range(3):
        for r in range(4):
            a('v_add_f32 v%d, v%d, v%d' % (RAW + 16 * i + r, RAW + 16 * i + r, RAW + 16 * i + 4 + r))
        for r in range(4):
            a('v_add_f32 v%d, v%d, v%d' % (RAW + 16 * i + 8 + r, RAW + 16 * i + 8 + r, RAW + 16 * i + 12 + r))
        for r in range(4):
            a('v_add_f32 v%d, v%d, v%d' % (RAW + 16 * i + r, RAW + 16 * i + r, RAW + 16 * i + 8 + r))
    quadred([RAW, RAW + 16, RAW + 32])
    for i in range(3):
        rbf(4 + i, RAW + 16 * i)
    for i in range(3):
        a('v_mul_f32 v%d, v%d, v%d' % (4 + i, 4 + i, vGA + i))
    for i in range(3):
        rbf(4 + i, 4 + i)
    for i in range(3):
        a('v_add_f32 v%d, v%d, v%d' % (4 + i, 4 + i, vX + i))
    for i in range(3):
        rbf(4 + i, 4 + i)
    for i in range(3):
        a('ds_write_b32 v%d, v%d offset:%d' % (vA4, 4 + i, L_X2 + 256 * i))
    a.label('L_t2b')
    tbarrier()
    a('s_mov_b64 exec, s[84:85]')
    for k in range(4):
        a('''s_add_u32 s86, s33, %d
             s_and_b32 s86, s86, 3
             s_mul_i32 s86, s86, 576
             v_add_u32 v1, s86, v14
             ds_read_b128 %s, v1 offset:%d''' % (k, vr(RAW + 4 * k, 4), L_X2))
    a('s_waitcnt lgkmcnt(0)')
    layernorm(RAW)
    modulate(RAW)
    gemv32_run()
    tbarrier()
    stamp(13)
    a('''s_mov_b64 exec, -1
         s_cmp_eq_u32 s33, 3
         s_cbranch_scc1 L_t3
         v_lshlrev_b32 v1, 5, v%d''' % vGQ)
    for w in range(4):
        for hh in range(2):
            a('ds_read_b128 %s, v1 offset:%d' % (vr(RAW + 8 * w + 4 * hh, 4), L_PART + 128 * w + 16 * hh))
    a('s_mul_i32 s86, s33, 768\ns_add_u32 s86, s86, s27')
    a('s_waitcnt lgkmcnt(4)')
    for r in range(8):
        a('v_add_f32 v%d, v%d, v%d' % (RAW + r, RAW + r, RAW + 8 + r))
    a('s_waitcnt lgkmcnt(0)')
    for r in range(8):
        a('v_add_f32 v%d, v%d, v%d' % (RAW + 16 + r, RAW + 16 + r, RAW + 24 + r))
    for r in range(8):
        a('v_add_f32 v%d, v%d, v%d' % (RAW + r, RAW + r, RAW + 16 + r))
    for r in range(8):
        a('v_maximum3_f32 v%d, v%d, 0, 0' % (RAW + r, RAW + r))
    for t in range(4):
        a('v_cvt_pk_bf16_f32 v%d, v%d, v%d' % (4 + t, RAW + 2 * t, RAW + 2 * t + 1))
    for blk in range(3):
        for t in range(4):
            a('v_mov_b32_dpp v%d, v%d quad_perm:[0,1,2,3] row_mask:0xf bank_mask:0x%x' % (AM + 4 * blk + t, 4 + t, 1 << blk))
    for blk in range(3):
        for cc in range(4):
            d = vr(DR + 4 * cc, 4)
            a('v_mfma_f32_16x16x32_bf16 %s, %s, %s, %s' % (d, vr(AM + 4 * blk, 4), vr(PB + 32 + (blk * 4 + cc) * 4, 4), d if blk else '0'))
    tagq(4, [DR + 4 * cc for cc in range(4)])
    a('''s_mov_b32 exec_hi, 0xffff
         buffer_store_dwordx4 v[4:7], v14, %s, s86 offen %s''' % (sWS, ST))
    stamp(14)
    a('s_branch L_exit')
    a.fence()
    a.label('L_t3')
    a('ds_read_b32 v12, v%d offset:%d' % (vA4, L_X2))
    for r in range(12):
        a('v_mov_b32 v%d, 0' % (RAW + r))
    a('s_mov_b32 exec_hi, 0xffff')
    poll_sent(['buffer_load_dwordx4 %s, v%d, %s, %s offen' % (vr(RAW + 4 * k, 4), vA3, sWS, ('0', 's22', 's23')[k]) for k in range(3)], RAW, 12)
    stamp(15)
    a('s_mov_b64 exec, -1')
    for r in range(4):
        a('v_add_f32 v%d, v%d, v%d' % (RAW + r, RAW + r, RAW + 4 + r))
    for r in range(4):
        a('v_add_f32 v%d, v%d, v%d' % (RAW + r, RAW + r, RAW + 8 + r))
    quadred([RAW])
    rowred('v_add_f32', [RAW])
    rbf(4, RAW)
    a('v_mul_f32 v4, v4, v%d' % vGA)
    rbf(4, 4)
    a('''s_waitcnt lgkmcnt(0)
         v_add_f32 v4, v4, v12
         v_cvt_pk_bf16_f32 v4, v4, v4
         v_lshrrev_b32 v1, 1, v%d
         s_mov_b32 exec_lo, 0x00010001
         s_mov_b32 exec_hi, 0x00010001
         buffer_store_short v4, v1, %s, 0 offen
         s_cmp_lg_u32 s80, 0
         s_cbranch_scc1 L_noep
         s_mov_b64 exec, 1
         v_mov_b32 v5, s35
         buffer_store_dword v5, v14, %s, 0 offen offset:%d
         L_noep:''' % (vA4, sOUT, sWS, WS_EPOCH))
    stamp(16)
    a.label('L_exit')
    a('''s_cmp_eq_u32 s34, 1
         s_cbranch_scc1 L_reh2_ret''')
    if P.get('probe'):
        b0, C, K, which = P['probe']
        if which == 16:
            a('s_memrealtime s[98:99]\ns_waitcnt lgkmcnt(0)')
        a('''s_cmp_lg_u32 s2, %d
             s_cbranch_scc1 L_end
             s_cmp_lg_u32 s33, 3
             s_cbranch_scc1 L_end
             s_sub_u32 s98, s98, s96
             s_mul_i32 s98, s98, %d
             s_add_u32 s98, s98, %d
             s_min_u32 s98, s98, 100000
             L_probe:
             s_sleep 1
             s_memrealtime s[100:101]
             s_waitcnt lgkmcnt(0)
             s_sub_u32 s100, s100, s96
             s_cmp_lt_u32 s100, s98
             s_cbranch_scc1 L_probe''' % (b0, K, C * 100))
    stamp_flush()
    a.label('L_end')
    a('s_endpgm')
    a.label('L_codeend')
    a.raw('.fill 64, 4, 0xbf800000')
    a.raw('''.section .rodata,"a"
.p2align 6
.amdhsa_kernel %s_kernel
  .amdhsa_next_free_vgpr 256
  .amdhsa_next_free_sgpr 102
  .amdhsa_accum_offset 256
  .amdhsa_group_segment_fixed_size 0
  .amdhsa_kernarg_size 104
  .amdhsa_user_sgpr_count 2
  .amdhsa_user_sgpr_kernarg_segment_ptr 1
  .amdhsa_system_sgpr_workgroup_id_x 1
  .amdhsa_float_denorm_mode_32 3
.end_amdhsa_kernel''' % NAME)
    return a.text().replace('SKEW', str(P['skew']))


if __name__ == '__main__':
    out = sys.argv[1]
    kw = eval('dict(%s)' % (sys.argv[2] if len(sys.argv) > 2 else ''))
    open(out, 'w').write(gen(**kw))
```

```python
import sys
from asmlib import Asm

NAME = 'adaLN_cond__gqa_block_cached__dense_activation_relu__decode'

DEFAULTS = dict(
    D=[5],
    stamps=False,
    rehearse=False,
    ld='sc1', st='sc1', wpol='nt',
    spin=1 << 17,
    sleep=1, psl=12, gsleep=3,
    prio=1,
    npre=6, nl=4,
    trig=0,
    gate=(6, 6),
    ppace=8, apace=0, qdelay=0, pace_o=0, pace_1=0, pace_2=0,
    ffn0=0, wo0=9,
    Dhi=6, th=2, bias=0, period=8, xcd=True, ckpt=None, gam=8, fin=20, static=False, xshard=False, touch=None, w2after=18, earlyA=False, xb=(1, -1, 1, 0, 2, 1, 1, 0), lead=(4, 0), trigf=0, warm3=None, d3=25,
    abl=(),
)

WS_EPOCH = 0x0
WS_H1S = 0x9000
WS_H2 = 0xA000
WS_MOD = 0x1000
WS_Q = 0x14000
HS = 0x4000
WS_H1O = 0x20000
WS_H3 = 0x60000
WS_TK = 0x90000
WS_PG = 0xA0000
WS_SIZE = 0x100000
WS_STAMP = 0x100000
L_CNT = 0x0
L_TRIG = 0x4
L_TICK = 0x8
L_SCNT = 0xc
L_BOOST = 0x18
L_ST = 0x20
L_ZERO = 0x40
L_Q = 0x100
L_XV = 0x300
XV_STRIDE = 320
L_HV = 0x800
L_PART = 0xA00
L_X2 = 0xE00
L_SO = 0x1800
L_SS = 0x2800
L_SC = 0x3000
L_PF = 0x7000

FULL = 'row_mask:0xf bank_mask:0xf'
TAGGEN = '''s_add_u32 s35, s35, 1
         s_and_b32 s28, s35, 0xff
         s_and_b32 s30, s35, 15'''


def vr(a, n):
    return 'v[%d:%d]' % (a, a + n - 1) if n > 1 else 'v%d' % a


def gen(**kw):
    P = dict(DEFAULTS)
    for k in kw:
        assert k in P or k in ('probe',), k
    P.update(kw)
    a = Asm()
    LD, ST, WPOL = P['ld'], P['st'], P['wpol']
    ABL = P['abl']
    uid = [0]

    def lab(s):
        uid[0] += 1
        return 'L_%s_%d' % (s, uid[0])

    vST = 15

    def stamp(i):
        if P['stamps']:
            a('s_memrealtime s[90:91]\ns_waitcnt lgkmcnt(0)\nv_writelane_b32 v%d, s90, %d' % (vST, i))

    def stamp_flush():
        if P['stamps']:
            a('''s_mov_b64 exec, -1
                 s_load_dwordx2 s[92:93], s[0:1], 96
                 s_lshl_b32 s90, s2, 11
                 s_lshl_b32 s91, s3, 8
                 s_add_u32 s90, s90, s91
                 s_add_u32 s90, s90, %d
                 v_lshlrev_b32 v1, 2, v0
                 s_waitcnt lgkmcnt(0)
                 s_mov_b32 s94, 0x200000
                 s_mov_b32 s95, 0x20000
                 buffer_store_dword v%d, v1, s[92:95], s90 offen''' % (WS_STAMP, vST))

    PATS = ('quad_perm:[1,0,3,2]', 'quad_perm:[2,3,0,1]', 'row_ror:4', 'row_ror:8')

    def rowred(op, xs, first=0):
        for pat in PATS[first:]:
            for x in xs:
                a('%s_dpp v%d, v%d, v%d %s %s' % (op, x, x, x, pat, FULL))

    def allred(op, xs, ts, first=0):
        rowred(op, xs, first)
        for sw in ('16', '32'):
            for x, t in zip(xs, ts):
                a('v_mov_b32 v%d, v%d' % (t, x))
            for x, t in zip(xs, ts):
                a('v_permlane%s_swap_b32 v%d, v%d' % (sw, x, t))
            for x, t in zip(xs, ts):
                a('%s v%d, v%d, v%d' % (op, x, x, t))

    def quadred(qs):
        for q in qs:
            a('v_permlane32_swap_b32 v%d, v%d' % (q, q + 2))
            a('v_permlane32_swap_b32 v%d, v%d' % (q + 1, q + 3))
        for q in qs:
            a('v_add_f32 v%d, v%d, v%d' % (q, q, q + 2))
            a('v_add_f32 v%d, v%d, v%d' % (q + 1, q + 1, q + 3))
        for q in qs:
            a('v_permlane16_swap_b32 v%d, v%d' % (q, q + 1))
        for q in qs:
            a('v_add_f32 v%d, v%d, v%d' % (q, q, q + 1))

    def rbf(d, s):
        a('v_cvt_pk_bf16_f32 v%d, 0, v%d' % (d, s))

    def each(n, fmt, **regs):
        for i in range(n):
            a(fmt.format(**{k: v + i for k, v in regs.items()}))

    def blk_perm(base, n, rows=8):
        src, dst = base + 16 * (n + 1), base + 16 * n
        h = rows // 2
        for cc in range(4):
            for ip in range(h):
                a('v_perm_b32 v%d, v%d, v%d, s%d' % (dst + h * cc + ip, src + 2 * (2 * ip + 1) + (cc >> 1),
                                                    src + 2 * (2 * ip) + (cc >> 1), 82 + (cc & 1)))

    def pace(i, w):
        if w and i >= w:
            a('s_waitcnt vmcnt(%d)' % (w - 1))

    def tbarrier():
        skip = lab('nb')
        a('''s_waitcnt lgkmcnt(0)
             s_cmp_eq_u32 s34, 1
             s_cbranch_scc1 %s
             s_barrier''' % skip)
        a.label(skip)

    MF32, MF16 = 'v_mfma_f32_16x16x32_bf16', 'v_mfma_f32_16x16x16_bf16'
    assert not P['rehearse']
    F0, O0 = P['ffn0'], P['wo0']
    assert F0 + 9 <= O0 or O0 + 18 <= F0

    a.raw('; @launch grid=(256,1,1) block=(512,1,1) lds=%d' % 0x28000)
    a.raw('.amdgcn_target "amdgcn-amd-amdhsa--gfx950"\n.text\n.globl %s_kernel\n.p2align 8\n.type %s_kernel,@function\n%s_kernel:' % (NAME, NAME, NAME))
    a('''s_cmp_ge_u32 s2, 256
         s_cbranch_scc1 L_end
         s_load_dwordx4 s[4:7], s[0:1], 8
         v_lshrrev_b32 v1, 6, v0
         v_and_b32 v0, 63, v0
         v_readfirstlane_b32 s3, v1
         s_mov_b32 s19, 0x3fb8aa3b
         s_mov_b32 s34, 0''')
    if P['stamps']:
        a('v_mov_b32 v%d, 0' % vST)
    stamp(0)
    a('''s_cmp_ge_u32 s3, 4
         s_cbranch_scc1 L_service''')

    vO0, vME, vM, vL, vS, vP, vW, vSA = 2, 6, 7, 8, 9, 10, 12, 14
    BQ, O, AS, DD, TT, RING = 16, 24, 28, 36, 52, 64
    vS2 = 56
    NR, NL = P['npre'], P['nl']
    NP = NR + NL
    a('''; ---- stream wave: K lane map row=(l>>2)&3, chunk=(l>>4)*4+(l&3); V lane map linear
         v_bfe_u32 v2, v0, 2, 2
         v_lshlrev_b32 v2, 8, v2
         v_lshrrev_b32 v3, 4, v0
         v_lshlrev_b32 v3, 6, v3
         v_and_b32 v4, 3, v0
         v_lshlrev_b32 v4, 4, v4
         v_add3_u32 v2, v2, v3, v4
         v_add_u32 v3, 0x1000, v2
         s_lshl_b32 s17, s2, 20
         s_lshl_b32 s16, s3, 13
         s_mov_b32 s10, 0x100000
         s_mov_b32 s11, 0x20000
         s_waitcnt lgkmcnt(0)
         s_add_u32 s8, s4, s17
         s_addc_u32 s9, s5, 0''')
    if P['prio']:
        a('s_setprio %d' % P['prio'])
    Dp = P['D']
    ldn = [0]

    def load(buf, j, wait=True, var=False):
        r = RING + 32 * buf + 4 * j
        if buf >= NR and j % 4 == 0:
            a('s_add_u32 m0, s21, %d' % ((buf - NR) * 8192 + (j >> 2) * 4096))
        if var:
            skip = lab('w')
            a('s_waitcnt vmcnt(%d)\ns_cbranch_vccnz %s' % (P['Dhi'] - 1, skip))
            a.raw('    s_waitcnt vmcnt(%d)' % (Dp[ldn[0] % len(Dp)] - 1))
            a.label(skip)
        elif wait:
            a('s_waitcnt vmcnt(%d)' % (Dp[ldn[0] % len(Dp)] - 1))
        ldn[0] += 1
        if buf >= NR:
            a('buffer_load_dwordx4 v%d, s[8:11], s16 offen offset:%d nt lds' % (vO0 + (j >> 2), (j & 3) * 1024))
        else:
            a('buffer_load_dwordx4 %s, v%d, s[8:11], s16 offen offset:%d nt' % (vr(r, 4), vO0 + (j >> 2), (j & 3) * 1024))
        if j == 7:
            a('s_add_u32 s16, s16, 0x8000')

    n = 0
    for buf in range(NP):
        for j in range(8):
            load(buf, j, wait=n >= min(Dp))
            n += 1
            if n == min(Dp):
                a('''s_barrier
                     s_load_dwordx2 s[24:25], s[0:1], 96
                     s_load_dwordx2 s[36:37], s[0:1], 56
                     s_add_u32 s12, s6, s17
                     s_addc_u32 s13, s7, 0
                     s_mov_b32 s18, 0x3db504f3
                     v_lshlrev_b32 v4, 4, v0
                     v_add_u32 v5, 0x1000, v4
                     v_and_b32 v1, 1, v0
                     v_cmp_eq_u32 vcc, 1, v1
                     v_mov_b32 v6, 0xffff
                     v_mov_b32 v11, 0xffff0000
                     v_cndmask_b32 v6, v6, v11, vcc
                     v_mov_b32 v7, 0xff800000
                     v_mov_b32 v8, 0''')
                each(12, 'v_mov_b32 v{r}, 0', r=O)
                a('''v_lshlrev_b32 v1, 8, v1
                     v_lshrrev_b32 v11, 2, v0
                     v_lshl_add_u32 v13, v11, 4, v1
                     s_lshl_b32 s20, s3, 12
                     s_add_u32 s20, s20, %d
                     v_lshl_add_u32 v14, v0, 1, s20
                     s_mul_i32 s21, s3, %d
                     s_add_u32 s21, s21, %d
                     v_add_u32 v58, s21, v4
                     v_mov_b32 v56, 0
                     v_mov_b32 v57, 0
                     s_mov_b32 s26, %d
                     s_mov_b32 s27, 0x20000
                     s_mov_b32 s38, %d
                     s_mov_b32 s39, 0x20000
                     s_mov_b32 s82, 0x05040100
                     s_mov_b32 s83, 0x07060302
                     s_waitcnt lgkmcnt(0)
                     s_load_dword s28, s[24:25], %d''' % (L_SC, 8192 * NL, L_PF, WS_SIZE, 0 if 'noffn' in ABL else 4608 * 1152, WS_EPOCH))
    stamp(1)
    a('''s_barrier     ; #2 (q ready)
         ds_read_b128 v[16:19], v13 offset:%d
         v_and_b32 v1, 2, v0
         v_cmp_eq_u32 vcc, 0, v1
         s_mov_b32 s17, %d
         s_waitcnt lgkmcnt(0)
         s_add_u32 s28, s28, 1
         s_and_b32 s28, s28, 0xff''' % (L_Q, (32 - NP) // 2))
    each(4, 'v_cndmask_b32 v{d}, v{s}, 0, vcc', d=BQ + 4, s=BQ)
    each(4, 'v_cndmask_b32 v{s}, 0, v{s}, vcc', s=BQ)
    stamp(2)

    def control():
        a('''v_add_u32 v63, v61, v62
             v_cmp_lt_i32 vcc, s33, v63
             s_mov_b64 exec, 1
             ds_add_rtn_u32 v61, v60, v59 offset:%d
             ds_read_b32 v62, v60 offset:%d
             s_mov_b64 exec, -1
             s_add_u32 s33, s33, 4''' % (L_TRIG, L_BOOST))

    def ktile(buf, refill, slot):
        K = RING + 32 * buf
        if refill:
            a('s_waitcnt lgkmcnt(1)')
            control()
        for p in range(4):
            d = vr(DD + 4 * p, 4)
            a('%s %s, %s, %s, 0' % (MF32, d, vr(K + 8 * p, 4), vr(BQ, 4)))
            if refill:
                load(buf, 2 * p, var=True)
            a('%s %s, %s, %s, %s' % (MF32, d, vr(K + 8 * p + 4, 4), vr(BQ + 4, 4), d))
            if refill:
                load(buf, 2 * p + 1, var=True)
        for step in (1, 2, 3):
            for p in range(4):
                c = (p + step) & 3
                rot = 4 * ((p - c) & 3)
                src1 = DD + 4 * p + p if step == 1 else TT + p
                if step < 3:
                    a('v_add_f32_dpp v%d, v%d, v%d row_ror:%d %s' % (TT + p, DD + 4 * p + c, src1, rot, FULL))
                else:
                    a('v_add_f32_dpp v%d, v%d, v%d row_ror:%d row_mask:0xf bank_mask:0x%x' % (vS, DD + 4 * p + c, src1, rot, 1 << p))
        rbf(vS, vS)
        a('v_mul_f32 v%d, s18, v%d' % (vS, vS))
        rbf(vP, vS)
        a('v_max_f32 v%d, v%d, v%d' % (vM, vM, vP))
        a('ds_write_b16_d16_hi v%d, v%d offset:%d' % (vSA, vP, 128 * slot))

    def vtile(buf, refill, nxt, last=False):
        V = RING + 32 * buf
        a('s_waitcnt lgkmcnt(%d)' % (0 if last else 1))
        a('''v_sub_f32 v{P}, v{S}, v{M}
             v_mul_f32 v{P}, s19, v{P}
             v_exp_f32 v{P}, v{P}'''.format(P=vP, S=vS2 + buf, M=vM))
        if refill:
            control()
        if nxt is not None:
            a('ds_read_u16_d16_hi v%d, v%d offset:%d' % (vS2 + buf, vSA, 128 * nxt))
        a('''v_add_f32 v{L}, v{L}, v{P}
             v_cvt_pk_bf16_f32 v{P}, v{P}, v{P}'''.format(P=vP, L=vL))
        a('v_and_b32_dpp v%d, v%d, v%d quad_perm:[0,0,1,1] %s' % (vW, vP, vME, FULL))
        a('v_and_b32_dpp v%d, v%d, v%d quad_perm:[2,2,3,3] %s' % (vW + 1, vP, vME, FULL))

        def build(jv):
            p, u = jv >> 1, jv & 1
            A = AS + 4 * u
            for t in range(4):
                rot = 4 * ((t - p) & 3)
                pat = 'row_ror:%d' % rot if rot else 'quad_perm:[0,1,2,3]'
                a('v_mov_b32_dpp v%d, v%d %s row_mask:0xf bank_mask:0x%x' % (A + t, vW + u, pat, 1 << t))
        build(0)
        for jv in range(8):
            if jv < 7:
                build(jv + 1)
            if last and jv == 2:
                allred('v_add_f32', [vL], [1], first=1)
                a('''s_and_b32 s29, s3, 3
                     s_lshl_b32 s21, s29, 10
                     s_lshl_b32 s20, s29, 4
                     s_add_u32 s20, s20, %d
                     v_lshl_add_u32 v1, v0, 4, s21
                     v_lshl_add_u32 v2, v0, 2, s20
                     s_mov_b64 exec, 3
                     ds_write2_b32 v2, v7, v8 offset0:0 offset1:2
                     s_mov_b64 exec, -1
                     s_lshl_b32 s22, s2, 10
                     s_add_u32 s22, s22, %d
                     s_lshl_b32 s23, s2, 4
                     s_add_u32 s23, s23, %d
                     s_lshl_b32 s20, s34, 2
                     v_mov_b32 v10, s20
                     v_mov_b32 v11, 0xffffff00''' % (L_SS, WS_H1O, WS_H1S))
            if last and 7 - jv < max(max(Dp), P['Dhi']):
                a('s_waitcnt vmcnt(%d)' % (7 - jv))
            a('%s %s, %s, %s, %s' % (MF32, vr(O, 4), vr(AS + 4 * (jv & 1), 4), vr(V + 4 * jv, 4), vr(O, 4)))
            if refill:
                load(buf, jv, var=True)

    assert max(Dp) <= 8 and P['Dhi'] <= 8 and 16 % len(Dp) == 0 and NP % 2 == 0 and NL <= NR - 2
    nld = 0
    for t in range(NP):
        if t >= NR:
            a('s_waitcnt lgkmcnt(0)')
        ktile(t if t < NR else t - NR + 2, False, t)
        lt = t - (NR - 1)
        if 0 <= lt < NL:
            assert nld >= max(Dp) and lt + 2 <= t
            for j in range(8):
                a('ds_read_b128 %s, v58 offset:%d' % (vr(RING + 32 * (lt + 2) + 4 * j, 4), lt * 8192 + j * 1024))
        upto = min(16, max(2 * (t + 1) if t < 4 else 0, -(-16 * (t + 1) // NP)))
        while nld < upto:
            load(nld >> 3, nld & 7)
            nld += 1
    assert nld == 16
    a('v_add_u32 v%d, %d, v%d' % (vSA, 128 * NP, vSA))
    a('''v_mov_b32 v59, 1
         v_mov_b32 v60, 0
         v_mov_b32 v61, 0xc0000000
         v_mov_b32 v62, 0
         s_mov_b32 s33, %d''' % (P['th'] - 4))
    a('''L_kloop:
         s_cmp_lg_u32 s17, 1
         s_cbranch_scc1 L_kbody
         s_mov_b32 s8, s12
         s_mov_b32 s9, s13
         s_lshl_b32 s16, s3, 13
         v_mov_b32 v2, v4
         v_mov_b32 v3, v5
         L_kbody:''')
    ktile(0, True, 0)
    ktile(1, True, 1)
    a('''v_add_u32 v%d, 256, v%d
         s_sub_u32 s17, s17, 1
         s_cmp_lg_u32 s17, 0
         s_cbranch_scc1 L_kloop''' % (vSA, vSA))
    stamp(5)
    a.label('L_vphase')
    a('v_subrev_u32 v%d, 0x1000, v%d' % (vSA, vSA))
    a('ds_read_u16_d16_hi v%d, v%d\nds_read_u16_d16_hi v%d, v%d offset:128' % (vS2, vSA, vS2 + 1, vSA))
    allred('v_max_f32', [vM], [1], first=1)
    a('s_cmp_eq_u32 s34, 1\ns_cselect_b32 s17, 1, 15')

    a.label('L_vloop')
    vtile(0, True, 2)
    vtile(1, True, 3)
    a('''v_add_u32 v%d, 256, v%d
         s_sub_u32 s17, s17, 1
         s_cmp_lg_u32 s17, 0
         s_cbranch_scc1 L_vloop''' % (vSA, vSA))
    stamp(3)
    if min(P['trig'], P['trigf']) < 0:
        a('s_mov_b64 exec, 1\nds_add_u32 v60, v59 offset:%d\ns_mov_b64 exec, -1' % L_TRIG)
    vtile(0, False, None)
    vtile(1, False, None, last=True)
    SS, SO = 64, 80
    a('''ds_write_b128 v1, v[24:27] offset:%d
         s_mov_b64 exec, 1
         ds_add_rtn_u32 v9, v10, v59 offset:%d
         s_mov_b64 exec, -1''' % (L_SO, L_SCNT))
    for w in range(4):
        a('ds_read_b128 %s, v60 offset:%d' % (vr(SS + 4 * w, 4), L_SS + 16 * w))
    for w in range(4):
        a('ds_read_b128 %s, v4 offset:%d' % (vr(SO + 4 * w, 4), L_SO + 1024 * w))
    stamp(4)
    a('''s_waitcnt lgkmcnt(8)
         v_readfirstlane_b32 s20, v9
         s_cmp_eq_u32 s34, 1
         s_cselect_b32 s20, 3, s20
         s_cmp_lg_u32 s20, 3
         s_cbranch_scc1 L_sdone
         s_waitcnt lgkmcnt(4)''')
    each(2, 'v_max3_f32 v{d}, v{x}, v{y}, v{z}', d=40, x=SS, y=SS + 4, z=SS + 8)
    each(2, 'v_max_f32 v{d}, v{d}, v{x}', d=40, x=SS + 12)
    for op in ('v_sub_f32 v{r}, v{r}, v{m}', 'v_mul_f32 v{r}, s19, v{r}', 'v_exp_f32 v{r}, v{r}'):
        for w in range(4):
            each(2, op, r=SS + 4 * w, m=40)
    a('s_waitcnt lgkmcnt(0)')
    for w in range(4):
        for r in range(4):
            a('%s v%d, v%d, v%d' % ('v_fmac_f32' if w else 'v_mul_f32', 36 + r, SS + 4 * w + (r >> 1), SO + 4 * w + r))
    each(4, 'v_and_or_b32 v{r}, v{r}, v11, s28', r=36)
    a('buffer_store_dwordx4 v[36:39], v4, s[24:27], s22 offen %s' % ST)
    for w in range(4):
        each(2, ('v_fmac_f32' if w else 'v_mul_f32') + ' v{d}, v{x}, v{y}', d=42, x=SS + 4 * w, y=SS + 4 * w + 2)
    each(4, 'v_and_or_b32 v{r}, v{r}, v11, s28', r=40)
    a('''s_mov_b64 exec, 1
         buffer_store_dwordx4 v[40:43], v4, s[24:27], s23 offen %s
         s_mov_b64 exec, -1''' % ST)
    stamp(6)
    a.label('L_sdone')
    QB = 128
    a('''s_cmp_eq_u32 s34, 1
         s_cselect_b32 s29, 0, s29
         s_mov_b32 s21, 0
         s_cbranch_scc1 L_w2go
         s_cmp_eq_u32 s29, 3
         s_cbranch_scc1 L_sexit
         L_stick:
         ds_read_b32 v9, v60 offset:{tick}
         s_waitcnt lgkmcnt(0)
         v_readfirstlane_b32 s21, v9
         s_cmp_eq_u32 s21, 0
         s_cbranch_scc1 L_stick
         s_sub_u32 s21, s21, 1
         s_cmp_ge_u32 s21, 72
         s_cbranch_scc1 L_sexit
         L_w2go:
         s_setprio 0
         v_lshrrev_b32 v16, 4, v0
         v_and_b32 v17, 15, v0
         v_lshrrev_b32 v1, 3, v0
         v_mul_u32_u24 v1, 1152, v1
         v_and_b32 v2, 7, v0
         v_lshl_add_u32 v1, v2, 4, v1
         s_mul_i32 s16, s21, {rows}
         s_mul_i32 s20, s29, 384
         s_add_u32 s16, s16, s20
         s_mul_i32 s12, s29, 20480
         s_add_u32 s12, s12, {pf}
         s_lshl_b32 s13, s29, 12
         s_add_u32 s13, s13, {sc}
         ; transpose-read address: (8 gq + r) * 128 + 8 c
         v_bfe_u32 v2, v0, 2, 2
         v_lshl_add_u32 v2, v16, 3, v2
         v_and_b32 v3, 3, v0
         v_lshlrev_b32 v3, 3, v3
         v_lshl_add_u32 v2, v2, 7, v3
         v_add_u32 v3, s13, v2
         v_add_u32 v2, s12, v2'''.format(tick=L_TICK, rows=64 * 1152, pf=L_PF + 72 * 1024, sc=L_SC))
    if P['w2after']:
        a('''L_w2wait:
             s_sleep 2
             ds_read_b32 v9, v60 offset:0x14
             s_waitcnt lgkmcnt(0)
             v_cmp_gt_u32 vcc, 4, v9
             s_cbranch_vccnz L_w2wait''')
    for u in range(6):
        ks, blk = divmod(u, 3)
        for t in range(4):
            a('s_add_u32 m0, %s, %d' % ('s12' if u < 5 else 's13', (4096 * u if u < 5 else 0) + 1024 * t))
            a('s_add_u32 s20, s16, %d' % ((32 * ks + 8 * t) * 1152 + 128 * blk))
            pace(4 * u + t, P['pace_2'])
            a('buffer_load_dwordx4 v1, s[36:39], s20 offen %s lds' % WPOL)
    a('''s_lshl_b32 s20, s29, 7
         s_add_u32 s20, s20, {hv}
         v_and_b32 v18, 3, v0
         v_lshlrev_b32 v18, 4, v18
         v_lshrrev_b32 v19, 2, v0
         v_add_u32 v18, v18, v19
         v_lshl_add_u32 v18, v18, 1, s20
         v_lshl_add_u32 v19, v16, 4, s20
         v_lshlrev_b32 v23, 2, v0
         v_lshrrev_b32 v17, 2, v17
         v_mov_b32 v16, {zero}'''.format(hv=L_HV, zero=L_ZERO))
    for blk in range(3):
        a('v_cmp_eq_u32 vcc, %d, v17\nv_cndmask_b32 v%d, v16, v19, vcc' % (blk, 20 + blk))
    a('''s_mul_i32 s22, s21, 2304
         s_mul_i32 s20, s29, 768
         s_add_u32 s22, s22, s20
         s_add_u32 s22, s22, %d''' % WS_H3)
    for u in range(6):
        a('s_waitcnt vmcnt(%d) lgkmcnt(0)' % (20 - 4 * u))
        for j in range(4):
            for h in range(2):
                a('ds_read_b64_tr_b16 %s, v%d offset:%d' % (vr(QB + 16 * u + 4 * j + 2 * h, 2), 2 if u < 5 else 3, (4096 * u if u < 5 else 0) + 512 * h + 32 * j))
    stamp(7)
    tbarrier()
    tbarrier()
    a('''ds_read2st64_b32 v[24:25], v23 offset0:{p0} offset1:{p1}
         ds_read2st64_b32 v[26:27], v23 offset0:{p2} offset1:{p3}
         s_waitcnt lgkmcnt(0)
         v_add_f32 v24, v24, v25
         v_add_f32 v26, v26, v27
         v_add_f32 v24, v24, v26
         v_maximum3_f32 v24, v24, 0, 0
         v_cvt_pk_bf16_f32 v24, v24, v24
         ds_write_b16 v18, v24'''.format(p0=L_PART // 256, p1=L_PART // 256 + 1, p2=L_PART // 256 + 2, p3=L_PART // 256 + 3))
    for ks in range(2):
        for blk in range(3):
            a('ds_read_b128 %s, v%d offset:%d' % (vr(64 + 4 * (ks * 3 + blk), 4), 20 + blk, 64 * ks))
    for u in range(6):
        a('s_waitcnt lgkmcnt(%d)' % (5 - u))
        for cc in range(4):
            d = vr(DD + 4 * cc, 4)
            a('%s %s, %s, %s, %s' % (MF32, d, vr(64 + 4 * u, 4), vr(QB + 16 * u + 4 * cc, 4), d if u else '0'))
    for cc in range(4):
        a('v_and_or_b32 v%d, v%d, v11, s28' % (24 + cc, DD + 4 * cc))
    a('''s_mov_b32 exec_hi, 0xffff
         buffer_store_dwordx4 v[24:27], v4, s[24:27], s22 offen %s
         s_mov_b64 exec, -1''' % ST)
    stamp(8)
    a('''s_cmp_eq_u32 s34, 1
         s_cbranch_scc1 L_reh1_ret''')
    a.label('L_sexit')
    stamp_flush()
    a('s_endpgm')
    a.fence()

    sW, sWS, sIN, sOUT, sDBG = 's[36:39]', 's[40:43]', 's[44:47]', 's[48:51]', 's[52:55]'
    RAW = 16
    XB, DR = 64, 84
    PB = 116
    XI, XF = 204, 212
    vSH, vSC, vX, vGA = 228, 232, 236, 240
    vGQ, vN, vXVw, vXVr, vPW, vMK, vA1, vA2, vA3, vA4, vA5, vXo = range(244, 256)
    a.label('L_service')
    a('''s_load_dwordx2 s[56:57], s[0:1], 0
         s_load_dwordx4 s[60:63], s[0:1], 24
         s_load_dwordx4 s[64:67], s[0:1], 48
         s_load_dwordx4 s[68:71], s[0:1], 64
         s_load_dwordx4 s[72:75], s[0:1], 80
         s_load_dwordx2 s[76:77], s[0:1], 96
         v_mov_b32 v1, 0
         v_lshlrev_b32 v2, 2, v0
         ds_write_b32 v2, v1
         s_sub_u32 s33, s3, 4
         v_lshrrev_b32 v{GQ}, 4, v0
         v_and_b32 v{N}, 15, v0
         v_lshlrev_b32 v14, 4, v0
         s_mov_b32 s39, 0x20000
         s_mov_b32 s42, {wsz}
         s_mov_b32 s43, 0x20000
         s_mov_b32 s46, 1152
         s_mov_b32 s47, 0x20000
         s_mov_b32 s50, 1152
         s_mov_b32 s51, 0x20000
         s_mov_b32 s54, 256
         s_mov_b32 s55, 0x20000
         s_mov_b32 s81, 0
         s_mov_b32 s82, 0x05040100
         s_mov_b32 s83, 0x07060302
         s_mov_b32 s84, -1
         s_mov_b32 s85, 15
         ; prologue role: s89 = 0 wq slice s80, 1 w_mod slice s80, 2 none; s31 = row half; s29 = row quarter
         s_lshr_b32 s32, s2, 4
         s_lshr_b32 s86, s2, 5
         s_lshr_b32 s87, s2, 1
         s_add_u32 s86, s86, s87
         s_and_b32 s86, s86, 3
         s_bfe_u32 s31, s2, 0x10003
         s_xor_b32 s89, s32, s2
         s_and_b32 s89, s89, 1
         s_lshl_b32 s87, s32, 2
         s_add_u32 s87, s87, s86
         s_lshl_b32 s80, s86, 4
         s_add_u32 s80, s80, s32
         s_cmp_eq_u32 s89, 0
         s_cselect_b32 s80, s87, s80
         s_cselect_b32 s87, 64, 54
         s_cmp_lt_u32 s80, s87
         s_cselect_b32 s89, s89, 2
         s_cmp_lt_u32 s33, 2
         s_cselect_b32 s89, s89, 2
         s_lshl_b32 s29, s31, 1
         s_add_u32 s29, s29, s33
         s_mov_b32 s58, {hs}
         s_waitcnt lgkmcnt(0)
         s_barrier     ; #1
         s_load_dword s35, s[76:77], {ep}
         s_mov_b32 s40, s76
         s_mov_b32 s41, s77
         s_mov_b32 s48, s72
         s_mov_b32 s49, s73
         s_mov_b32 s52, s74
         s_mov_b32 s53, s75
         s_cmp_eq_u32 s89, 1
         s_cselect_b32 s36, s70, s60
         s_cselect_b32 s37, s71, s61
         s_cselect_b32 s78, 1280, 0
         s_cselect_b32 s44, s68, s56
         s_cselect_b32 s45, s69, s57
         s_sub_u32 s78, 8192, s78
         s_mul_i32 s38, s78, {rows}
         s_mul_i32 s86, s33, {xs}
         s_add_u32 s86, s86, {xv}
         v_lshl_add_u32 v{XVw}, v0, 3, s86
         v_mul_u32_u24 v1, 72, v{GQ}
         v_add_u32 v{XVr}, s86, v1
         s_lshl_b32 s86, s33, 8
         v_add_u32 v{PW}, s86, v14
         s_cmp_eq_u32 s89, 2
         s_cbranch_scc1 L_norole'''.format(GQ=vGQ, N=vN, wsz=WS_SIZE, ep=WS_EPOCH, rows=0 if 'noprow' in ABL else 576,
                                           xs=XV_STRIDE, xv=L_XV, XVw=vXVw, XVr=vXVr, PW=vPW, hs=HS))
    stamp(17)

    def gemv_loads(quarter, w, wfast=None, sig=0):
        a('''s_mul_i32 s86, %s, 144
             v_mul_u32_u24 v1, 36, v%d
             v_add_u32 v1, s86, v1
             v_mul_lo_u32 v1, v1, s78
             v_lshl_add_u32 v1, v%d, 3, v1
             s_lshl_b32 s79, s80, 7''' % (quarter, vGQ, vN))
        for i in range(36):
            if wfast is None or wfast == w:
                pace(i, w)
            elif w and i >= w:
                skip = lab('pc')
                pace(i, wfast)
                a('s_cbranch_vccnz %s' % skip)
                pace(i, w)
                a.label(skip)
            a('buffer_load_dwordx2 %s, v1, %s, s79 offen %s' % (vr(PB + 16 + 2 * i, 2), sW, WPOL))
            if i < 35:
                a('s_add_u32 s79, s79, s78')
            if sig and i + 1 == sig:
                a('v_mov_b32 v2, 0\nv_mov_b32 v3, 1\ns_mov_b64 exec, 1\nds_add_u32 v2, v3 offset:0x14\ns_mov_b64 exec, -1')

    def gemv_perm():
        for u in range(4):
            blk_perm(PB, u)
        blk_perm(PB, 4, rows=4)

    def gemv_run():
        a('s_mov_b64 exec, -1')
        a('ds_read_b64 %s, v%d offset:64' % (vr(XB + 16, 2), vXVr))
        for z in range(4):
            a('ds_read2_b64 %s, v%d offset0:%d offset1:%d' % (vr(XB + 4 * z, 4), vXVr, 2 * z, 2 * z + 1))
        a('s_waitcnt lgkmcnt(4)')
        for cc in range(4):
            a('%s %s, %s, %s, 0' % (MF16, vr(DR + 16 + 4 * cc, 4), vr(XB + 16, 2), vr(PB + 64 + 2 * cc, 2)))
        for z in range(4):
            a('s_waitcnt lgkmcnt(%d)' % (3 - z))
            for cc in range(4):
                d = vr(DR + 4 * cc, 4)
                a('%s %s, %s, %s, %s' % (MF32, d, vr(XB + 4 * z, 4), vr(PB + 16 * z + 4 * cc, 4), d if z else '0'))
        for cc in range(4):
            a('v_add_f32 v%d, v%d, v%d' % (4 + cc, DR + 4 * cc, DR + 16 + 4 * cc))
        a('''s_mov_b64 exec, 0xffff
             ds_write_b128 v%d, v[4:7] offset:%d''' % (vPW, L_PART))

    def sum_parts():
        for w in range(4):
            a('ds_read_b128 %s, v14 offset:%d' % (vr(RAW + 4 * w, 4), L_PART + 256 * w))
        a('s_waitcnt lgkmcnt(2)')
        each(4, 'v_add_f32 v{d}, v{x}, v{y}', d=4, x=RAW, y=RAW + 4)
        a('s_waitcnt lgkmcnt(0)')
        each(4, 'v_add_f32 v{d}, v{x}, v{y}', d=8, x=RAW + 8, y=RAW + 12)
        each(4, 'v_add_f32 v{d}, v{d}, v{y}', d=4, y=8)

    def unpack(dst, src):
        for i, r in enumerate(src):
            a('v_lshlrev_b32 v%d, 16, v%d' % (dst + 2 * i, r))
            a('v_and_b32 v%d, 0xffff0000, v%d' % (dst + 2 * i + 1, r))

    def ln_finish(X):
        a('''v_mul_f32 v2, 0x3ae38e39, v2
             v_mul_f32 v3, 0x3ae38e39, v3
             v_fma_f32 v3, -v2, v2, v3
             v_cvt_pk_bf16_f32 v2, 0, v2
             v_max_f32 v3, 0, v3
             v_cvt_pk_bf16_f32 v3, 0, v3
             v_sub_f32 v{x0}, v{x0}, v2
             v_add_f32 v3, 0x3727c5ac, v3
             v_sub_f32 v{x1}, v{x1}, v2
             v_cvt_pk_bf16_f32 v3, 0, v3
             v_sub_f32 v{x2}, v{x2}, v2
             v_sqrt_f32 v3, v3
             v_sub_f32 v{x3}, v{x3}, v2
             v_cvt_pk_bf16_f32 v{x0}, 0, v{x0}
             v_cvt_pk_bf16_f32 v3, 0, v3
             v_cvt_pk_bf16_f32 v{x1}, 0, v{x1}
             v_rcp_f32 v3, v3
             v_cvt_pk_bf16_f32 v{x2}, 0, v{x2}
             v_cvt_pk_bf16_f32 v{x3}, 0, v{x3}'''.format(x0=X, x1=X + 1, x2=X + 2, x3=X + 3))
        each(4, 'v_mul_f32 v{x}, v{x}, v3', x=X)
        each(4, 'v_cvt_pk_bf16_f32 v{x}, 0, v{x}', x=X)

    def modulate(X):
        each(4, 'v_mul_f32 v{x}, v{x}, v{c}', x=X, c=vSC)
        each(4, 'v_cvt_pk_bf16_f32 v{x}, 0, v{x}', x=X)
        each(4, 'v_add_f32 v{x}, v{x}, v{s}', x=X, s=vSH)
        a('''v_cvt_pk_bf16_f32 v2, v%d, v%d
             v_cvt_pk_bf16_f32 v3, v%d, v%d
             ds_write_b64 v%d, v[2:3]''' % (X, X + 1, X + 2, X + 3, vXVw))

    def spin_tail(loop, sl):
        if sl:
            a('s_sleep %d' % sl)
        a('''s_add_u32 s81, s81, 1
             s_cmp_lt_u32 s81, %d
             s_cbranch_scc1 %s''' % (P['spin'], loop))

    def poll_nib(loads, regs):
        if 'nopoll' in ABL:
            return
        loop, done = lab('pt'), lab('ptd')
        a.label(loop)
        for l in loads:
            a(l + ' ' + LD)
        a('s_waitcnt vmcnt(0)')
        for r in regs:
            a('v_xor_b32 v%d, s30, v%d' % (r, r))
        a('v_or_b32 v2, v%d, v%d' % (regs[0], regs[1]))
        for i in range(2, len(regs), 2):
            a('v_or3_b32 v2, v2, v%d, v%d' % (regs[i], regs[i + 1]))
        a('''v_and_b32 v2, 15, v2
             v_cmp_ne_u32 vcc, 0, v2
             s_cbranch_vccz %s''' % done)
        spin_tail(loop, P['psl'])
        a.label(done)

    def poll_masked(groups, hi='-1'):
        loop, done = lab('pm'), lab('pmd')
        ms = ['s[%d:%d]' % (4 + 2 * i, 5 + 2 * i) for i in range(len(groups))]
        for i in range(len(groups)):
            a('s_mov_b32 s%d, -1\ns_mov_b32 s%d, %s' % (4 + 2 * i, 5 + 2 * i, hi))
        a.label(loop)
        for m, (loads, quads) in zip(ms, groups):
            skip = lab('sk')
            a('s_mov_b64 exec, %s\ns_cbranch_execz %s' % (m, skip))
            for l in loads:
                a(l + ' ' + LD)
            a.label(skip)
        a('s_mov_b64 vcc, 0\ns_waitcnt vmcnt(0)')
        for m, (loads, quads) in zip(ms, groups):
            skip = lab('sk')
            a('s_mov_b64 exec, %s\ns_cbranch_execz %s' % (m, skip))
            for qi, r in enumerate(quads):
                each(4, 'v_xor_b32 v{r}, s28, v{r}', r=r)
                if qi == 0:
                    a('v_or3_b32 v2, v%d, v%d, v%d' % (r, r + 1, r + 2))
                    last = r + 3
                else:
                    a('v_or3_b32 v2, v2, v%d, v%d' % (r, r + 1))
                    a('v_or3_b32 v2, v2, v%d, v%d' % (r + 2, r + 3))
            a('''v_or_b32 v2, v2, v%d
                 v_and_b32 v2, 0xff, v2
                 v_cmp_ne_u32 %s, 0, v2
                 s_or_b64 vcc, vcc, %s''' % (last, m, m))
            a.label(skip)
        a('s_cbranch_vccz %s' % done)
        spin_tail(loop, P['sleep'])
        a.label(done)
        a('s_mov_b64 exec, -1')

    def gate(addr, maxmiss):
        if maxmiss >= 16:
            return
        loop, done = lab('gt'), lab('gtd')
        a('s_mov_b64 exec, 0xffff')
        a.label(loop)
        a('''buffer_load_dwordx2 v[4:5], v%d, %s, 0 offen %s
             s_waitcnt vmcnt(0)
             v_xor_b32 v4, s28, v4
             v_xor_b32 v5, s28, v5
             v_or_b32 v4, v4, v5
             v_and_b32 v4, 0xff, v4
             v_cmp_ne_u32 vcc, 0, v4
             s_bcnt1_i32_b64 s86, vcc
             s_cmp_le_u32 s86, %d
             s_cbranch_scc1 %s''' % (addr, sWS, LD, maxmiss, done))
        spin_tail(loop, P['gsleep'])
        a.label(done)

    def load_shift_scale(first, quarter):
        a('''s_mul_i32 s86, %s, 576
             s_add_u32 s86, s86, %d
             v_add_u32 v1, s86, v14''' % (quarter, WS_MOD + first * 2304))
        poll_nib(['buffer_load_dwordx4 %s, v1, %s, %s offen offset:%d' % (vr(RAW + 8 * h + 4 * k, 4), sWS, ('0', 's58')[h], 2304 * k)
                  for h in range(2) for k in range(2)], list(range(RAW, RAW + 16)))
        each(8, 'v_add_f32 v{d}, v{x}, v{y}', d=vSH, x=RAW, y=RAW + 8)
        each(8, 'v_cvt_pk_bf16_f32 v{d}, 0, v{d}', d=vSH)
        each(4, 'v_add_f32 v{c}, 1.0, v{c}', c=vSC)
        each(4, 'v_cvt_pk_bf16_f32 v{c}, 0, v{c}', c=vSC)

    each(8, 'v_mov_b32 v{r}, 0', r=XI)
    a('''s_mov_b64 exec, s[84:85]
         v_lshlrev_b32 v2, 3, v0''')
    for k in range(4):
        a('''s_add_u32 s86, s29, %d
             s_and_b32 s86, s86, 3
             s_mul_i32 s86, s86, 288
             buffer_load_dwordx2 %s, v2, %s, s86 offen nt''' % (k, vr(XI + 2 * k, 2), sIN))
    a('''s_mov_b64 exec, -1
         s_cmp_lt_u32 s80, 18
         s_cselect_b32 s86, s89, 0
         s_cmp_eq_u32 s86, 1
         s_cselect_b64 vcc, -1, 0''')
    if P['ckpt'] or not P['static']:
      a('''s_lshl_b32 s86, s80, 2
         s_or_b32 s86, s86, s29
         s_lshl_b32 s86, s86, 2
         s_or_b32 s86, s86, s89
         s_cmp_lg_u32 s86, 1
         s_cbranch_scc1 L_nozero
         v_mul_u32_u24 v1, 0x1100, v0
         v_mov_b32 v2, 0
         v_mov_b32 v3, 0
         s_mov_b32 s86, %d
         s_mov_b64 exec, 0xff
         buffer_store_dwordx2 v[2:3], v1, %s, s86 offen %s
         s_mov_b64 exec, -1
         L_nozero:''' % (WS_TK, sWS, ST))
    gemv_loads('s29', P['ppace'], P['apace'])
    stamp(18)
    a('''s_waitcnt lgkmcnt(0)
         %s
         s_waitcnt vmcnt(36)''' % TAGGEN)
    unpack(XF, range(XI, XI + 8))
    a('''s_cmp_eq_u32 s89, 0
         s_cbranch_scc1 L_qrole''')
    a('s_mov_b64 exec, s[84:85]\ns_mov_b32 s86, 0x32a57060\ns_mov_b32 s87, 0x7f7fffff')
    for ins in ['v_mul_f32 v{t}, 0xbfb8aa3b, v{x}',
                'v_fma_f32 v{r}, -v{x}, s19, -v{t}',
                'v_exp_f32 v{t}, v{t}',
                'v_fma_f32 v{r}, -v{x}, s86, v{r}',
                'v_mul_f32 v{r}, 0x3f317218, v{r}',
                'v_med3_f32 v{r}, v{r}, -0.5, 0.5',
                'v_min_f32 v{e}, s87, v{t}',
                'v_fma_f32 v{t}, v{e}, v{r}, v{t}',
                'v_add_f32 v{t}, 1.0, v{t}',
                'v_rcp_f32 v{r}, v{t}',
                'v_mul_f32 v{e}, v{x}, v{r}',
                'v_fma_f32 v{f}, -v{e}, v{t}, v{x}',
                'v_fma_f32 v{e}, v{f}, v{r}, v{e}',
                'v_div_fixup_f32 v{t}, v{e}, v{t}, v{x}']:
        each(4, ins, t=4, r=8, e=XF + 4, f=XF + 8, x=XF)
    a('''v_cvt_pk_bf16_f32 v2, v4, v5
         v_cvt_pk_bf16_f32 v3, v6, v7
         ds_write_b64 v%d, v[2:3]
         s_mov_b64 exec, -1
         s_mov_b32 s88, %d
         s_branch L_wperm''' % (vXVw, WS_MOD))
    a.fence()
    a.label('L_qrole')
    a('v_add_f32 v2, v%d, v%d\nv_mul_f32 v3, v%d, v%d' % (XF, XF + 1, XF, XF))
    a('v_fmac_f32 v3, v%d, v%d' % (XF + 1, XF + 1))
    for i in range(2, 16):
        a('v_add_f32 v2, v2, v%d\nv_fmac_f32 v3, v%d, v%d' % (XF + i, XF + i, XF + i))
    allred('v_add_f32', [2, 3], [4, 5])
    ln_finish(XF)
    a('s_mov_b32 s88, %d' % WS_Q)
    a.label('L_wperm')
    a('s_waitcnt vmcnt(0)')
    stamp(1)
    gemv_perm()
    a('''s_cmp_eq_u32 s89, 1
         s_cbranch_scc1 L_gemv_run
         s_mov_b64 exec, s[84:85]''')
    load_shift_scale(0, 's29')
    stamp(2)
    modulate(XF)
    a.label('L_gemv_run')
    gemv_run()
    a('''s_mov_b64 exec, 1
         v_mov_b32 v1, 0
         v_mov_b32 v2, 1
         ds_add_rtn_u32 v2, v1, v2 offset:%d
         s_mov_b64 exec, 0xffff''' % L_CNT)
    a('''ds_read_b128 v[4:7], v14 offset:{p0}
         ds_read_b128 v[8:11], v14 offset:{p1}
         s_lshl_b32 s86, s80, 8
         s_add_u32 s88, s88, s86
         s_mul_i32 s86, s31, {hs}
         s_add_u32 s88, s88, s86
         s_waitcnt lgkmcnt(0)
         v_readfirstlane_b32 s86, v2'''.format(p0=L_PART, p1=L_PART + 256, hs=HS))
    each(4, 'v_add_f32 v{x}, v{x}, v{y}', x=4, y=8)
    each(4, 'v_add_u32 v{x}, 8, v{x}', x=4)
    each(4, 'v_and_or_b32 v{x}, v{x}, -16, s30', x=4)
    a('''s_cmp_lg_u32 s86, 1
         s_cbranch_scc1 L_pro_done
         buffer_store_dwordx4 v[4:7], v14, %s, s88 offen %s''' % (sWS, '' if 'nopoll' in ABL else ST))
    stamp(3)
    a('s_branch L_pro_done')
    a.fence()
    a.label('L_norole')
    a('s_waitcnt lgkmcnt(0)\n' + TAGGEN)
    a.label('L_pro_done')
    a('''s_mov_b64 exec, -1
         s_cmp_lg_u32 s33, 2
         s_cbranch_scc1 L_q_done
         s_lshl_b32 s86, s32, 10
         s_add_u32 s86, s86, %d
         v_add_u32 v1, s86, v14''' % WS_Q)
    if P['qdelay']:
        a('s_sleep %d' % P['qdelay'])
    poll_nib(['buffer_load_dwordx4 v[4:7], v1, %s, 0 offen' % sWS, 'buffer_load_dwordx4 v[8:11], v1, %s, s58 offen' % sWS], list(range(4, 12)))
    each(4, 'v_add_f32 v{x}, v{x}, v{y}', x=4, y=8)
    a('''v_lshlrev_b32 v1, 3, v0
         v_cvt_pk_bf16_f32 v4, v4, v5
         v_cvt_pk_bf16_f32 v5, v6, v7
         ds_write_b64 v1, v[4:5] offset:%d''' % L_Q)
    stamp(4)
    a.label('L_q_done')
    a('''s_waitcnt lgkmcnt(0)
         s_barrier     ; #2''')
    if P['rehearse']:
        a('''s_cmp_lg_u32 s33, 3
             s_cbranch_scc1 L_reh1_skip
             s_mov_b32 s34, 1
             s_mov_b32 s8, s76
             s_mov_b32 s9, s77
             s_mov_b32 s10, 0
             s_mov_b32 s11, 0x20000
             s_mov_b32 s16, 0
             s_mov_b32 s24, s76
             s_mov_b32 s25, s77
             s_mov_b32 s26, 0
             s_mov_b32 s27, 0x20000
             s_mov_b32 s38, 0
             v_mov_b32 v4, 0
             v_mov_b32 v2, 0
             v_mov_b32 v3, 0
             v_mov_b32 v14, 0x1000
             s_branch L_vphase''')
        a.fence()
    a.label('L_reh1_ret')
    a('s_waitcnt vmcnt(0) lgkmcnt(0)\ns_mov_b32 s34, 0\nv_lshlrev_b32 v14, 4, v0')
    if P['stamps']:
        for i in (3, 4, 6, 7, 8):
            a('v_writelane_b32 v%d, 0, %d' % (vST, i))
    a.label('L_reh1_skip')
    stamp(5)
    a('''v_mov_b32 v{MK}, 0xffffff00
         s_mov_b32 s44, s56
         s_mov_b32 s45, s57
         s_mul_i32 s86, s33, 192
         v_add_u32 v1, s86, v0
         v_lshlrev_b32 v{A4}, 2, v1
         v_lshlrev_b32 v2, 1, v1
         s_mul_i32 s86, s33, 12288
         s_add_u32 s86, s86, {h2}
         v_add_u32 v{A3}, s86, v14
         v_lshl_add_u32 v{A5}, v{N}, 8, s86
         s_mul_i32 s86, s33, 576
         v_add_u32 v{Xo}, s86, v14
         v_mov_b32 v{A1}, 0
         v_mov_b32 v{A2}, 0
         s_mov_b32 s22, 4096
         s_mov_b32 s23, 8192
         s_cmp_ge_u32 s2, {nf}
         s_cbranch_scc1 L_prep_skip
         s_cmp_eq_u32 s33, 3
         s_cbranch_scc1 L_prep_join'''.format(GQ=vGQ, N=vN, A4=vA4, A3=vA3, A1=vA1, A2=vA2, A5=vA5, h2=WS_H2, MK=vMK, Xo=vXo, nf=72 if P['static'] else 256))
    for i in range(3):
        a('buffer_load_ushort v%d, v2, %s, 0 offen offset:%d nt' % (vX + i, sIN, 128 * i))
    a('v_add_u32 v1, %d, v%d' % (WS_MOD + 2 * 2304, vA4))
    poll_nib(['buffer_load_dword v%d, v1, %s, %s offen offset:%d' % (4 + 3 * h + i, sWS, ('0', 's58')[h], 256 * i) for h in range(2) for i in range(3)],
             list(range(4, 10)))
    a('s_waitcnt vmcnt(0)')
    each(3, 'v_lshlrev_b32 v{x}, 16, v{x}', x=vX)
    each(3, 'v_add_f32 v{g}, v{x}, v{y}', g=vGA, x=4, y=7)
    each(3, 'v_cvt_pk_bf16_f32 v{g}, 0, v{g}', g=vGA)
    a.label('L_prep_join')
    a('s_mov_b64 exec, s[84:85]')
    load_shift_scale(3, 's33')
    a('s_mov_b64 exec, -1')
    a.label('L_prep_skip')
    stamp(6)
    if P['rehearse']:
        a('''s_waitcnt vmcnt(0)
             s_mov_b32 s34, 1
             s_mov_b32 s42, 0
             s_mov_b32 s50, 0
             s_mov_b32 s28, 0
             s_mov_b32 s30, 0
             s_mov_b32 s38, 0
             s_mov_b32 s21, 0
             s_mov_b32 s80, 0
             s_branch L_wo_role''')
        a.fence()
        a.label('L_reh2_ret')
        a('''s_waitcnt vmcnt(0) lgkmcnt(0)
             s_mov_b64 exec, -1
             s_and_b32 s30, s35, 15
             s_mov_b32 s34, 0
             s_mov_b32 s42, %d
             s_mov_b32 s50, 1152
             s_and_b32 s28, s35, 0xff''' % WS_SIZE)
        if P['stamps']:
            for i in range(9, 17):
                a('v_writelane_b32 v%d, 0, %d' % (vST, i))
    stamp(7)
    def draw(off, dst):
        a('''s_mov_b64 exec, 1
             v_mov_b32 v2, 1
             buffer_atomic_add v2, v1, %s, s86 offen offset:%d sc0
             s_waitcnt vmcnt(0)
             v_readfirstlane_b32 %s, v2''' % (sWS, off, dst))
    STEPS = 4 * (32 - NP + 30)
    TOUCH = '''L_touch:
         s_sleep 16
         ds_read_b32 v2, v1 offset:%d
         s_waitcnt lgkmcnt(0)
         v_cmp_gt_u32 vcc, %d, v2
         s_cbranch_vccnz L_touch
         s_cmp_eq_u32 s33, 1
         s_cselect_b32 s36, s62, s64
         s_cselect_b32 s37, s63, s65
         s_cmp_eq_u32 s33, 3
         s_cselect_b32 s36, s66, s36
         s_cselect_b32 s37, s67, s37
         s_mov_b32 s38, %d
         v_lshlrev_b32 v3, %d, v0
         s_lshl_b32 s86, s2, 7
         buffer_load_dword v4, v3, %s, s86 offen nt''' % (L_TRIG, STEPS - (P['touch'] or (0, 0))[0], 4096 * 1152, (P['touch'] or (0, 0))[1], sW)
    a('''v_mov_b32 v1, 0
         s_cmp_lg_u32 s33, 0
         s_cbranch_scc1 L_wait_ticket
         {shard}
         s_mul_i32 s86, s87, 0x1100
         s_add_u32 s86, s86, {tk}
         s_getreg_b32 s4, hwreg(HW_REG_XCC_ID, 0, 3)
         s_lshl_b32 s15, s4, 2
         s_lshr_b32 s15, {xb}, s15
         s_and_b32 s15, s15, 15
         s_sub_i32 s15, s15, 8
         s_mul_i32 s4, s4, 0x1400
         s_add_u32 s4, s4, {pg}
         s_lshl_b32 s5, s2, 2
         s_add_u32 s5, s5, s4
         s_lshl_b32 s6, s35, 9
         s_movk_i32 s7, 0x200
         s_mov_b32 s12, {ck}
         s_mov_b32 s13, 0xffff
         s_cmp_lt_u32 s2, 216
         s_cselect_b32 s10, {l1}, 0
         s_mov_b32 s11, {lim}
         s_cmp_lt_u32 s2, 72
         s_cselect_b32 s10, {l0}, s10
         s_cselect_b32 s11, {limf}, s11
         L_ctl:
         s_sleep {per}
         ds_read_b32 v2, v1 offset:{trig}
         s_waitcnt lgkmcnt(0)
         v_readfirstlane_b32 s8, v2
         s_cmp_ge_u32 s8, s11
         s_cbranch_scc1 L_ctl_done'''.format(l0=P['lead'][0] if P['static'] else 0, l1=P['lead'][1] if P['static'] else 0,
                                             shard='s_and_b32 s87, s2, 7' if P['xshard'] else 's_lshr_b32 s87, s2, 5', xb=hex(sum((P['bias'] + b + 8) << (4 * i) for i, b in enumerate(P['xb']))), limf=STEPS - (P['trigf'] if P['static'] else P['trig']), tk=WS_TK, pg=WS_PG, per=P['period'], trig=L_TRIG, lim=STEPS - P['trig'],
                                             ck=STEPS - P['ckpt'][0] if P['ckpt'] else 0xffff))
    a('s_cmp_ge_u32 s8, %d\ns_cbranch_scc1 L_ctl_fin' % (STEPS - 2))
    if P['ckpt']:
        a('s_cmp_lt_u32 s8, s12\ns_cbranch_scc1 L_nock')
        draw(0, 's13')
        a('''s_mov_b64 exec, -1
             s_mov_b32 s12, 0xffff
             s_sub_i32 s13, s13, %d
             s_max_i32 s13, s13, 0
             s_mul_i32 s13, s13, %d
             s_sub_i32 s13, %d, s13
             v_mov_b32 v2, s8
             L_nock:''' % (P['ckpt'][1], P['ckpt'][2], STEPS))
    a('''s_cmp_ge_i32 s8, s13
         s_cselect_b32 s9, %d, 0''' % P['gam'])
    if P['xcd']:
        a('''s_sub_i32 s8, s8, s10
             s_max_i32 s8, s8, 0
             s_or_b32 s14, s6, s8
             v_mov_b32 v2, s14
             s_mov_b64 exec, 1
             buffer_store_dword v2, v1, {ws}, s5 offen
             s_mov_b64 exec, -1
             buffer_load_dwordx4 v[4:7], v14, {ws}, s4 offen {ld}
             s_sub_i32 s9, s9, s8
             s_add_i32 s9, s9, s15
             v_mov_b32 v3, 0
             s_waitcnt vmcnt(0)'''.format(ws=sWS, ld=LD, bias=P['bias']))
        for r in range(4, 8):
            a('''v_xor_b32 v{r}, s6, v{r}
                 v_cmp_gt_u32 vcc, s7, v{r}
                 v_add_u32 v{r}, 0x10000, v{r}
                 v_cndmask_b32 v{r}, 0, v{r}, vcc
                 v_add_u32 v3, v3, v{r}'''.format(r=r))
        allred('v_add_u32', [3], [4])
        a('''v_lshrrev_b32 v4, 16, v3
             v_and_b32 v3, 0xffff, v3
             v_max_u32 v4, 1, v4
             v_cvt_f32_u32 v4, v4
             v_cvt_f32_u32 v3, v3
             v_rcp_f32 v4, v4
             v_fma_f32 v3, v3, v4, 0.5
             v_cvt_u32_f32 v3, v3
             v_add_u32 v3, s9, v3''')
    else:
        a('v_mov_b32 v3, s9')
    a('''ds_write_b32 v1, v3 offset:%d
         s_branch L_ctl
         L_ctl_fin:
         s_sleep 1
         ds_read_b32 v2, v1 offset:%d
         s_waitcnt lgkmcnt(0)
         v_cmp_gt_u32 vcc, s11, v2
         s_cbranch_vccnz L_ctl_fin
         L_ctl_done:''' % (L_BOOST, L_TRIG))
    if P['xcd']:
        a('''s_or_b32 s8, s6, %d
             v_mov_b32 v2, s8
             s_mov_b64 exec, 1
             buffer_store_dword v2, v1, %s, s5 offen''' % (STEPS, sWS))
    if P['fin'] is not None:
        a('v_mov_b32 v3, %d\nds_write_b32 v1, v3 offset:%d' % (P['fin'], L_BOOST))
    if P['static']:
        a('s_add_u32 s80, s2, 1')
    else:
        draw(4, 's21')
        a('''s_sub_u32 s20, s21, {o0}
         s_lshl_b32 s80, s20, 3
         s_add_u32 s80, s80, 73
         s_add_u32 s80, s80, s87
         s_cmp_lt_u32 s20, 18
         s_cselect_b32 s80, s80, 0xff
         s_sub_u32 s20, s21, {f0}
         s_lshl_b32 s21, s20, 3
         s_add_u32 s21, s21, s87
         s_mul_i32 s86, s21, 57
         s_lshr_b32 s86, s86, 9
         s_mul_i32 s87, s86, 9
         s_sub_u32 s21, s21, s87
         s_lshl_b32 s21, s21, 3
         s_add_u32 s86, s86, 3
         s_and_b32 s86, s86, 7
         s_add_u32 s21, s21, s86
         s_add_u32 s21, s21, 1
         s_cmp_lt_u32 s20, 9
         s_cselect_b32 s80, s21, s80'''.format(o0=O0, f0=F0))
    a('''
         v_mov_b32 v2, s80
         ds_write_b32 v1, v2 offset:{tick}
         s_mov_b64 exec, -1
         s_branch L_have_ticket
         L_wait_ticket:
         {touch}
         L_wait_ticket2:
         s_sleep 3
         ds_read_b32 v2, v1 offset:{tick}
         s_waitcnt lgkmcnt(0)
         v_cmp_eq_u32 vcc, 0, v2
         s_cbranch_vccnz L_wait_ticket2
         L_have_ticket:
         v_readfirstlane_b32 s80, v2'''.format(tick=L_TICK, touch=TOUCH if P['touch'] else ''))
    stamp(8)
    a('''s_sub_u32 s80, s80, 1
         s_mov_b32 s38, {szf}
         s_cmp_lt_u32 s80, 72
         s_cbranch_scc1 L_ffn_role
         s_sub_u32 s21, s80, 72
         s_mov_b32 s38, {szo}
         s_cmp_ge_u32 s21, 144
         s_cbranch_scc1 L_exit'''.format(szf=0 if 'noffn' in ABL else 576 * 9216, szo=0 if 'nowo' in ABL else 4096 * 1152))

    a.label('L_wo_role')
    a('''s_and_b32 s29, s21, 15
         s_lshr_b32 s32, s21, 4
         s_mov_b32 s36, s62
         s_mov_b32 s37, s63
         v_lshrrev_b32 v1, 3, v0
         v_mul_u32_u24 v1, 9216, v1
         v_and_b32 v2, 7, v0
         v_lshl_add_u32 v1, v2, 4, v1
         s_lshl_b32 s86, s29, 8
         s_lshl_b32 s87, s33, 1
         s_add_u32 s86, s86, s87
         s_mul_i32 s86, s86, 1152
         s_lshl_b32 s79, s32, 7
         s_add_u32 s79, s79, s86
         s_lshl_b32 s87, s33, 13
         s_add_u32 s87, s87, {pf}'''.format(pf=L_PF))
    for t in range(8):
        gq = t >> 1
        a('s_add_u32 m0, s87, %d' % (1024 * t))
        a('s_add_u32 s86, s79, %d' % (((gq >> 1) * 128 + (gq & 1) + 64 * (t & 1)) * 1152))
        pace(t, P['pace_o'])
        a('buffer_load_dwordx4 v1, %s, s86 offen %s lds' % (sW, WPOL))
    a('''v_bfe_u32 v2, v0, 2, 2
         v_lshl_add_u32 v2, v{GQ}, 4, v2
         v_and_b32 v3, 3, v0
         v_lshl_add_u32 v3, v3, 3, s87
         v_lshl_add_u32 v3, v2, 7, v3'''.format(GQ=vGQ))
    a('''s_lshl_b32 s26, s21, 8
         s_add_u32 s26, s26, {h2}
         s_lshl_b32 s86, s29, 14
         s_lshl_b32 s87, s33, 8
         s_add_u32 s86, s86, s87
         s_add_u32 s86, s86, {h1o}
         v_lshlrev_b32 v1, 12, v{GQ}
         v_lshl_add_u32 v1, v{N}, 4, v1
         v_add_u32 v{A1}, s86, v1
         v_lshl_add_u32 v1, v{GQ}, 2, v{N}
         v_and_b32 v1, 15, v1
         s_lshl_b32 s86, s29, 8
         s_add_u32 s86, s86, {h1s}
         v_lshl_add_u32 v{A2}, v1, 4, s86
         s_mul_i32 s86, s33, {xs}
         s_add_u32 s86, s86, {xv}
         v_lshl_add_u32 v12, v0, 1, s86
         v_lshl_add_u32 v13, v{GQ}, 5, s86
         s_waitcnt vmcnt(0)'''.format(GQ=vGQ, N=vN, A1=vA1, A2=vA2, h1o=WS_H1O, h1s=WS_H1S, h2=WS_H2, xs=XV_STRIDE, xv=L_XV))
    for z in range(2):
        for j in range(4):
            for h in range(2):
                a('ds_read_b64_tr_b16 %s, v3 offset:%d' % (vr(PB + 16 * z + 4 * j + 2 * h, 2), 1024 * z + 512 * h + 32 * j))
        a('s_waitcnt lgkmcnt(0)')
    stamp(9)
    gate(vA2, P['gate'][0])
    poll_masked([(['buffer_load_dwordx4 %s, v%d, %s, 0 offen' % (vr(RAW, 4), vA2, sWS)], [RAW])] +
                [(['buffer_load_dwordx4 %s, v%d, %s, 0 offen offset:%d' % (vr(RAW + 4 + 4 * k, 4), vA1, sWS, 1024 * k)], [RAW + 4 + 4 * k])
                 for k in range(4)])
    stamp(10)
    a('v_mov_b32 v4, v%d\nv_mov_b32 v5, v%d' % (RAW, RAW + 1))
    rowred('v_max_f32', [4, 5])
    each(2, 'v_sub_f32 v{d}, v{m}, v{d}', d=4, m=RAW)
    each(2, 'v_mul_f32 v{d}, s19, v{d}', d=4)
    each(2, 'v_exp_f32 v{d}, v{d}', d=4)
    each(2, 'v_mul_f32 v{l}, v{d}, v{x}', l=6, d=4, x=RAW + 2)
    for k in range(4):
        for r in range(4):
            a('%s v%d, v%d, v%d row_newbcast:%d %s' % ('v_fmac_f32_dpp' if k else 'v_mul_f32_dpp', 8 + r, 4 + (r >> 1), RAW + 4 + 4 * k + r, k, FULL))
        for x in (6, 7):
            a('v_add_f32_dpp v%d, v%d, v%d %s %s' % (x, x, x, PATS[k], FULL))
    each(2, 'v_rcp_f32 v{l}, v{l}', l=6)
    for r in range(4):
        a('v_mul_f32 v%d, v%d, v%d' % (8 + r, 8 + r, 6 + (r >> 1)))
    quadred([8])
    a('''v_cvt_pk_bf16_f32 v8, v8, v8
         ds_write_b16 v12, v8
         ds_read_b128 {a0}, v13
         ds_read_b128 {a1}, v13 offset:16
         s_waitcnt lgkmcnt(1)'''.format(a0=vr(XB, 4), a1=vr(XB + 4, 4)))
    for cc in range(4):
        a('%s %s, %s, %s, 0' % (MF32, vr(DR + 4 * cc, 4), vr(XB, 4), vr(PB + 4 * cc, 4)))
    a('s_waitcnt lgkmcnt(0)')
    for cc in range(4):
        d = vr(DR + 4 * cc, 4)
        a('%s %s, %s, %s, %s' % (MF32, d, vr(XB + 4, 4), vr(PB + 16 + 4 * cc, 4), d))
    a('''s_lshl_b32 s86, s34, 3
         v_mov_b32 v1, s86
         v_mov_b32 v2, 1''')
    for cc in range(1, 4):
        a('v_mov_b32 v%d, v%d' % (DR + cc, DR + 4 * cc))
    a('''s_mov_b64 exec, 0xffff
         ds_write_b128 v{PW}, {d} offset:{part}
         s_mov_b64 exec, 1
         ds_add_rtn_u32 v2, v1, v2 offset:{cnt}
         s_mov_b64 exec, 0xffff'''.format(PW=vPW, d=vr(DR, 4), part=L_PART, cnt=0x14))
    sum_parts()
    a('v_readfirstlane_b32 s86, v2')
    each(4, 'v_and_or_b32 v{r}, v{r}, v%d, s28' % vMK, r=4)
    a('''s_cmp_lg_u32 s86, 3
         s_cbranch_scc1 L_wo_done
         buffer_store_dwordx4 v[4:7], v14, %s, s26 offen %s''' % (sWS, ST))
    stamp(11)
    a('''L_wo_done:
         s_cmp_eq_u32 s34, 0
         s_cbranch_scc1 L_exit
         s_mov_b64 exec, -1''')

    a.label('L_ffn_role')
    a('''s_mov_b32 s36, s64
         s_mov_b32 s37, s65
         v_lshrrev_b32 v1, 3, v0
         v_mul_u32_u24 v1, 9216, v1
         v_and_b32 v2, 7, v0
         v_lshl_add_u32 v1, v2, 4, v1
         s_mul_i32 s79, s33, %d
         s_lshl_b32 s86, s80, 7
         s_add_u32 s79, s79, s86
         s_mul_i32 s87, s33, 18432
         s_add_u32 s87, s87, %d''' % (144 * 9216, L_PF))
    for t in range(18):
        a('s_add_u32 m0, s87, %d' % (1024 * t))
        a('s_add_u32 s86, s79, %d' % (8 * t * 9216))
        pace(t, P['pace_1'])
        a('buffer_load_dwordx4 v1, %s, s86 offen %s lds' % (sW, WPOL))
        if t + 1 == P['w2after']:
            a('v_mov_b32 v2, 0\nv_mov_b32 v3, 1\ns_mov_b64 exec, 1\nds_add_u32 v2, v3 offset:0x14\ns_mov_b64 exec, -1')
    a('''v_bfe_u32 v2, v0, 2, 2
         v_mad_u32_u24 v2, v{GQ}, 36, v2
         v_and_b32 v10, 3, v0
         v_lshl_add_u32 v10, v10, 3, s87
         v_lshl_add_u32 v10, v2, 7, v10'''.format(GQ=vGQ))
    a('''s_cmp_lg_u32 s33, 3
         s_cbranch_scc1 L_ffn_join
         ; wave 3 is the final consumer: column c = 8 jf + 4 (lane&1) + row
         s_lshr_b32 s86, s80, 3
         s_lshl_b32 s86, s86, 6
         s_and_b32 s87, s80, 7
         s_lshl_b32 s87, s87, 1
         s_add_u32 s86, s86, s87
         v_and_b32 v3, 1, v0
         v_lshl_add_u32 v1, v{GQ}, 4, v3
         v_add_u32 v1, s86, v1
         v_lshlrev_b32 v{A4}, 2, v1
         v_lshrrev_b32 v2, 1, v0
         v_mul_u32_u24 v2, 2304, v2
         v_lshl_add_u32 v2, v3, 4, v2
         s_lshl_b32 s86, s80, 5
         s_add_u32 s86, s86, {h3}
         v_add_u32 v{A3}, s86, v2
         s_mov_b32 s22, {k1}
         s_mov_b32 s23, {k2}
         v_add_u32 v1, {gb}, v{A4}'''.format(GQ=vGQ, A4=vA4, A3=vA3, h3=WS_H3, k1=24 * 2304, k2=48 * 2304, gb=WS_MOD + 5 * 2304))
    poll_nib(['buffer_load_dword v4, v1, %s, 0 offen' % sWS, 'buffer_load_dword v5, v1, %s, s58 offen' % sWS], [4, 5])
    a('v_add_f32 v4, v4, v5\nv_cvt_pk_bf16_f32 v%d, 0, v4' % vGA)
    a.label('L_ffn_join')
    a('s_waitcnt vmcnt(0)')
    for z in range(4):
        for j in range(4):
            for h in range(2):
                a('ds_read_b64_tr_b16 %s, v10 offset:%d' % (vr(PB + 16 * z + 4 * j + 2 * h, 2), 1024 * z + 512 * h + 32 * j))
        a('s_waitcnt lgkmcnt(4)')
    for j in range(4):
        a('ds_read_b64_tr_b16 %s, v10 offset:%d' % (vr(PB + 64 + 2 * j, 2), 4096 + 32 * j))
    stamp(19)
    a('''v_mov_b32 v13, 0
         s_lshl_b32 s86, s33, 3
         v_mov_b32 v12, s86
         s_cmp_eq_u32 s33, 3
         s_cbranch_scc1 L_w3warm''')
    gate(vA5, P['gate'][1])
    poll_masked([(['buffer_load_dwordx4 %s, v%d, %s, %s offen offset:%d' % (vr(RAW + 16 * i + 4 * k, 4), vA3, sWS, ('0', 's22', 's23')[i], 1024 * k)
                   for i in range(3)], [RAW + 16 * i + 4 * k for i in range(3)]) for k in range(4)])
    stamp(12)
    for i in range(3):
        q = RAW + 16 * i
        for h in range(2):
            a('v_pk_add_f32 %s, %s, %s' % (vr(q + 2 * h, 2), vr(q + 2 * h, 2), vr(q + 4 + 2 * h, 2)))
        for h in range(2):
            a('v_pk_add_f32 %s, %s, %s' % (vr(q + 8 + 2 * h, 2), vr(q + 8 + 2 * h, 2), vr(q + 12 + 2 * h, 2)))
    for i in range(3):
        q = RAW + 16 * i
        for h in range(2):
            a('v_pk_add_f32 %s, %s, %s' % (vr(q + 2 * h, 2), vr(q + 2 * h, 2), vr(q + 8 + 2 * h, 2)))
    quadred([RAW, RAW + 16, RAW + 32])
    for i in range(3):
        rbf(4 + i, RAW + 16 * i)
    each(3, 'v_mul_f32 v{x}, v{x}, v{g}', x=4, g=vGA)
    each(3, 'v_cvt_pk_bf16_f32 v{x}, 0, v{x}', x=4)
    each(3, 'v_add_f32 v{x}, v{x}, v{y}', x=4, y=vX)
    each(3, 'v_cvt_pk_bf16_f32 v{x}, 0, v{x}', x=4)
    a('''v_add_f32 v2, v4, v5
         v_mul_f32 v3, v4, v4
         ds_write_b32 v{A4}, v4 offset:{x0}
         v_fmac_f32 v3, v5, v5
         v_add_f32 v2, v2, v6
         ds_write_b32 v{A4}, v5 offset:{x1}
         v_fmac_f32 v3, v6, v6
         ds_write_b32 v{A4}, v6 offset:{x2}'''.format(A4=vA4, x0=L_X2, x1=L_X2 + 256, x2=L_X2 + 512))
    allred('v_add_f32', [2, 3], [8, 9])
    a('''s_mov_b64 exec, 1
         ds_write_b64 v12, v[2:3] offset:%d''' % L_ST)
    a('s_branch L_t2b')
    a.fence()
    a.label('L_w3warm')
    if P['warm3'] is not None:
        a('v_lshlrev_b32 v3, 8, v%d\nv_add_u32 v3, %d, v3' % (vN, WS_H2))
        gate(3, P['warm3'])
        a('s_mov_b32 exec_lo, -1\ns_mov_b32 exec_hi, 0xffff')
        for k in range(3):
            a('buffer_load_dword v%d, v%d, %s, %s offen %s' % (XF + k, vA3, sWS, ('0', 's22', 's23')[k], LD))
    a.label('L_t2b')
    a('s_mov_b64 exec, s[84:85]')
    tbarrier()
    a('''ds_read_b128 v[4:7], v13 offset:{st}
         ds_read_b64 v[8:9], v13 offset:{st2}
         ds_read_b128 {x}, v{Xo} offset:{x2}
         s_waitcnt lgkmcnt(1)
         v_add_f32 v2, v4, v6
         v_add_f32 v3, v5, v7
         v_add_f32 v2, v2, v8
         v_add_f32 v3, v3, v9
         s_waitcnt lgkmcnt(0)'''.format(st=L_ST, st2=L_ST + 16, x=vr(RAW, 4), Xo=vXo, x2=L_X2))
    ln_finish(RAW)
    modulate(RAW)
    gemv_run()
    tbarrier()
    stamp(13)
    a('''s_mov_b64 exec, -1
         s_cmp_lg_u32 s33, 3
         s_cbranch_scc1 L_exit''')
    a('ds_read_b32 v12, v%d offset:%d' % (vA4, L_X2))
    each(12, 'v_mov_b32 v{r}, 0', r=RAW)
    a('v_lshrrev_b32 v1, 1, v%d' % vA4)
    if P['d3']:
        a('s_sleep %d' % P['d3'])
    poll_masked([(['buffer_load_dwordx4 %s, v%d, %s, %s offen' % (vr(RAW + 4 * k, 4), vA3, sWS, ('0', 's22', 's23')[k])], [RAW + 4 * k])
                 for k in range(3)], hi='0xffff')
    stamp(15)
    each(4, 'v_add_f32 v{x}, v{x}, v{y}', x=RAW, y=RAW + 4)
    each(4, 'v_add_f32 v{x}, v{x}, v{y}', x=RAW, y=RAW + 8)
    quadred([RAW])
    rowred('v_add_f32', [RAW], first=1)
    rbf(4, RAW)
    a('v_mul_f32 v4, v4, v%d' % vGA)
    rbf(4, 4)
    a('''s_waitcnt lgkmcnt(0)
         v_add_f32 v4, v4, v12
         v_cvt_pk_bf16_f32 v4, v4, v4
         s_mov_b32 exec_lo, 0x00030003
         s_mov_b32 exec_hi, 0x00030003
         buffer_store_short v4, v1, %s, 0 offen
         s_cmp_lg_u32 s80, 0
         s_cbranch_scc1 L_noep
         s_mov_b64 exec, 1
         v_mov_b32 v5, s35
         buffer_store_dword v5, v14, %s, 0 offen offset:%d
         L_noep:''' % (sOUT, sWS, WS_EPOCH))
    stamp(16)
    a.label('L_exit')
    if P['rehearse']:
        a('''s_cmp_eq_u32 s34, 1
             s_cbranch_scc1 L_reh2_ret''')
    if P['stamps']:
        a('v_writelane_b32 v15, s80, 29\nv_writelane_b32 v%d, s81, 30\ns_getreg_b32 s4, hwreg(HW_REG_XCC_ID, 0, 3)\nv_writelane_b32 v%d, s4, 31' % (vST, vST))
    stamp_flush()
    a.label('L_end')
    a('s_endpgm')
    a.raw('.fill 64, 4, 0xbf800000')
    a.raw('''.section .rodata,"a"
.p2align 6
.amdhsa_kernel %s_kernel
  .amdhsa_next_free_vgpr 256
  .amdhsa_next_free_sgpr 102
  .amdhsa_accum_offset 256
  .amdhsa_group_segment_fixed_size 0
  .amdhsa_kernarg_size 104
  .amdhsa_user_sgpr_count 2
  .amdhsa_user_sgpr_kernarg_segment_ptr 1
  .amdhsa_system_sgpr_workgroup_id_x 1
  .amdhsa_float_denorm_mode_32 3
.end_amdhsa_kernel''' % NAME)
    return a.text()


if __name__ == '__main__':
    out = sys.argv[1]
    kw = eval('dict(%s)' % (sys.argv[2] if len(sys.argv) > 2 else ''))
    open(out, 'w').write(gen(**kw))
```

```python
import sys
from asmlib import Asm

NAME = 'adaLN_cond__gqa_block_cached__dense_activation_relu__decode'

DEFAULTS = dict(
    D=[5], Dhi=6,
    stamps=False,
    ld='sc1', st='sc1', wpol='nt',
    spin=1 << 17,
    sleep=0, psl=12, gsleep=3, d3=25,
    prio=1,
    npre=6, nl=4,
    trig=0, trigo=-4,
    gate=3,
    ppace=8, apace=0, qdelay=0, pace_o=0, pace_1=0, pace_2=0, w2after=18,
    th=2, bias=0, period=8, fin=20, lead=4, xb=(1, 0, 1, 0, 2, 1, 2, 1),
    local=True, pret=28, nrep=4, wo_early=False, pmap=1, sffn=None, tr=None, h1early=True, qtile=8, mtile=0, bar2=False, mile=None, rt=(-3, -2, -1, 0, 1, 2, 3, 4),
    abl=(),
)

WS_EPOCH = 0x0
WS_H1S = 0x9000
WS_H2 = 0xC0000
H2R = 18432
WS_MOD = 0x1000
WS_Q = 0x14000
HS = 0x4000
WS_H1O = 0x20000
WS_H3 = 0x60000
WS_TK = 0xE0000
WS_PG = 0xA0000
WS_SIZE = 0x100000
WS_STAMP = 0x100000
L_CNT = 0x0
L_TRIG = 0x4
L_TICK = 0x8
L_SCNT = 0xc
L_KCNT = 0x10
L_WCNT = 0x14
L_FOK = 0x1c
L_OCNT = 0x38
L_PPROG = 0x3c
L_QOK = 0xe0
L_ACNT = 0xe4
L_BCNT = 0xe8
L_F = 0xc0
L_BOOST = 0x18
L_ST = 0x20
L_ZERO = 0x40
L_Q = 0x100
L_XV = 0x300
XV_STRIDE = 320
L_HV = 0x800
L_PART = 0xA00
L_X2 = 0xE00
L_SO = 0x1800
L_SS = 0x2800
L_SC = 0x3000
L_PF = 0x7000

FULL = 'row_mask:0xf bank_mask:0xf'
TAGGEN = '''s_add_u32 s35, s35, 1
         s_and_b32 s28, s35, 0xff
         s_and_b32 s30, s35, 15'''


def vr(a, n):
    return 'v[%d:%d]' % (a, a + n - 1) if n > 1 else 'v%d' % a


def gen(**kw):
    P = dict(DEFAULTS)
    for k in kw:
        assert k in P or k in ('probe',), k
    P.update(kw)
    a = Asm()
    LD, ST, WPOL = P['ld'], P['st'], P['wpol']
    ABL = P['abl']
    uid = [0]

    def lab(s):
        uid[0] += 1
        return 'L_%s_%d' % (s, uid[0])

    vST = 15

    def stamp(i):
        if P['stamps'] == 'end' and i not in (0, 1, 2, 3, 4, 16):
            return
        if P['stamps']:
            a('s_memrealtime s[90:91]\ns_waitcnt lgkmcnt(0)\nv_writelane_b32 v%d, s90, %d' % (vST, i))

    def stamp_flush():
        if P['stamps']:
            a('''s_mov_b64 exec, -1
                 s_load_dwordx2 s[92:93], s[0:1], 96
                 s_lshl_b32 s90, s2, 11
                 s_lshl_b32 s91, s3, 8
                 s_add_u32 s90, s90, s91
                 s_add_u32 s90, s90, %d
                 v_lshlrev_b32 v1, 2, v0
                 s_waitcnt lgkmcnt(0)
                 s_mov_b32 s94, 0x200000
                 s_mov_b32 s95, 0x20000
                 buffer_store_dword v%d, v1, s[92:95], s90 offen''' % (WS_STAMP, vST))

    PATS = ('quad_perm:[1,0,3,2]', 'quad_perm:[2,3,0,1]', 'row_ror:4', 'row_ror:8')

    def rowred(op, xs, first=0):
        for pat in PATS[first:]:
            for x in xs:
                a('%s_dpp v%d, v%d, v%d %s %s' % (op, x, x, x, pat, FULL))

    def allred(op, xs, ts, first=0):
        rowred(op, xs, first)
        for sw in ('16', '32'):
            for x, t in zip(xs, ts):
                a('v_mov_b32 v%d, v%d' % (t, x))
            for x, t in zip(xs, ts):
                a('v_permlane%s_swap_b32 v%d, v%d' % (sw, x, t))
            for x, t in zip(xs, ts):
                a('%s v%d, v%d, v%d' % (op, x, x, t))

    def quadred(qs):
        for q in qs:
            a('v_permlane32_swap_b32 v%d, v%d' % (q, q + 2))
            a('v_permlane32_swap_b32 v%d, v%d' % (q + 1, q + 3))
        for q in qs:
            a('v_add_f32 v%d, v%d, v%d' % (q, q, q + 2))
            a('v_add_f32 v%d, v%d, v%d' % (q + 1, q + 1, q + 3))
        for q in qs:
            a('v_permlane16_swap_b32 v%d, v%d' % (q, q + 1))
        for q in qs:
            a('v_add_f32 v%d, v%d, v%d' % (q, q, q + 1))

    def rbf(d, s):
        a('v_cvt_pk_bf16_f32 v%d, 0, v%d' % (d, s))

    def each(n, fmt, **regs):
        for i in range(n):
            a(fmt.format(**{k: v + i for k, v in regs.items()}))

    def blk_perm(base, n, rows=8):
        src, dst = base + 16 * (n + 1), base + 16 * n
        h = rows // 2
        for cc in range(4):
            for ip in range(h):
                a('v_perm_b32 v%d, v%d, v%d, s%d' % (dst + h * cc + ip, src + 2 * (2 * ip + 1) + (cc >> 1),
                                                    src + 2 * (2 * ip) + (cc >> 1), 82 + (cc & 1)))

    def dma_chunk(d, t):
        a('''v_lshrrev_b32 v{t}, 4, v0
             v_lshlrev_b32 v{t}, 1, v{t}
             v_xor_b32 v{t}, v{t}, v0
             v_and_b32 v{t}, 7, v{t}
             v_lshlrev_b32 v{d}, 4, v{t}'''.format(d=d, t=t))

    def tr_addrs(d, row, base, t):
        a('''v_and_b32 v{t}, 3, v0
             v_lshl_add_u32 v{t}, v{t}, 3, {base}
             v_lshl_add_u32 v{t}, v{row}, 7, v{t}
             v_bfe_u32 v{row}, v{row}, 1, 2'''.format(t=t, row=row, base=base))
        for j in range(4):
            a('v_xor_b32 v%d, %d, v%d' % (d + j, j, row))
        for j in range(4):
            a('v_lshl_add_u32 v%d, v%d, 5, v%d' % (d + j, d + j, t))

    def pace(i, w):
        if w and i >= w:
            a('s_waitcnt vmcnt(%d)' % (w - 1))

    def tbarrier():
        a('s_waitcnt lgkmcnt(0)\ns_barrier')

    MF32, MF16 = 'v_mfma_f32_16x16x32_bf16', 'v_mfma_f32_16x16x16_bf16'

    a.raw('; @launch grid=(256,1,1) block=(512,1,1) lds=%d' % 0x28000)
    a.raw('.amdgcn_target "amdgcn-amd-amdhsa--gfx950"\n.text\n.globl %s_kernel\n.p2align 8\n.type %s_kernel,@function\n%s_kernel:' % (NAME, NAME, NAME))
    a('''s_cmp_ge_u32 s2, 256
         s_cbranch_scc1 L_end
         s_load_dwordx4 s[4:7], s[0:1], 8
         v_lshrrev_b32 v1, 6, v0
         v_and_b32 v0, 63, v0
         v_readfirstlane_b32 s3, v1
         s_mov_b32 s19, 0x3fb8aa3b
         ; s34 = kv head * 16 + split: the 32 workgroups with equal id % 8 share two heads
         s_and_b32 s34, s2, 7
         s_lshl_b32 s34, s34, 5
         s_and_b32 s17, s2, 8
         s_lshl_b32 s17, s17, 1
         s_or_b32 s34, s34, s17
         s_lshr_b32 s17, s2, 4
         s_or_b32 s34, s34, s17''')
    if 'map0' in ABL:
        a('s_mov_b32 s34, s2')
    if P['stamps']:
        a('v_mov_b32 v%d, 0' % vST)
    stamp(0)
    a('''s_cmp_ge_u32 s3, 4
         s_cbranch_scc1 L_service''')

    vO0, vME, vM, vL, vS, vP, vW, vSA = 2, 6, 7, 8, 9, 10, 12, 14
    BQ, O, AS, DD, TT, RING = 16, 24, 28, 36, 52, 64
    vS2 = 56
    NR, NL = P['npre'], P['nl']
    NP = NR + NL
    a('''; ---- stream wave: K lane map row=(l>>2)&3, chunk=(l>>4)*4+(l&3); V lane map linear
         v_bfe_u32 v2, v0, 2, 2
         v_lshlrev_b32 v2, 8, v2
         v_lshrrev_b32 v3, 4, v0
         v_lshlrev_b32 v3, 6, v3
         v_and_b32 v4, 3, v0
         v_lshlrev_b32 v4, 4, v4
         v_add3_u32 v2, v2, v3, v4
         v_add_u32 v3, 0x1000, v2
         s_lshl_b32 s17, s34, 20
         s_lshl_b32 s16, s3, 13
         s_mov_b32 s10, 0x100000
         s_mov_b32 s11, 0x20000
         s_waitcnt lgkmcnt(0)
         s_add_u32 s8, s4, s17
         s_addc_u32 s9, s5, 0''')
    if P['prio']:
        a('s_setprio %d' % P['prio'])
    Dp = P['D']
    ldn = [0]

    def load(buf, j, wait=True, var=False):
        r = RING + 32 * buf + 4 * j
        if buf >= NR and j % 4 == 0:
            a('s_add_u32 m0, s21, %d' % ((buf - NR) * 8192 + (j >> 2) * 4096))
        if var:
            skip = lab('w')
            a('s_waitcnt vmcnt(%d)\ns_cbranch_vccnz %s' % (P['Dhi'] - 1, skip))
            a.raw('    s_waitcnt vmcnt(%d)' % (Dp[ldn[0] % len(Dp)] - 1))
            a.label(skip)
        elif wait:
            a('s_waitcnt vmcnt(%d)' % (Dp[ldn[0] % len(Dp)] - 1))
        ldn[0] += 1
        if buf >= NR:
            a('buffer_load_dwordx4 v%d, s[8:11], s16 offen offset:%d nt lds' % (vO0 + (j >> 2), (j & 3) * 1024))
        else:
            a('buffer_load_dwordx4 %s, v%d, s[8:11], s16 offen offset:%d nt' % (vr(r, 4), vO0 + (j >> 2), (j & 3) * 1024))
        if j == 7:
            a('s_add_u32 s16, s16, 0x8000')

    n = 0
    for buf in range(NP):
        if buf and buf in (P['qtile'], P['mtile']):
            a('v_mov_b32 v1, %d\nds_write_b32 v56, v1 offset:%d' % (buf, L_PPROG))
        for j in range(8):
            load(buf, j, wait=n >= min(Dp))
            n += 1
            if n == min(Dp):
                a('''s_barrier
                     s_load_dwordx2 s[24:25], s[0:1], 96
                     s_load_dwordx2 s[36:37], s[0:1], 56
                     s_add_u32 s12, s6, s17
                     s_addc_u32 s13, s7, 0
                     s_mov_b32 s18, 0x3db504f3
                     v_lshlrev_b32 v4, 4, v0
                     v_add_u32 v5, 0x1000, v4
                     v_and_b32 v1, 1, v0
                     v_cmp_eq_u32 vcc, 1, v1
                     v_mov_b32 v6, 0xffff
                     v_mov_b32 v11, 0xffff0000
                     v_cndmask_b32 v6, v6, v11, vcc
                     v_mov_b32 v7, 0xff800000''')
                each(12, 'v_mov_b32 v{r}, 0', r=O)
                a('''v_lshlrev_b32 v1, 8, v1
                     v_lshrrev_b32 v11, 2, v0
                     v_lshl_add_u32 v13, v11, 4, v1
                     s_lshl_b32 s20, s3, 12
                     s_add_u32 s20, s20, %d
                     v_lshl_add_u32 v14, v0, 1, s20
                     s_mul_i32 s21, s3, %d
                     s_add_u32 s21, s21, %d
                     v_add_u32 v58, s21, v4
                     v_mov_b32 v56, 0
                     v_mov_b32 v57, 0
                     s_mov_b32 s26, %d
                     s_mov_b32 s27, 0x20000
                     s_mov_b32 s38, %d
                     s_mov_b32 s39, 0x20000
                     s_mov_b32 s82, 0x05040100
                     s_mov_b32 s83, 0x07060302
                     s_waitcnt lgkmcnt(0)
                     s_load_dword s28, s[24:25], %d''' % (L_SC, 8192 * NL, L_PF, WS_SIZE, 0 if 'noffn' in ABL else 4608 * 1152, WS_EPOCH))
    stamp(1)
    if P['bar2']:
        a('s_barrier     ; #2 (q ready)')
    a('''L_qwait:
         ds_read_b32 v1, v56 offset:%d
         ds_read_b128 v[16:19], v13 offset:%d
         s_waitcnt lgkmcnt(0)
         v_cmp_eq_u32 vcc, 0, v1
         s_cbranch_vccnz L_qwait
         v_and_b32 v1, 2, v0
         v_cmp_eq_u32 vcc, 0, v1
         s_mov_b32 s17, %d
         s_add_u32 s28, s28, 1
         s_and_b32 s28, s28, 0xff''' % (L_QOK, L_Q, (32 - NP) // 2))
    each(4, 'v_cndmask_b32 v{d}, v{s}, 0, vcc', d=BQ + 4, s=BQ)
    each(4, 'v_cndmask_b32 v{s}, 0, v{s}, vcc', s=BQ)
    stamp(2)

    def control():
        a('''v_add_u32 v63, v61, v62
             v_cmp_lt_i32 vcc, s33, v63
             s_mov_b64 exec, 1
             ds_add_rtn_u32 v61, v60, v59 offset:%d
             ds_read_b32 v62, v60 offset:%d
             s_mov_b64 exec, -1
             s_add_u32 s33, s33, 4''' % (L_TRIG, L_BOOST))

    def ktile(buf, refill, slot):
        K = RING + 32 * buf
        if refill:
            a('s_waitcnt lgkmcnt(1)')
            control()
        for p in range(4):
            d = vr(DD + 4 * p, 4)
            a('%s %s, %s, %s, 0' % (MF32, d, vr(K + 8 * p, 4), vr(BQ, 4)))
            if refill:
                load(buf, 2 * p, var=True)
            a('%s %s, %s, %s, %s' % (MF32, d, vr(K + 8 * p + 4, 4), vr(BQ + 4, 4), d))
            if refill:
                load(buf, 2 * p + 1, var=True)
        for step in (1, 2, 3):
            for p in range(4):
                c = (p + step) & 3
                rot = 4 * ((p - c) & 3)
                src1 = DD + 4 * p + p if step == 1 else TT + p
                if step < 3:
                    a('v_add_f32_dpp v%d, v%d, v%d row_ror:%d %s' % (TT + p, DD + 4 * p + c, src1, rot, FULL))
                else:
                    a('v_add_f32_dpp v%d, v%d, v%d row_ror:%d row_mask:0xf bank_mask:0x%x' % (vS, DD + 4 * p + c, src1, rot, 1 << p))
        rbf(vS, vS)
        a('v_mul_f32 v%d, s18, v%d' % (vS, vS))
        rbf(vP, vS)
        a('v_max_f32 v%d, v%d, v%d' % (vM, vM, vP))
        a('ds_write_b16_d16_hi v%d, v%d offset:%d' % (vSA, vP, 128 * slot))

    def vtile(buf, refill, nxt, last=False):
        V = RING + 32 * buf
        a('s_waitcnt lgkmcnt(%d)' % (0 if last else 1))
        a('''v_sub_f32 v{P}, v{S}, v{M}
             v_mul_f32 v{P}, s19, v{P}
             v_exp_f32 v{P}, v{P}'''.format(P=vP, S=vS2 + buf, M=vM))
        if refill:
            control()
        if nxt is not None:
            a('ds_read_u16_d16_hi v%d, v%d offset:%d' % (vS2 + buf, vSA, 128 * nxt))
        a('v_cvt_pk_bf16_f32 v{P}, v{P}, v{P}'.format(P=vP))
        a('v_and_b32_dpp v%d, v%d, v%d quad_perm:[0,0,1,1] %s' % (vW, vP, vME, FULL))
        a('v_and_b32_dpp v%d, v%d, v%d quad_perm:[2,2,3,3] %s' % (vW + 1, vP, vME, FULL))

        def build(jv):
            p, u = jv >> 1, jv & 1
            A = AS + 4 * u
            for t in range(4):
                rot = 4 * ((t - p) & 3)
                pat = 'row_ror:%d' % rot if rot else 'quad_perm:[0,1,2,3]'
                a('v_mov_b32_dpp v%d, v%d %s row_mask:0xf bank_mask:0x%x' % (A + t, vW + u, pat, 1 << t))
        build(0)
        for jv in range(8):
            if jv < 7:
                build(jv + 1)
            if last and jv == 1:
                a('''s_lshl_b32 s21, s3, 10
                     v_add_u32 v1, s21, v4
                     s_lshl_b32 s20, s3, 3
                     v_mov_b32 v2, s20
                     s_lshl_b32 s22, s34, 10
                     s_add_u32 s22, s22, %d
                     v_mov_b32 v11, 0xffffff00
                     L_fwait:
                     ds_read_b32 v3, v60 offset:%d
                     ds_read_b64 v[8:9], v2 offset:%d
                     s_waitcnt lgkmcnt(0)
                     v_readfirstlane_b32 s23, v3
                     s_cmp_eq_u32 s23, 0
                     s_cbranch_scc1 L_fwait''' % (WS_H1O, L_FOK, L_F))
            if last and 7 - jv < max(max(Dp), P['Dhi']):
                a('s_waitcnt vmcnt(%d)' % (7 - jv))
            a('%s %s, %s, %s, %s' % (MF32, vr(O, 4), vr(AS + 4 * (jv & 1), 4), vr(V + 4 * jv, 4), vr(O, 4)))
            if refill:
                load(buf, jv, var=True)

    assert max(Dp) <= 8 and P['Dhi'] <= 8 and 16 % len(Dp) == 0 and NP % 2 == 0 and NL <= NR - 2
    nld = 0
    for t in range(NP):
        if t >= NR:
            a('s_waitcnt lgkmcnt(0)')
        ktile(t if t < NR else t - NR + 2, False, t)
        lt = t - (NR - 1)
        if 0 <= lt < NL:
            assert nld >= max(Dp) and lt + 2 <= t
            for j in range(8):
                a('ds_read_b128 %s, v58 offset:%d' % (vr(RING + 32 * (lt + 2) + 4 * j, 4), lt * 8192 + j * 1024))
        upto = min(16, max(2 * (t + 1) if t < 4 else 0, -(-16 * (t + 1) // NP)))
        while nld < upto:
            load(nld >> 3, nld & 7)
            nld += 1
    assert nld == 16
    a('v_add_u32 v%d, %d, v%d' % (vSA, 128 * NP, vSA))
    a('''v_mov_b32 v59, 1
         v_mov_b32 v60, 0
         v_mov_b32 v61, 0xc0000000
         v_mov_b32 v62, 0
         s_mov_b32 s33, %d''' % (P['th'] - 4))
    a('''L_kloop:
         s_cmp_lg_u32 s17, 1
         s_cbranch_scc1 L_kbody
         s_mov_b32 s8, s12
         s_mov_b32 s9, s13
         s_lshl_b32 s16, s3, 13
         v_mov_b32 v2, v4
         v_mov_b32 v3, v5
         L_kbody:''')
    ktile(0, True, 0)
    ktile(1, True, 1)
    a('''v_add_u32 v%d, 256, v%d
         s_sub_u32 s17, s17, 1
         s_cmp_lg_u32 s17, 0
         s_cbranch_scc1 L_kloop''' % (vSA, vSA))
    stamp(5)
    a.label('L_vphase')
    a('v_subrev_u32 v%d, 0x1000, v%d' % (vSA, vSA))
    a('ds_read_u16_d16_hi v%d, v%d\nds_read_u16_d16_hi v%d, v%d offset:128' % (vS2, vSA, vS2 + 1, vSA))
    allred('v_max_f32', [vM], [1], first=1)
    a('''s_lshl_b32 s20, s3, 3
         v_lshl_add_u32 v1, v0, 2, s20
         s_mov_b64 exec, 3
         ds_write_b32 v1, v7 offset:%d
         s_mov_b64 exec, 1
         ds_add_u32 v60, v59 offset:%d
         s_mov_b64 exec, -1
         s_mov_b32 s17, 15''' % (L_SS, L_KCNT))

    a.label('L_vloop')
    vtile(0, True, 2)
    vtile(1, True, 3)
    a('''v_add_u32 v%d, 256, v%d
         s_sub_u32 s17, s17, 1
         s_cmp_lg_u32 s17, 0
         s_cbranch_scc1 L_vloop''' % (vSA, vSA))
    stamp(3)
    if min(P['trig'], P['trigo']) < 0:
        a('s_mov_b64 exec, 1\nds_add_u32 v60, v59 offset:%d\ns_mov_b64 exec, -1' % L_TRIG)
    vtile(0, False, None)
    vtile(1, False, None, last=True)
    SO = 64
    for r in range(4):
        a('v_mul_f32 v%d, v%d, v%d' % (O + r, O + r, 8 + (r >> 1)))
    a('''ds_write_b128 v1, v[24:27] offset:%d
         s_mov_b64 exec, 1
         ds_add_rtn_u32 v9, v60, v59 offset:%d
         s_mov_b64 exec, -1''' % (L_SO, L_SCNT))
    for w in range(4):
        a('ds_read_b128 %s, v4 offset:%d' % (vr(SO + 4 * w, 4), L_SO + 1024 * w))
    stamp(4)
    a('''s_waitcnt lgkmcnt(2)
         v_readfirstlane_b32 s20, v9
         v_pk_add_f32 v[64:65], v[64:65], v[68:69]
         v_pk_add_f32 v[66:67], v[66:67], v[70:71]
         s_cmp_lg_u32 s20, 3
         s_cbranch_scc1 L_sdone
         s_waitcnt lgkmcnt(0)
         v_pk_add_f32 v[72:73], v[72:73], v[76:77]
         v_pk_add_f32 v[74:75], v[74:75], v[78:79]
         s_cmp_eq_u32 s23, 2
         v_pk_add_f32 v[64:65], v[64:65], v[72:73]
         v_pk_add_f32 v[66:67], v[66:67], v[74:75]''')
    each(4, 'v_and_or_b32 v{r}, v{r}, v11, s28', r=64)
    a('''s_cbranch_scc0 L_h1far
         buffer_store_dwordx4 v[64:67], v4, s[24:27], s22 offen
         s_branch L_h1done
         L_h1far:
         buffer_store_dwordx4 v[64:67], v4, s[24:27], s22 offen %s
         L_h1done:''' % ST)
    stamp(6)
    a.label('L_sdone')
    QB = 128
    a('''s_mov_b32 s29, s3
         s_cmp_eq_u32 s29, 3
         s_cbranch_scc1 L_sexit
         L_stick:
         ds_read_b32 v9, v60 offset:{tick}
         s_waitcnt lgkmcnt(0)
         v_readfirstlane_b32 s21, v9
         s_cmp_eq_u32 s21, 0
         s_cbranch_scc1 L_stick
         s_sub_u32 s21, s21, 1
         s_cmp_ge_u32 s21, 72
         s_cbranch_scc1 L_sexit
         s_setprio 0
         v_lshrrev_b32 v16, 4, v0
         v_and_b32 v17, 15, v0
         s_mul_i32 s16, s21, {rows}
         s_mul_i32 s20, s29, 384
         s_add_u32 s16, s16, s20
         s_mul_i32 s12, s29, 20480
         s_add_u32 s12, s12, {pf}
         s_lshl_b32 s13, s29, 12
         s_add_u32 s13, s13, {sc}
         s_sub_u32 s14, s12, s13
         v_bfe_u32 v1, v0, 3, 2
         v_lshrrev_b32 v2, 5, v0
         v_lshl_add_u32 v1, v2, 3, v1
         v_mul_u32_u24 v1, 1152, v1'''.format(tick=L_TICK, rows=64 * 1152, pf=L_PF + 72 * 1024, sc=L_SC))
    dma_chunk(2, 3)
    a('v_add_u32 v1, v1, v2\nv_lshrrev_b32 v2, 2, v0')
    tr_addrs(28, 2, 's12', 3)
    each(4, 'v_subrev_u32 v{d}, s14, v{x}', d=32, x=28)
    if P['w2after']:
        a('''L_w2wait:
             s_sleep 2
             ds_read_b32 v9, v60 offset:20
             s_waitcnt lgkmcnt(0)
             v_cmp_gt_u32 vcc, 4, v9
             s_cbranch_vccnz L_w2wait''')
    for u in range(6):
        ks, blk = divmod(u, 3)
        for t in range(4):
            a('s_add_u32 m0, %s, %d' % ('s12' if u < 5 else 's13', (4096 * u if u < 5 else 0) + 1024 * t))
            a('s_add_u32 s20, s16, %d' % ((32 * ks + 16 * (t & 1) + 4 * (t >> 1)) * 1152 + 128 * blk))
            pace(4 * u + t, P['pace_2'])
            a('buffer_load_dwordx4 v1, s[36:39], s20 offen %s lds' % WPOL)
    a('''s_lshl_b32 s20, s29, 7
         s_add_u32 s20, s20, {hv}
         v_and_b32 v18, 3, v0
         v_lshlrev_b32 v18, 4, v18
         v_lshrrev_b32 v19, 2, v0
         v_add_u32 v18, v18, v19
         v_lshl_add_u32 v18, v18, 1, s20
         v_lshl_add_u32 v19, v16, 4, s20
         v_lshlrev_b32 v23, 2, v0
         v_lshrrev_b32 v17, 2, v17
         v_mov_b32 v16, {zero}'''.format(hv=L_HV, zero=L_ZERO))
    for blk in range(3):
        a('v_cmp_eq_u32 vcc, %d, v17\nv_cndmask_b32 v%d, v16, v19, vcc' % (blk, 20 + blk))
    a('''s_mul_i32 s22, s21, 2304
         s_mul_i32 s20, s29, 768
         s_add_u32 s22, s22, s20
         s_add_u32 s22, s22, %d''' % WS_H3)
    for u in range(6):
        a('s_waitcnt vmcnt(%d) lgkmcnt(4)' % (20 - 4 * u))
        for j in range(4):
            for h in range(2):
                a('ds_read_b64_tr_b16 %s, v%d offset:%d' % (vr(QB + 16 * u + 4 * j + 2 * h, 2), (28 if u < 5 else 32) + j, (4096 * u if u < 5 else 0) + 2048 * h))
    stamp(7)
    a('''L_await:
         s_sleep 2
         ds_read_b32 v9, v60 offset:{ac}
         s_waitcnt lgkmcnt(0)
         v_cmp_gt_u32 vcc, 3, v9
         s_cbranch_vccnz L_await
         L_bwait:
         ds_read_b32 v9, v60 offset:{bc}
         ds_read2st64_b32 v[24:25], v23 offset0:{p0} offset1:{p1}
         ds_read2st64_b32 v[26:27], v23 offset0:{p2} offset1:{p3}
         s_waitcnt lgkmcnt(0)
         v_cmp_gt_u32 vcc, 4, v9
         v_add_f32 v24, v24, v25
         v_add_f32 v26, v26, v27
         s_cbranch_vccnz L_bwait
         v_add_f32 v24, v24, v26
         v_maximum3_f32 v24, v24, 0, 0
         v_cvt_pk_bf16_f32 v24, v24, v24
         ds_write_b16 v18, v24'''.format(ac=L_ACNT, bc=L_BCNT, p0=L_PART // 256, p1=L_PART // 256 + 1, p2=L_PART // 256 + 2, p3=L_PART // 256 + 3))
    for ks in range(2):
        for blk in range(3):
            a('ds_read_b128 %s, v%d offset:%d' % (vr(64 + 4 * (ks * 3 + blk), 4), 20 + blk, 64 * ks))
    for u in range(6):
        a('s_waitcnt lgkmcnt(%d)' % (5 - u))
        for cc in range(4):
            d = vr(DD + 4 * cc, 4)
            a('%s %s, %s, %s, %s' % (MF32, d, vr(64 + 4 * u, 4), vr(QB + 16 * u + 4 * cc, 4), d if u else '0'))
    for cc in range(4):
        a('v_and_or_b32 v%d, v%d, v11, s28' % (24 + cc, DD + 4 * cc))
    a('''s_mov_b32 exec_hi, 0xffff
         buffer_store_dwordx4 v[24:27], v4, s[24:27], s22 offen %s
         s_mov_b64 exec, -1''' % ST)
    stamp(8)
    a.label('L_sexit')
    stamp_flush()
    a('s_endpgm')
    a.fence()

    sW, sWS, sIN, sOUT, sDBG = 's[36:39]', 's[40:43]', 's[44:47]', 's[48:51]', 's[52:55]'
    RAW = 16
    XB, DR = 64, 84
    PB = 116
    XI, XF = 204, 212
    vSH, vSC, vX, vGA = 228, 232, 236, 240
    vGQ, vN, vXVw, vXVr, vPW, vMK, vA1, vA2, vA3, vA4, vA5, vXo = range(244, 256)
    a.label('L_service')
    a('''s_load_dwordx2 s[56:57], s[0:1], 0
         s_load_dwordx4 s[60:63], s[0:1], 24
         s_load_dwordx4 s[64:67], s[0:1], 48
         s_load_dwordx4 s[68:71], s[0:1], 64
         s_load_dwordx4 s[72:75], s[0:1], 80
         s_load_dwordx2 s[76:77], s[0:1], 96
         v_mov_b32 v1, 0
         v_lshlrev_b32 v2, 2, v0
         ds_write_b32 v2, v1
         s_sub_u32 s33, s3, 4
         v_lshrrev_b32 v{GQ}, 4, v0
         v_and_b32 v{N}, 15, v0
         v_lshlrev_b32 v14, 4, v0
         s_mov_b32 s39, 0x20000
         s_mov_b32 s42, {wsz}
         s_mov_b32 s43, 0x20000
         s_mov_b32 s46, 1152
         s_mov_b32 s47, 0x20000
         s_mov_b32 s50, 1152
         s_mov_b32 s51, 0x20000
         s_mov_b32 s54, 256
         s_mov_b32 s55, 0x20000
         s_mov_b32 s81, 0
         s_mov_b32 s82, 0x05040100
         s_mov_b32 s83, 0x07060302
         s_mov_b32 s84, -1
         s_mov_b32 s85, 15
         ; prologue role: s89 = 0 wq slice s80, 1 w_mod slice s80, 2 none; s31 = row half; s29 = row quarter
         {rolemap}
         s_lshl_b32 s87, s32, 2
         s_add_u32 s87, s87, s86
         s_lshl_b32 s80, s86, 4
         s_add_u32 s80, s80, s32
         s_cmp_eq_u32 s89, 0
         s_cselect_b32 s80, s87, s80
         s_cselect_b32 s87, 64, 54
         s_cmp_lt_u32 s80, s87
         s_cselect_b32 s89, s89, 2
         s_cmp_lt_u32 s33, 2
         s_cselect_b32 s89, s89, 2
         s_lshl_b32 s29, s31, 1
         s_add_u32 s29, s29, s33
         s_mov_b32 s58, {hs}
         s_waitcnt lgkmcnt(0)
         s_barrier     ; #1
         s_load_dword s35, s[76:77], {ep}
         s_mov_b32 s40, s76
         s_mov_b32 s41, s77
         s_mov_b32 s48, s72
         s_mov_b32 s49, s73
         s_mov_b32 s52, s74
         s_mov_b32 s53, s75
         s_cmp_eq_u32 s89, 1
         s_cselect_b32 s36, s70, s60
         s_cselect_b32 s37, s71, s61
         s_cselect_b32 s78, 1280, 0
         s_cselect_b32 s44, s68, s56
         s_cselect_b32 s45, s69, s57
         s_sub_u32 s78, 8192, s78
         s_mul_i32 s38, s78, {rows}
         s_mul_i32 s86, s33, {xs}
         s_add_u32 s86, s86, {xv}
         v_lshl_add_u32 v{XVw}, v0, 3, s86
         v_mul_u32_u24 v1, 72, v{GQ}
         v_add_u32 v{XVr}, s86, v1
         s_lshl_b32 s86, s33, 8
         v_add_u32 v{PW}, s86, v14
         s_cmp_eq_u32 s89, 2
         s_cbranch_scc1 L_norole'''.format(GQ=vGQ, N=vN, wsz=WS_SIZE, ep=WS_EPOCH, rows=0 if 'noprow' in ABL else 576,
                                           xs=XV_STRIDE, xv=L_XV, XVw=vXVw, XVr=vXVr, PW=vPW, hs=HS, rolemap=('''s_lshr_b32 s32, s34, 4
         s_bfe_u32 s86, s34, 0x20001
         s_bfe_u32 s31, s34, 0x10003
         s_and_b32 s89, s34, 1''', '''s_lshr_b32 s32, s2, 4
         s_lshr_b32 s86, s2, 5
         s_lshr_b32 s87, s2, 1
         s_add_u32 s86, s86, s87
         s_and_b32 s86, s86, 3
         s_bfe_u32 s31, s2, 0x10003
         s_xor_b32 s89, s32, s2
         s_and_b32 s89, s89, 1''')[P['pmap']]))
    stamp(17)

    def gemv_loads(quarter, w, wfast=None, sig=0):
        a('''s_mul_i32 s86, %s, 144
             v_mul_u32_u24 v1, 36, v%d
             v_add_u32 v1, s86, v1
             v_mul_lo_u32 v1, v1, s78
             v_lshl_add_u32 v1, v%d, 3, v1
             s_lshl_b32 s79, s80, 7''' % (quarter, vGQ, vN))
        for i in range(36):
            if wfast is None or wfast == w:
                pace(i, w)
            elif w and i >= w:
                skip = lab('pc')
                pace(i, wfast)
                a('s_cbranch_vccnz %s' % skip)
                pace(i, w)
                a.label(skip)
            a('buffer_load_dwordx2 %s, v1, %s, s79 offen %s' % (vr(PB + 16 + 2 * i, 2), sW, WPOL))
            if i < 35:
                a('s_add_u32 s79, s79, s78')
            if sig and i + 1 == sig:
                a('v_mov_b32 v2, 0\nv_mov_b32 v3, 1\ns_mov_b64 exec, 1\nds_add_u32 v2, v3 offset:20\ns_mov_b64 exec, -1')

    def gemv_perm():
        for u in range(4):
            blk_perm(PB, u)
        blk_perm(PB, 4, rows=4)

    def gemv_run():
        a('s_mov_b64 exec, -1')
        a('ds_read_b64 %s, v%d offset:64' % (vr(XB + 16, 2), vXVr))
        for z in range(4):
            a('ds_read2_b64 %s, v%d offset0:%d offset1:%d' % (vr(XB + 4 * z, 4), vXVr, 2 * z, 2 * z + 1))
        a('s_waitcnt lgkmcnt(4)')
        for cc in range(4):
            a('%s %s, %s, %s, 0' % (MF16, vr(DR + 16 + 4 * cc, 4), vr(XB + 16, 2), vr(PB + 64 + 2 * cc, 2)))
        for z in range(4):
            a('s_waitcnt lgkmcnt(%d)' % (3 - z))
            for cc in range(4):
                d = vr(DR + 4 * cc, 4)
                a('%s %s, %s, %s, %s' % (MF32, d, vr(XB + 4 * z, 4), vr(PB + 16 * z + 4 * cc, 4), d if z else '0'))
        for cc in range(4):
            a('v_add_f32 v%d, v%d, v%d' % (4 + cc, DR + 4 * cc, DR + 16 + 4 * cc))
        a('''s_mov_b64 exec, 0xffff
             ds_write_b128 v%d, v[4:7] offset:%d''' % (vPW, L_PART))

    def unpack(dst, src):
        for i, r in enumerate(src):
            a('v_lshlrev_b32 v%d, 16, v%d' % (dst + 2 * i, r))
            a('v_and_b32 v%d, 0xffff0000, v%d' % (dst + 2 * i + 1, r))

    def ln_finish(X):
        a('''v_mul_f32 v2, 0x3ae38e39, v2
             v_mul_f32 v3, 0x3ae38e39, v3
             v_fma_f32 v3, -v2, v2, v3
             v_cvt_pk_bf16_f32 v2, 0, v2
             v_max_f32 v3, 0, v3
             v_cvt_pk_bf16_f32 v3, 0, v3
             v_sub_f32 v{x0}, v{x0}, v2
             v_add_f32 v3, 0x3727c5ac, v3
             v_sub_f32 v{x1}, v{x1}, v2
             v_cvt_pk_bf16_f32 v3, 0, v3
             v_sub_f32 v{x2}, v{x2}, v2
             v_sqrt_f32 v3, v3
             v_sub_f32 v{x3}, v{x3}, v2
             v_cvt_pk_bf16_f32 v{x0}, 0, v{x0}
             v_cvt_pk_bf16_f32 v3, 0, v3
             v_cvt_pk_bf16_f32 v{x1}, 0, v{x1}
             v_rcp_f32 v3, v3
             v_cvt_pk_bf16_f32 v{x2}, 0, v{x2}
             v_cvt_pk_bf16_f32 v{x3}, 0, v{x3}'''.format(x0=X, x1=X + 1, x2=X + 2, x3=X + 3))
        each(4, 'v_mul_f32 v{x}, v{x}, v3', x=X)
        each(4, 'v_cvt_pk_bf16_f32 v{x}, 0, v{x}', x=X)

    def modulate(X):
        each(4, 'v_mul_f32 v{x}, v{x}, v{c}', x=X, c=vSC)
        each(4, 'v_cvt_pk_bf16_f32 v{x}, 0, v{x}', x=X)
        each(4, 'v_add_f32 v{x}, v{x}, v{s}', x=X, s=vSH)
        a('''v_cvt_pk_bf16_f32 v2, v%d, v%d
             v_cvt_pk_bf16_f32 v3, v%d, v%d
             ds_write_b64 v%d, v[2:3]''' % (X, X + 1, X + 2, X + 3, vXVw))

    def wait_lds(off, val, sl):
        loop = lab('wl')
        a('''%s:
             s_sleep %d
             ds_read_b32 v2, v1 offset:%d
             s_waitcnt lgkmcnt(0)
             v_cmp_gt_u32 vcc, %s, v2
             s_cbranch_vccnz %s''' % (loop, sl, off, val, loop))

    def spin_tail(loop, sl):
        if sl:
            a('s_sleep %d' % sl)
        a('''s_add_u32 s81, s81, 1
             s_cmp_lt_u32 s81, %d
             s_cbranch_scc1 %s''' % (P['spin'], loop))

    def poll_nib(loads, regs):
        if 'nopoll' in ABL:
            return
        loop, done = lab('pt'), lab('ptd')
        a.label(loop)
        for l in loads:
            a(l + ' ' + LD)
        a('s_waitcnt vmcnt(0)')
        for r in regs:
            a('v_xor_b32 v%d, s30, v%d' % (r, r))
        a('v_or_b32 v2, v%d, v%d' % (regs[0], regs[1]))
        for i in range(2, len(regs), 2):
            a('v_or3_b32 v2, v2, v%d, v%d' % (regs[i], regs[i + 1]))
        a('''v_and_b32 v2, 15, v2
             v_cmp_ne_u32 vcc, 0, v2
             s_cbranch_vccz %s''' % done)
        spin_tail(loop, P['psl'])
        a.label(done)

    def poll_masked(groups, hi='-1', base=4, sl=None, between=None):
        loop, done = lab('pm'), lab('pmd')
        ms = ['s[%d:%d]' % (base + 2 * i, base + 1 + 2 * i) for i in range(len(groups))]
        for i in range(len(groups)):
            a('s_mov_b32 s%d, -1\ns_mov_b32 s%d, %s' % (base + 2 * i, base + 1 + 2 * i, hi))
        chk = lab('pmc')
        if between:
            for loads, quads in groups:
                for l in loads:
                    a(l + ' ' + LD)
            between()
            a('s_branch %s' % chk)
        a.label(loop)
        for m, (loads, quads) in zip(ms, groups):
            skip = lab('sk')
            a('s_mov_b64 exec, %s\ns_cbranch_execz %s' % (m, skip))
            for l in loads:
                a(l + ' ' + LD)
            a.label(skip)
        a.label(chk)
        a('s_mov_b64 vcc, 0\ns_waitcnt vmcnt(0)')
        for m, (loads, quads) in zip(ms, groups):
            skip = lab('sk')
            a('s_mov_b64 exec, %s\ns_cbranch_execz %s' % (m, skip))
            for qi, r in enumerate(quads):
                each(4, 'v_xor_b32 v{r}, s28, v{r}', r=r)
                if qi == 0:
                    a('v_or3_b32 v2, v%d, v%d, v%d' % (r, r + 1, r + 2))
                    last = r + 3
                else:
                    a('v_or3_b32 v2, v2, v%d, v%d' % (r, r + 1))
                    a('v_or3_b32 v2, v2, v%d, v%d' % (r + 2, r + 3))
            a('''v_or_b32 v2, v2, v%d
                 v_and_b32 v2, 0xff, v2
                 v_cmp_ne_u32 %s, 0, v2
                 s_or_b64 vcc, vcc, %s''' % (last, m, m))
            a.label(skip)
        a('s_cbranch_vccz %s' % done)
        spin_tail(loop, P['sleep'] if sl is None else sl)
        a.label(done)
        a('s_mov_b64 exec, -1')

    def gate(addr, maxmiss):
        if maxmiss >= 8:
            return
        loop, done = lab('gt'), lab('gtd')
        a('s_mov_b64 exec, 0xff')
        a.label(loop)
        a('''buffer_load_dwordx2 v[4:5], v%d, %s, 0 offen %s
             s_waitcnt vmcnt(0)
             v_xor_b32 v4, s28, v4
             v_xor_b32 v5, s28, v5
             v_or_b32 v4, v4, v5
             v_and_b32 v4, 0xff, v4
             v_cmp_ne_u32 vcc, 0, v4
             s_bcnt1_i32_b64 s86, vcc
             s_cmp_le_u32 s86, %d
             s_cbranch_scc1 %s''' % (addr, sWS, LD, maxmiss, done))
        spin_tail(loop, P['gsleep'])
        a.label(done)

    def load_shift_scale(first, quarter):
        a('''s_mul_i32 s86, %s, 576
             s_add_u32 s86, s86, %d
             v_add_u32 v1, s86, v14''' % (quarter, WS_MOD + first * 2304))
        poll_nib(['buffer_load_dwordx4 %s, v1, %s, %s offen offset:%d' % (vr(RAW + 8 * h + 4 * k, 4), sWS, ('0', 's58')[h], 2304 * k)
                  for h in range(2) for k in range(2)], list(range(RAW, RAW + 16)))
        each(8, 'v_add_f32 v{d}, v{x}, v{y}', d=vSH, x=RAW, y=RAW + 8)
        each(8, 'v_cvt_pk_bf16_f32 v{d}, 0, v{d}', d=vSH)
        each(4, 'v_add_f32 v{c}, 1.0, v{c}', c=vSC)
        each(4, 'v_cvt_pk_bf16_f32 v{c}, 0, v{c}', c=vSC)

    each(8, 'v_mov_b32 v{r}, 0', r=XI)
    a('''s_mov_b64 exec, s[84:85]
         v_lshlrev_b32 v2, 3, v0''')
    for k in range(4):
        a('''s_add_u32 s86, s29, %d
             s_and_b32 s86, s86, 3
             s_mul_i32 s86, s86, 288
             buffer_load_dwordx2 %s, v2, %s, s86 offen nt''' % (k, vr(XI + 2 * k, 2), sIN))
    a('''s_mov_b64 exec, -1
         s_cmp_lt_u32 s80, 18
         s_cselect_b32 s86, s89, 0
         s_cmp_eq_u32 s86, 1
         s_cselect_b64 vcc, -1, 0''')
    a('''s_lshl_b32 s86, s80, 2
         s_or_b32 s86, s86, s29
         s_lshl_b32 s86, s86, 2
         s_or_b32 s86, s86, s89
         s_cmp_lg_u32 s86, 1
         s_cbranch_scc1 L_nozero
         v_mul_u32_u24 v1, 0x1100, v0
         v_mov_b32 v2, 0
         v_mov_b32 v3, 0
         s_mov_b32 s86, %d
         s_mov_b64 exec, 0x%x
         buffer_store_dwordx2 v[2:3], v1, %s, s86 offen %s
         s_mov_b64 exec, -1
         L_nozero:''' % (WS_TK, (1 << (8 + (P['mile'][2] if P['mile'] else 0))) - 1, sWS, ST))
    gemv_loads('s29', P['ppace'], P['apace'])
    stamp(18)
    a('''s_waitcnt lgkmcnt(0)
         %s
         s_waitcnt vmcnt(36)''' % TAGGEN)
    unpack(XF, range(XI, XI + 8))
    a('''s_cmp_eq_u32 s89, 0
         s_cbranch_scc1 L_qrole''')
    a('s_mov_b64 exec, s[84:85]\ns_mov_b32 s86, 0x32a57060\ns_mov_b32 s87, 0x7f7fffff')
    for ins in ['v_mul_f32 v{t}, 0xbfb8aa3b, v{x}',
                'v_fma_f32 v{r}, -v{x}, s19, -v{t}',
                'v_exp_f32 v{t}, v{t}',
                'v_fma_f32 v{r}, -v{x}, s86, v{r}',
                'v_mul_f32 v{r}, 0x3f317218, v{r}',
                'v_med3_f32 v{r}, v{r}, -0.5, 0.5',
                'v_min_f32 v{e}, s87, v{t}',
                'v_fma_f32 v{t}, v{e}, v{r}, v{t}',
                'v_add_f32 v{t}, 1.0, v{t}',
                'v_rcp_f32 v{r}, v{t}',
                'v_mul_f32 v{e}, v{x}, v{r}',
                'v_fma_f32 v{f}, -v{e}, v{t}, v{x}',
                'v_fma_f32 v{e}, v{f}, v{r}, v{e}',
                'v_div_fixup_f32 v{t}, v{e}, v{t}, v{x}']:
        each(4, ins, t=4, r=8, e=XF + 4, f=XF + 8, x=XF)
    a('''v_cvt_pk_bf16_f32 v2, v4, v5
         v_cvt_pk_bf16_f32 v3, v6, v7
         ds_write_b64 v%d, v[2:3]
         s_mov_b64 exec, -1
         s_mov_b32 s88, %d
         s_branch L_wperm''' % (vXVw, WS_MOD))
    a.fence()
    a.label('L_qrole')
    a('v_add_f32 v2, v%d, v%d\nv_mul_f32 v3, v%d, v%d' % (XF, XF + 1, XF, XF))
    a('v_fmac_f32 v3, v%d, v%d' % (XF + 1, XF + 1))
    for i in range(2, 16):
        a('v_add_f32 v2, v2, v%d\nv_fmac_f32 v3, v%d, v%d' % (XF + i, XF + i, XF + i))
    allred('v_add_f32', [2, 3], [4, 5])
    ln_finish(XF)
    a('s_mov_b32 s88, %d' % WS_Q)
    a.label('L_wperm')
    a('s_waitcnt vmcnt(0)')
    stamp(1)
    gemv_perm()
    a('''s_cmp_eq_u32 s89, 1
         s_cbranch_scc1 L_gemv_run
         s_mov_b64 exec, s[84:85]''')
    if P['mtile']:
        a('v_mov_b32 v1, 0')
        wait_lds(L_PPROG, P['mtile'], 4)
    load_shift_scale(0, 's29')
    stamp(2)
    modulate(XF)
    a.label('L_gemv_run')
    gemv_run()
    a('''s_mov_b64 exec, 1
         v_mov_b32 v1, 0
         v_mov_b32 v2, 1
         ds_add_rtn_u32 v2, v1, v2 offset:%d
         s_mov_b64 exec, 0xffff''' % L_CNT)
    a('''ds_read_b128 v[4:7], v14 offset:{p0}
         ds_read_b128 v[8:11], v14 offset:{p1}
         s_lshl_b32 s86, s80, 8
         s_add_u32 s88, s88, s86
         s_mul_i32 s86, s31, {hs}
         s_add_u32 s88, s88, s86
         s_waitcnt lgkmcnt(0)
         v_readfirstlane_b32 s86, v2'''.format(p0=L_PART, p1=L_PART + 256, hs=HS))
    each(4, 'v_add_f32 v{x}, v{x}, v{y}', x=4, y=8)
    each(4, 'v_add_u32 v{x}, 8, v{x}', x=4)
    each(4, 'v_and_or_b32 v{x}, v{x}, -16, s30', x=4)
    a('''s_cmp_lg_u32 s86, 1
         s_cbranch_scc1 L_pro_done
         buffer_store_dwordx4 v[4:7], v14, %s, s88 offen %s''' % (sWS, '' if 'nopoll' in ABL else ST))
    stamp(3)
    a('s_branch L_pro_done')
    a.fence()
    a.label('L_norole')
    a('s_waitcnt lgkmcnt(0)\n' + TAGGEN)
    a.label('L_pro_done')
    a('''s_mov_b64 exec, -1
         s_cmp_lg_u32 s33, 2
         s_cbranch_scc1 L_q_done
         v_mov_b32 v1, 0''')
    if P['qtile']:
        wait_lds(L_PPROG, P['qtile'], 4)
    a('''s_lshr_b32 s86, s34, 4
         s_lshl_b32 s86, s86, 10
         s_add_u32 s86, s86, %d
         v_add_u32 v1, s86, v14''' % WS_Q)
    if P['qdelay']:
        a('s_sleep %d' % P['qdelay'])
    poll_nib(['buffer_load_dwordx4 v[4:7], v1, %s, 0 offen' % sWS, 'buffer_load_dwordx4 v[8:11], v1, %s, s58 offen' % sWS], list(range(4, 12)))
    each(4, 'v_add_f32 v{x}, v{x}, v{y}', x=4, y=8)
    a('''v_lshlrev_b32 v1, 3, v0
         v_cvt_pk_bf16_f32 v4, v4, v5
         v_cvt_pk_bf16_f32 v5, v6, v7
         ds_write_b64 v1, v[4:5] offset:%d
         v_mov_b32 v1, 0
         v_mov_b32 v2, 1
         ds_write_b32 v1, v2 offset:%d''' % (L_Q, L_QOK))
    stamp(4)
    a.label('L_q_done')
    if P['bar2']:
        a('s_waitcnt lgkmcnt(0)\ns_barrier     ; #2')
    else:
        a('v_mov_b32 v1, 0')
        wait_lds(L_QOK, 1, 8)
    stamp(5)
    a('''v_mov_b32 v{MK}, 0xffffff00
         s_mov_b32 s44, s56
         s_mov_b32 s45, s57
         s_mul_i32 s86, s33, 192
         v_add_u32 v1, s86, v0
         v_lshlrev_b32 v{A4}, 2, v1
         v_lshlrev_b32 v2, 1, v1
         s_getreg_b32 s4, hwreg(HW_REG_XCC_ID, 0, 4)
         s_and_b32 s87, s4, {rm}
         s_mul_i32 s87, s87, {h2r}
         s_mul_i32 s86, s33, 6144
         s_add_u32 s86, s86, s87
         s_add_u32 s86, s86, {h2}
         v_add_u32 v{A3}, s86, v14
         v_lshl_add_u32 v{A5}, v{N}, 8, s86
         s_mul_i32 s86, s33, 576
         v_add_u32 v{Xo}, s86, v14
         v_mov_b32 v{A1}, 0
         v_mov_b32 v{A2}, 0
         s_mov_b32 s22, 4096
         s_and_b32 s15, s4, 7
         s_mul_i32 s4, s4, 0x1400
         s_add_u32 s4, s4, {pg}
         s_lshl_b32 s6, s35, 9
         s_movk_i32 s7, 0x200
         s_sub_u32 s86, s2, 72
         s_cmp_ge_u32 s86, {ncand}
         s_cbranch_scc1 L_prep_skip
         s_cmp_eq_u32 s33, 3
         s_cbranch_scc1 L_prep_join'''.format(GQ=vGQ, N=vN, A4=vA4, A3=vA3, A1=vA1, A2=vA2, A5=vA5, h2=WS_H2, MK=vMK, Xo=vXo, ncand=72 if P['sffn'] else 184, rm=P['nrep'] - 1, h2r=H2R, pg=WS_PG))
    for i in range(3):
        a('buffer_load_ushort v%d, v2, %s, 0 offen offset:%d nt' % (vX + i, sIN, 128 * i))
    a('v_add_u32 v1, %d, v%d' % (WS_MOD + 2 * 2304, vA4))
    poll_nib(['buffer_load_dword v%d, v1, %s, %s offen offset:%d' % (4 + 3 * h + i, sWS, ('0', 's58')[h], 256 * i) for h in range(2) for i in range(3)],
             list(range(4, 10)))
    a('s_waitcnt vmcnt(0)')
    each(3, 'v_lshlrev_b32 v{x}, 16, v{x}', x=vX)
    each(3, 'v_add_f32 v{g}, v{x}, v{y}', g=vGA, x=4, y=7)
    each(3, 'v_cvt_pk_bf16_f32 v{g}, 0, v{g}', g=vGA)
    a.label('L_prep_join')
    a('s_mov_b64 exec, s[84:85]')
    load_shift_scale(3, 's33')
    a('s_mov_b64 exec, -1')
    a.label('L_prep_skip')
    stamp(6)
    STEPS = 4 * (32 - NP + 30)

    def wo_dma(q):
        a('''s_and_b32 s29, s2, 7
             s_lshr_b32 s32, s2, 3
             s_mov_b32 s36, s62
             s_mov_b32 s37, s63
             s_mov_b32 s38, {szo}
             v_bfe_u32 v3, v0, 3, 2
             v_lshrrev_b32 v2, 5, v0
             v_lshl_add_u32 v3, v3, 3, v2
             v_mul_u32_u24 v3, 1152, v3
             s_lshl_b32 s86, s29, 9
             s_lshl_b32 s87, {q}, 1
             s_add_u32 s86, s86, s87
             s_mul_i32 s86, s86, 1152
             s_lshl_b32 s79, s32, 7
             s_add_u32 s79, s79, s86
             s_lshl_b32 s87, {q}, 14
             s_add_u32 s87, s87, {pf}'''.format(pf=L_PF, q=q, szo=0 if 'nowo' in ABL else 4096 * 1152))
        dma_chunk(2, 4)
        a('v_add_u32 v3, v3, v2')
        for t in range(16):
            gi, m = t >> 3, (t >> 1) & 3
            a('s_add_u32 m0, s87, %d' % (1024 * t))
            a('s_add_u32 s86, s79, %d' % ((gi * 256 + (t & 1) * 128 + 32 * m) * 1152))
            if P['wo_early']:
                a('s_waitcnt vmcnt(%d)' % (P['pace_o'] - 1))
            else:
                pace(t, P['pace_o'])
            a('buffer_load_dwordx4 v3, %s, s86 offen %s lds' % (sW, WPOL))

    a('''v_mov_b32 v1, 0
         s_cmp_eq_u32 s33, 0
         s_cbranch_scc1 L_control
         s_cmp_lg_u32 s33, 1
         s_cbranch_scc1 L_w23''')
    if 'nostats' in ABL:
        a('v_mov_b32 v2, 2\nds_write_b32 v1, v2 offset:%d\ns_branch L_wait_ticket' % L_FOK)
    wait_lds(L_KCNT, 4, 16)
    a('''ds_read_b128 v[4:7], v1 offset:{ss}
         ds_read_b128 v[8:11], v1 offset:{ss2}
         v_and_b32 v2, 31, v0
         s_and_b32 s86, s2, 7
         s_lshl_b32 s86, s86, 2
         v_lshl_add_u32 v2, v2, 5, s86
         buffer_load_dword v3, v2, {ws}, s4 offen {ld}
         v_add_u32 v12, {sc}, v14
         v_mov_b32 v22, 0
         v_mov_b32 v23, 0
         s_mov_b32 s86, 16
         s_waitcnt lgkmcnt(0)
         v_max3_f32 v20, v4, v6, v8
         v_max3_f32 v21, v5, v7, v9
         v_max_f32 v20, v20, v10
         v_max_f32 v21, v21, v11
         L_lsum:
         ds_read_b128 v[4:7], v12
         v_add_u32 v12, 1024, v12
         s_waitcnt lgkmcnt(0)'''.format(ss=L_SS, ss2=L_SS + 16, ws=sWS, ld=LD, sc=L_SC))
    each(4, 'v_lshlrev_b32 v{d}, 16, v{x}', d=8, x=4)
    each(4, 'v_and_b32 v{x}, 0xffff0000, v{x}', x=4)
    each(4, 'v_sub_f32 v{d}, v{d}, v20', d=8)
    each(4, 'v_sub_f32 v{x}, v{x}, v21', x=4)
    each(8, 'v_mul_f32 v{x}, s19, v{x}', x=4)
    each(8, 'v_exp_f32 v{x}, v{x}', x=4)
    each(4, 'v_add_f32 v23, v23, v{x}', x=4)
    each(4, 'v_add_f32 v22, v22, v{x}', x=8)
    a('''s_sub_u32 s86, s86, 1
         s_cmp_lg_u32 s86, 0
         s_cbranch_scc1 L_lsum''')
    allred('v_add_f32', [22, 23], [4, 5])
    a('''s_waitcnt vmcnt(0)
         v_xor_b32 v3, s6, v3
         v_cmp_le_u32 vcc, s7, v3
         s_lshl_b32 s86, s34, 4
         s_add_u32 s86, s86, {h1s}
         s_cmp_eq_u64 vcc, 0
         s_cselect_b32 s5, {loc}, 1'''.format(h1s=WS_H1S, loc=2 if P['local'] else 1))
    each(4, 'v_and_or_b32 v{r}, v{r}, v%d, s28' % vMK, r=20)
    a('''s_mov_b64 exec, 1
         s_cmp_eq_u32 s5, 2
         s_cbranch_scc0 L_stfar
         buffer_store_dwordx4 v[20:23], v1, {ws}, s86 offen
         s_branch L_stdone
         L_stfar:
         buffer_store_dwordx4 v[20:23], v1, {ws}, s86 offen {st}
         L_stdone:
         s_mov_b64 exec, -1'''.format(ws=sWS, st=ST))
    wait_lds(L_TRIG, STEPS - P['pret'], 16)
    a('''s_cmp_eq_u32 s5, 2
         s_cbranch_scc0 L_nopre
         ; bring this workgroup's outgoing lines into L2 and mark them as not yet written
         s_lshl_b32 s87, s34, 10
         s_add_u32 s87, s87, {h1o}
         buffer_load_dwordx4 v[4:7], v14, {ws}, s87 offen nt
         s_xor_b32 s8, s28, 1
         s_waitcnt vmcnt(0)
         v_mov_b32 v4, s8
         v_mov_b32 v5, s8
         v_mov_b32 v6, s8
         v_mov_b32 v7, s8
         buffer_store_dwordx4 v[4:7], v14, {ws}, s87 offen
         L_nopre:
         s_and_b32 s86, s86, 0xffffff00
         v_lshl_add_u32 v3, v{N}, 4, s86
         v_lshlrev_b32 v12, 3, v0
         ds_read_b64 v[10:11], v12 offset:{ss}'''.format(h1o=WS_H1O, ws=sWS, N=vN, ss=L_SS))
    poll_masked([(['buffer_load_dwordx4 v[20:23], v3, %s, 0 offen' % sWS], [20])], base=8, sl=16)
    a('v_mov_b32 v4, v20\nv_mov_b32 v5, v21')
    rowred('v_max_f32', [4, 5])
    each(2, 'v_sub_f32 v{d}, v{d}, v{m}', d=20, m=4)
    a('s_waitcnt lgkmcnt(0)')
    each(2, 'v_sub_f32 v{d}, v{d}, v{m}', d=10, m=4)
    each(2, 'v_mul_f32 v{d}, s19, v{d}', d=20)
    each(2, 'v_mul_f32 v{d}, s19, v{d}', d=10)
    each(2, 'v_exp_f32 v{d}, v{d}', d=20)
    each(2, 'v_exp_f32 v{d}, v{d}', d=10)
    each(2, 'v_mul_f32 v{l}, v{l}, v{d}', l=22, d=20)
    rowred('v_add_f32', [22, 23])
    each(2, 'v_rcp_f32 v{l}, v{l}', l=22)
    each(2, 'v_mul_f32 v{d}, v{d}, v{l}', d=10, l=22)
    a('''v_mov_b32 v2, s5
         s_mov_b64 exec, 15
         ds_write_b64 v12, v[10:11] offset:%d
         s_mov_b64 exec, 1
         ds_write_b32 v1, v2 offset:%d
         s_mov_b64 exec, -1''' % (L_F, L_FOK))
    stamp(20)
    a('s_branch L_wait_ticket')
    a.fence()
    a.label('L_w23')
    if P['wo_early']:
        a('s_cmp_ge_u32 s2, 72\ns_cbranch_scc1 L_wait_ticket')
        wait_lds(L_KCNT, 4, 16)
        a('s_sub_u32 s20, s33, 2\nL_wo2:')
        wo_dma('s20')
        a('''s_add_u32 s20, s20, 2
             s_cmp_lt_u32 s20, 4
             s_cbranch_scc1 L_wo2
             v_mov_b32 v2, 1
             s_waitcnt vmcnt(0)
             s_mov_b64 exec, 1
             ds_add_u32 v1, v2 offset:%d
             s_mov_b64 exec, -1''' % L_OCNT)
    a('s_branch L_wait_ticket')
    a.fence()
    a('''L_control:
         s_lshl_b32 s15, s15, 2
         s_lshr_b32 s15, {xb}, s15
         s_and_b32 s15, s15, 15
         s_sub_i32 s15, s15, 8
         s_lshl_b32 s5, s2, 2
         s_add_u32 s5, s5, s4
         s_mov_b32 s11, {lim}
         s_and_b32 s20, s2, 7
         s_mul_i32 s20, s20, 9
         s_lshr_b32 s21, s2, 3
         s_add_u32 s21, s21, s20
         s_sub_u32 s21, s21, 8
         s_and_b32 s20, s21, 7
         s_cmp_eq_u32 s20, 4
         s_cselect_b32 s10, {lf3}, {lf}
         s_cmp_lt_u32 s2, 144
         s_cselect_b32 s10, s10, 0
         s_cselect_b32 s21, s21, 0xff
         s_cmp_lt_u32 s2, 72
         s_cselect_b32 s10, {lead}, s10
         s_cselect_b32 s11, {limo}, s11
         s_min_u32 s12, s11, {fast}
         s_cmp_ge_u32 s2, 248
         s_cselect_b32 s13, {m0}, -1
         s_mov_b32 s16, {mc}
         L_ctl:
         ds_read_b32 v2, v1 offset:{trig}
         s_waitcnt lgkmcnt(0)
         v_readfirstlane_b32 s8, v2
         s_cmp_ge_u32 s8, s12
         s_cbranch_scc1 L_ctl_fin
         s_sub_i32 s8, s8, s10
         s_max_i32 s8, s8, 0
         s_or_b32 s14, s6, s8
         v_mov_b32 v2, s14
         s_mov_b64 exec, 1
         buffer_store_dword v2, v1, {ws}, s5 offen
         s_mov_b64 exec, -1
         buffer_load_dwordx4 v[4:7], v14, {ws}, s4 offen {ld}
         {mload}
         s_sub_i32 s9, s15, s8
         v_mov_b32 v3, 0
         s_waitcnt vmcnt(0)'''.format(xb=hex(sum((P['bias'] + b + 8) << (4 * i) for i, b in enumerate(P['xb']))), lead=P['lead'], lf=(P['sffn'] or (0, 0))[0], lf3=(P['sffn'] or (0, 0))[1], mload='buffer_load_dword v8, v1, %s, s4 offen offset:1024 %s' % (sWS, LD) if P['mile'] else '',
                                      m0=P['mile'][0] if P['mile'] else -1, mc=WS_TK + 8 * 0x1100, limo=STEPS - P['trigo'], lim=STEPS - P['trig'], fast=STEPS - 2, trig=L_TRIG, ws=sWS, ld=LD))
    for r in range(4, 8):
        a('''v_xor_b32 v{r}, s6, v{r}
             v_cmp_gt_u32 vcc, s7, v{r}
             v_add_u32 v{r}, 0x10000, v{r}
             v_cndmask_b32 v{r}, 0, v{r}, vcc
             v_add_u32 v3, v3, v{r}'''.format(r=r))
    allred('v_add_u32', [3], [4])
    a('''v_lshrrev_b32 v4, 16, v3
         v_and_b32 v3, 0xffff, v3
         v_max_u32 v4, 1, v4
         v_cvt_f32_u32 v4, v4
         v_cvt_f32_u32 v3, v3
         v_rcp_f32 v4, v4
         v_fma_f32 v3, v3, v4, 0.5
         v_cvt_u32_f32 v3, v3''')
    if P['mile']:
        a('''v_readfirstlane_b32 s17, v3
             v_xor_b32 v8, s6, v8
             v_cmp_gt_u32 vcc, s7, v8
             v_subrev_u32 v8, 8, v8
             v_cndmask_b32 v8, 0, v8, vcc
             v_add_u32 v3, v3, v8
             s_cmp_lt_u32 s17, s13
             s_cbranch_scc1 L_nomile
             v_mov_b32 v2, 1
             s_mov_b64 exec, 1
             buffer_atomic_add v2, v1, {ws}, s16 offen sc0
             s_add_u32 s16, s16, 0x1100
             s_add_u32 s13, s13, {dm}
             s_cmp_gt_u32 s13, {last}
             s_cselect_b32 s13, -1, s13
             s_mov_b32 s17, {rt}
             s_waitcnt vmcnt(0)
             v_and_b32 v2, 7, v2
             v_lshlrev_b32 v2, 2, v2
             v_bfe_u32 v2, s17, v2, 4
             v_or_b32 v2, s6, v2
             buffer_store_dword v2, v1, {ws}, s4 offen offset:1024
             s_mov_b64 exec, -1
             L_nomile:'''.format(ws=sWS, dm=P['mile'][1], last=P['mile'][0] + P['mile'][1] * (P['mile'][2] - 1),
                                 rt=hex(sum((b + 8) << (4 * i) for i, b in enumerate(P['rt'])))))
    a('''v_add_u32 v3, s9, v3
         ds_write_b32 v1, v3 offset:{boost}
         s_sleep {per}
         s_branch L_ctl
         L_ctl_fin:
         s_or_b32 s8, s6, {steps}
         v_mov_b32 v2, s8
         v_mov_b32 v3, {fin}
         s_mov_b64 exec, 1
         buffer_store_dword v2, v1, {ws}, s5 offen
         ds_write_b32 v1, v3 offset:{boost}'''.format(boost=L_BOOST, per=P['period'], steps=STEPS, fin=P['fin'], ws=sWS))
    wait_lds(L_TRIG, 's11', 1)
    if 'notail' in ABL:
        a('s_movk_i32 s80, 0xff\ns_branch L_post_ticket')
    a('''s_movk_i32 s80, 100
         s_cmp_lt_u32 s2, 72
         s_cbranch_scc1 L_post_ticket
         {stat}
         s_sub_u32 s87, s2, 72
         s_mul_i32 s87, s87, 179
         s_lshr_b32 s87, s87, 12
         s_mul_i32 s86, s87, 0x1100
         s_add_u32 s86, s86, {tk}
         v_mov_b32 v2, 1
         buffer_atomic_add v2, v1, {ws}, s86 offen sc0
         s_waitcnt vmcnt(0)
         v_readfirstlane_b32 s20, v2
         s_lshl_b32 s21, s20, 3
         s_add_u32 s21, s21, s87
         s_mul_i32 s86, s21, 57
         s_lshr_b32 s86, s86, 9
         s_mul_i32 s87, s86, 9
         s_sub_u32 s21, s21, s87
         s_lshl_b32 s21, s21, 3
         s_add_u32 s86, s86, 3
         s_and_b32 s86, s86, 7
         s_add_u32 s21, s21, s86
         s_add_u32 s21, s21, 1
         s_cmp_lt_u32 s20, 9
         s_cselect_b32 s80, s21, 0xff'''.format(tk=WS_TK, ws=sWS, stat='s_mov_b32 s80, s21\ns_branch L_post_ticket' if P['sffn'] else ''))
    if P['tr']:
        a('''s_min_u32 s20, s20, 9
             s_mul_i32 s20, s20, 3
             s_lshr_b32 s20, %s, s20
             s_and_b32 s20, s20, 7
             s_lshl_b32 s20, s20, 1
             s_sub_u32 s11, %d, s20''' % (hex(sum(((t + 4) // 2) << (3 * i) for i, t in enumerate(P['tr'] + (10,)))), STEPS + 4))
        wait_lds(L_TRIG, 's11', 1)
    a('''L_post_ticket:
         v_mov_b32 v2, s80
         ds_write_b32 v1, v2 offset:{tick}
         s_mov_b64 exec, -1
         s_branch L_have_ticket
         L_wait_ticket:'''.format(tick=L_TICK))
    wait_lds(L_TICK, 1, 3)
    a('''L_have_ticket:
         v_readfirstlane_b32 s80, v2''')
    stamp(8)
    a('''s_sub_u32 s80, s80, 1
         s_mov_b32 s38, {szf}
         s_cmp_lt_u32 s80, 72
         s_cbranch_scc1 L_ffn_role
         s_cmp_lg_u32 s80, 99
         s_cbranch_scc1 L_exit'''.format(szf=0 if 'noffn' in ABL else 576 * 9216))

    if P['wo_early']:
        a('s_and_b32 s29, s2, 7\ns_lshl_b32 s87, s33, 14\ns_add_u32 s87, s87, %d' % L_PF)
        wait_lds(L_OCNT, 2, 1)
    else:
        wo_dma('s33')
    a('v_lshrrev_b32 v2, 2, v0')
    tr_addrs(4, 2, 's87', 3)
    a('''s_lshl_b32 s26, s2, 8
         s_add_u32 s26, s26, {h2}
         s_lshl_b32 s86, s29, 15
         s_lshl_b32 s87, s33, 8
         s_add_u32 s86, s86, s87
         s_add_u32 s86, s86, {h1o}
         v_lshlrev_b32 v{A2}, 4, v{N}
         v_lshl_add_u32 v1, v{GQ}, 12, v{A2}
         v_add_u32 v{A1}, s86, v1
         v_mul_u32_u24 v1, {h2r}, v{GQ}
         v_add_u32 v{A3}, v1, v{A2}
         s_mul_i32 s86, s33, {xs}
         s_add_u32 s86, s86, {xv}
         v_lshl_add_u32 v12, v0, 1, s86
         v_lshl_add_u32 v13, v{GQ}, 5, s86
         s_movk_i32 s22, 0x4000
         v_mov_b32 v10, 0
         v_mov_b32 v11, 1'''.format(GQ=vGQ, N=vN, A1=vA1, A2=vA2, A3=vA3, h1o=WS_H1O, h2=WS_H2, h2r=H2R, xs=XV_STRIDE, xv=L_XV))

    def wo_tr():
        for z in range(4):
            a('s_waitcnt vmcnt(%d) lgkmcnt(4)' % (12 - 4 * z + (8 if P['h1early'] else 0)))
            for j in range(4):
                for h in range(2):
                    a('ds_read_b64_tr_b16 %s, v%d offset:%d' % (vr(PB + 16 * z + 4 * j + 2 * h, 2), 4 + j, 4096 * z + 2048 * h))
        stamp(9)
    if not P['h1early']:
        wo_tr()
    poll_masked([(['buffer_load_dwordx4 %s, v%d, %s, %s offen offset:%d' % (vr(RAW + 16 * gi + 4 * k, 4), vA1, sWS, ('0', 's22')[gi], 1024 * k)
                   for gi in range(2)], [RAW + 16 * gi + 4 * k for gi in range(2)]) for k in range(4)], between=wo_tr if P['h1early'] else None)
    stamp(10)
    for x, y in ((0, 4), (8, 12), (0, 8)):
        for gi in range(2):
            for h in range(2):
                q = RAW + 16 * gi + 2 * h
                a('v_pk_add_f32 %s, %s, %s' % (vr(q + x, 2), vr(q + x, 2), vr(q + y, 2)))
    quadred([RAW, RAW + 16])
    a('''v_cvt_pk_bf16_f32 v8, v{a}, v{b}
         ds_write_b16 v12, v8
         ds_write_b16_d16_hi v12, v8 offset:128'''.format(a=RAW, b=RAW + 16))
    for z in range(4):
        a('ds_read_b128 %s, v13 offset:%d' % (vr(XB + 4 * z, 4), 128 * (z >> 1) + 16 * (z & 1)))
    for z in range(4):
        a('s_waitcnt lgkmcnt(%d)' % (3 - z))
        for cc in range(4):
            d = vr(DR + 4 * cc, 4)
            a('%s %s, %s, %s, %s' % (MF32, d, vr(XB + 4 * z, 4), vr(PB + 16 * z + 4 * cc, 4), d if z else '0'))
    for cc in range(1, 4):
        a('v_mov_b32 v%d, v%d' % (DR + cc, DR + 4 * cc))
    a('''s_mov_b64 exec, 0xffff
         ds_write_b128 v{PW}, {d} offset:{part}
         s_mov_b64 exec, 1
         ds_add_rtn_u32 v11, v10, v11 offset:{cnt}
         s_mov_b32 exec_lo, {lo}
         s_mov_b32 exec_hi, {hi}'''.format(PW=vPW, d=vr(DR, 4), part=L_PART, cnt=L_WCNT,
                                           lo='0xffff' if P['nrep'] == 1 else '-1', hi='-1' if P['nrep'] == 4 else '0'))
    for w in range(4):
        a('ds_read_b128 %s, v%d offset:%d' % (vr(RAW + 4 * w, 4), vA2, L_PART + 256 * w))
    a('''s_waitcnt lgkmcnt(2)
         v_readfirstlane_b32 s86, v11
         v_pk_add_f32 v[16:17], v[16:17], v[20:21]
         v_pk_add_f32 v[18:19], v[18:19], v[22:23]
         s_cmp_lg_u32 s86, 3
         s_cbranch_scc1 L_exit
         s_waitcnt lgkmcnt(0)
         v_pk_add_f32 v[24:25], v[24:25], v[28:29]
         v_pk_add_f32 v[26:27], v[26:27], v[30:31]
         v_pk_add_f32 v[16:17], v[16:17], v[24:25]
         v_pk_add_f32 v[18:19], v[18:19], v[26:27]''')
    each(4, 'v_and_or_b32 v{r}, v{r}, v%d, s28' % vMK, r=16)
    a('buffer_store_dwordx4 v[16:19], v%d, %s, s26 offen %s' % (vA3, sWS, ST))
    stamp(11)
    a('s_branch L_exit')
    a.fence()

    a.label('L_ffn_role')
    a('''s_mov_b32 s36, s64
         s_mov_b32 s37, s65
         v_lshrrev_b32 v1, 3, v0
         v_mul_u32_u24 v1, 9216, v1
         s_mul_i32 s79, s33, %d
         s_lshl_b32 s86, s80, 7
         s_add_u32 s79, s79, s86
         s_mul_i32 s87, s33, 18432
         s_add_u32 s87, s87, %d''' % (144 * 9216, L_PF))
    dma_chunk(2, 3)
    a('v_add_u32 v1, v1, v2')
    for t in range(18):
        a('s_add_u32 m0, s87, %d' % (1024 * t))
        a('s_add_u32 s86, s79, %d' % (8 * t * 9216))
        pace(t, P['pace_1'])
        a('buffer_load_dwordx4 v1, %s, s86 offen %s lds' % (sW, WPOL))
        if t + 1 == P['w2after']:
            a('v_mov_b32 v2, 0\nv_mov_b32 v3, 1\ns_mov_b64 exec, 1\nds_add_u32 v2, v3 offset:20\ns_mov_b64 exec, -1')
    a('v_bfe_u32 v2, v0, 2, 2\nv_mad_u32_u24 v2, v%d, 36, v2' % vGQ)
    tr_addrs(8, 2, 's87', 3)
    a('''s_cmp_lg_u32 s33, 3
         s_cbranch_scc1 L_ffn_join
         ; wave 3 is the final consumer: column c = 8 jf + 4 (lane&1) + row
         s_lshr_b32 s86, s80, 3
         s_lshl_b32 s86, s86, 6
         s_and_b32 s87, s80, 7
         s_lshl_b32 s87, s87, 1
         s_add_u32 s86, s86, s87
         v_and_b32 v3, 1, v0
         v_lshl_add_u32 v1, v{GQ}, 4, v3
         v_add_u32 v1, s86, v1
         v_lshlrev_b32 v{A4}, 2, v1
         v_lshrrev_b32 v2, 1, v0
         v_mul_u32_u24 v2, 2304, v2
         v_lshl_add_u32 v2, v3, 4, v2
         s_lshl_b32 s86, s80, 5
         s_add_u32 s86, s86, {h3}
         v_add_u32 v{A3}, s86, v2
         s_mov_b32 s22, {k1}
         s_mov_b32 s23, {k2}
         v_add_u32 v1, {gb}, v{A4}'''.format(GQ=vGQ, A4=vA4, A3=vA3, h3=WS_H3, k1=24 * 2304, k2=48 * 2304, gb=WS_MOD + 5 * 2304))
    poll_nib(['buffer_load_dword v4, v1, %s, 0 offen' % sWS, 'buffer_load_dword v5, v1, %s, s58 offen' % sWS], [4, 5])
    a('v_add_f32 v4, v4, v5\nv_cvt_pk_bf16_f32 v%d, 0, v4' % vGA)
    a.label('L_ffn_join')
    a('s_waitcnt vmcnt(0)')
    for z in range(4):
        for j in range(4):
            for h in range(2):
                a('ds_read_b64_tr_b16 %s, v%d offset:%d' % (vr(PB + 16 * z + 4 * j + 2 * h, 2), 8 + (j ^ (2 * h)), 1024 * z + 512 * h))
        a('s_waitcnt lgkmcnt(4)')
    for j in range(4):
        a('ds_read_b64_tr_b16 %s, v%d offset:%d' % (vr(PB + 64 + 2 * j, 2), 8 + j, 4096))
    stamp(19)
    a('''v_mov_b32 v13, 0
         s_waitcnt lgkmcnt(0)
         v_mov_b32 v11, 1
         s_lshl_b32 s86, s33, 3
         v_mov_b32 v12, s86
         s_cmp_eq_u32 s33, 3
         s_cbranch_scc1 L_t2w3''')
    gate(vA5, P['gate'])
    poll_masked([(['buffer_load_dwordx4 %s, v%d, %s, %s offen offset:%d' % (vr(RAW + 16 * i + 4 * k, 4), vA3, sWS, ('0', '0', 's22')[i], 2048 * (i & 1) + 1024 * k)
                   for i in range(3)], [RAW + 16 * i + 4 * k for i in range(3)]) for k in range(2)])
    stamp(12)
    for i in range(3):
        q = RAW + 16 * i
        for h in range(2):
            a('v_pk_add_f32 %s, %s, %s' % (vr(q + 2 * h, 2), vr(q + 2 * h, 2), vr(q + 4 + 2 * h, 2)))
    quadred([RAW, RAW + 16, RAW + 32])
    for i in range(3):
        rbf(4 + i, RAW + 16 * i)
    each(3, 'v_mul_f32 v{x}, v{x}, v{g}', x=4, g=vGA)
    each(3, 'v_cvt_pk_bf16_f32 v{x}, 0, v{x}', x=4)
    each(3, 'v_add_f32 v{x}, v{x}, v{y}', x=4, y=vX)
    each(3, 'v_cvt_pk_bf16_f32 v{x}, 0, v{x}', x=4)
    a('''v_add_f32 v2, v4, v5
         v_mul_f32 v3, v4, v4
         ds_write_b32 v{A4}, v4 offset:{x0}
         v_fmac_f32 v3, v5, v5
         v_add_f32 v2, v2, v6
         ds_write_b32 v{A4}, v5 offset:{x1}
         v_fmac_f32 v3, v6, v6
         ds_write_b32 v{A4}, v6 offset:{x2}'''.format(A4=vA4, x0=L_X2, x1=L_X2 + 256, x2=L_X2 + 512))
    allred('v_add_f32', [2, 3], [8, 9])
    a('''s_mov_b64 exec, 1
         ds_write_b64 v12, v[2:3] offset:%d
         ds_add_u32 v13, v11 offset:%d''' % (L_ST, L_ACNT))
    a('s_branch L_t2b\nL_t2w3:\nv_mov_b32 v1, 0')
    wait_lds(L_ACNT, 1, 1)
    a.label('L_t2b')
    a('s_mov_b64 exec, s[84:85]')
    a('''L_xwait:
         ds_read_b32 v10, v13 offset:{ac}
         ds_read_b128 v[4:7], v13 offset:{st}
         ds_read_b64 v[8:9], v13 offset:{st2}
         ds_read_b128 {x}, v{Xo} offset:{x2}
         s_waitcnt lgkmcnt(3)
         v_cmp_gt_u32 vcc, 3, v10
         s_cbranch_vccnz L_xwait
         s_waitcnt lgkmcnt(1)
         v_add_f32 v2, v4, v6
         v_add_f32 v3, v5, v7
         v_add_f32 v2, v2, v8
         v_add_f32 v3, v3, v9
         s_waitcnt lgkmcnt(0)'''.format(ac=L_ACNT, st=L_ST, st2=L_ST + 16, x=vr(RAW, 4), Xo=vXo, x2=L_X2))
    ln_finish(RAW)
    modulate(RAW)
    gemv_run()
    a('s_mov_b64 exec, 1\nds_add_u32 v13, v11 offset:%d' % L_BCNT)
    stamp(13)
    a('''s_mov_b64 exec, -1
         s_cmp_lg_u32 s33, 3
         s_cbranch_scc1 L_exit''')
    a('ds_read_b32 v12, v%d offset:%d' % (vA4, L_X2))
    each(12, 'v_mov_b32 v{r}, 0', r=RAW)
    a('v_lshrrev_b32 v1, 1, v%d' % vA4)
    if P['d3']:
        a('s_sleep %d' % P['d3'])
    poll_masked([(['buffer_load_dwordx4 %s, v%d, %s, %s offen' % (vr(RAW + 4 * k, 4), vA3, sWS, ('0', 's22', 's23')[k])], [RAW + 4 * k])
                 for k in range(3)], hi='0xffff')
    stamp(15)
    each(4, 'v_add_f32 v{x}, v{x}, v{y}', x=RAW, y=RAW + 4)
    each(4, 'v_add_f32 v{x}, v{x}, v{y}', x=RAW, y=RAW + 8)
    quadred([RAW])
    rowred('v_add_f32', [RAW], first=1)
    rbf(4, RAW)
    a('v_mul_f32 v4, v4, v%d' % vGA)
    rbf(4, 4)
    a('''s_waitcnt lgkmcnt(0)
         v_add_f32 v4, v4, v12
         v_cvt_pk_bf16_f32 v4, v4, v4
         s_mov_b32 exec_lo, 0x00030003
         s_mov_b32 exec_hi, 0x00030003
         buffer_store_short v4, v1, %s, 0 offen
         s_cmp_lg_u32 s80, 0
         s_cbranch_scc1 L_noep
         s_mov_b64 exec, 1
         v_mov_b32 v5, s35
         buffer_store_dword v5, v14, %s, 0 offen offset:%d
         L_noep:''' % (sOUT, sWS, WS_EPOCH))
    stamp(16)
    a.label('L_exit')
    if P['stamps']:
        a('v_writelane_b32 v15, s80, 29\nv_writelane_b32 v%d, s81, 30\ns_getreg_b32 s4, hwreg(HW_REG_XCC_ID, 0, 3)\nv_writelane_b32 v%d, s4, 31' % (vST, vST))
    stamp_flush()
    a.label('L_end')
    a('s_endpgm')
    a.raw('.fill 64, 4, 0xbf800000')
    a.raw('''.section .rodata,"a"
.p2align 6
.amdhsa_kernel %s_kernel
  .amdhsa_next_free_vgpr 256
  .amdhsa_next_free_sgpr 102
  .amdhsa_accum_offset 256
  .amdhsa_group_segment_fixed_size 0
  .amdhsa_kernarg_size 104
  .amdhsa_user_sgpr_count 2
  .amdhsa_user_sgpr_kernarg_segment_ptr 1
  .amdhsa_system_sgpr_workgroup_id_x 1
  .amdhsa_float_denorm_mode_32 3
.end_amdhsa_kernel''' % NAME)
    return a.text()


if __name__ == '__main__':
    out = sys.argv[1]
    kw = eval('dict(%s)' % (sys.argv[2] if len(sys.argv) > 2 else ''))
    open(out, 'w').write(gen(**kw))
```

```python
import sys
from asmlib import Asm

NAME = 'adaLN_cond__gqa_block_cached__dense_activation_relu__decode'

DEFAULTS = dict(
    D=[5], Dhi=6,
    stamps=False,
    ld='sc1', st='sc1', wpol='nt',
    spin=1 << 17,
    sleep=0, psl=12, gsleep=3, d3=25,
    prio=1,
    npre=6, nl=4,
    trig=0, trigo=-4,
    gate=3,
    ppace=8, apace=0, qdelay=0, pace_o=0, pace_1=0, pace_2=0, w2after=18,
    th=2, bias=0, period=8, fin=20, lead=4, xb=(1, 0, 1, 0, 2, 1, 2, 1),
    local=True, pret=28, nrep=4, wo_early=False, pmap=1, sffn=None, tr=None, h1early=True, qtile=8, mtile=0, bar2=False, mile=None, rt=(-3, -2, -1, 0, 1, 2, 3, 4),
    abl=(),
)

WS_EPOCH = 0x0
WS_H1S = 0x9000
WS_H2 = 0xC0000
H2R = 18432
WS_MOD = 0x1000
WS_Q = 0x14000
HS = 0x4000
WS_H1O = 0x20000
WS_H3 = 0x60000
WS_TK = 0xE0000
WS_PG = 0xA0000
WS_SIZE = 0x100000
WS_STAMP = 0x100000
L_CNT = 0x0
L_TRIG = 0x4
L_TICK = 0x8
L_SCNT = 0xc
L_KCNT = 0x10
L_WCNT = 0x14
L_FOK = 0x1c
L_OCNT = 0x38
L_PPROG = 0x3c
L_QOK = 0xe0
L_ACNT = 0xe4
L_BCNT = 0xe8
L_F = 0xc0
L_BOOST = 0x18
L_ST = 0x20
L_ZERO = 0x40
L_Q = 0x100
L_XV = 0x300
XV_STRIDE = 320
L_HV = 0x800
L_PART = 0xA00
L_X2 = 0xE00
L_SO = 0x1800
L_SS = 0x2800
L_SC = 0x3000
L_PF = 0x7000

FULL = 'row_mask:0xf bank_mask:0xf'
TAGBYTES = '''s_add_u32 s96, s35, 0x7f4a7c15
         s_mul_i32 s96, s96, 0x9e3779b1
         s_lshr_b32 s97, s96, 15
         s_xor_b32 s96, s96, s97
         s_mul_i32 s96, s96, 0x85ebca77
         s_lshr_b32 s97, s96, 13
         s_xor_b32 s96, s96, s97
         s_mul_i32 s96, s96, 0xc2b2ae3d
         s_lshr_b32 s97, s96, 16
         s_xor_b32 s96, s96, s97
         s_or_b32 s96, s96, 0x01010101
         s_xor_b32 s35, s35, s96
         s_and_b32 s96, s35, 0xff
         s_bfe_u32 s97, s35, 0x80008
         s_bfe_u32 s98, s35, 0x80010
         s_lshr_b32 s99, s35, 24'''
TAGGEN = TAGBYTES + '''
         s_and_b32 s24, s96, 15
         s_and_b32 s25, s97, 15
         s_and_b32 s26, s98, 15
         s_and_b32 s27, s99, 15'''


def vr(a, n):
    return 'v[%d:%d]' % (a, a + n - 1) if n > 1 else 'v%d' % a


def gen(**kw):
    P = dict(DEFAULTS)
    for k in kw:
        assert k in P or k in ('probe',), k
    P.update(kw)
    a = Asm()
    LD, ST, WPOL = P['ld'], P['st'], P['wpol']
    ABL = P['abl']
    uid = [0]

    def lab(s):
        uid[0] += 1
        return 'L_%s_%d' % (s, uid[0])

    vST = 15

    def stamp(i):
        if P['stamps'] == 'end' and i not in (0, 1, 2, 3, 4, 16):
            return
        if P['stamps']:
            a('s_memrealtime s[90:91]\ns_waitcnt lgkmcnt(0)\nv_writelane_b32 v%d, s90, %d' % (vST, i))

    def stamp_flush():
        if P['stamps']:
            a('''s_mov_b64 exec, -1
                 s_load_dwordx2 s[92:93], s[0:1], 96
                 s_lshl_b32 s90, s2, 11
                 s_lshl_b32 s91, s3, 8
                 s_add_u32 s90, s90, s91
                 s_add_u32 s90, s90, %d
                 v_lshlrev_b32 v1, 2, v0
                 s_waitcnt lgkmcnt(0)
                 s_mov_b32 s94, 0x200000
                 s_mov_b32 s95, 0x20000
                 buffer_store_dword v%d, v1, s[92:95], s90 offen''' % (WS_STAMP, vST))

    PATS = ('quad_perm:[1,0,3,2]', 'quad_perm:[2,3,0,1]', 'row_ror:4', 'row_ror:8')

    def rowred(op, xs, first=0):
        for pat in PATS[first:]:
            for x in xs:
                a('%s_dpp v%d, v%d, v%d %s %s' % (op, x, x, x, pat, FULL))

    def allred(op, xs, ts, first=0):
        rowred(op, xs, first)
        for sw in ('16', '32'):
            for x, t in zip(xs, ts):
                a('v_mov_b32 v%d, v%d' % (t, x))
            for x, t in zip(xs, ts):
                a('v_permlane%s_swap_b32 v%d, v%d' % (sw, x, t))
            for x, t in zip(xs, ts):
                a('%s v%d, v%d, v%d' % (op, x, x, t))

    def quadred(qs):
        for q in qs:
            a('v_permlane32_swap_b32 v%d, v%d' % (q, q + 2))
            a('v_permlane32_swap_b32 v%d, v%d' % (q + 1, q + 3))
        for q in qs:
            a('v_add_f32 v%d, v%d, v%d' % (q, q, q + 2))
            a('v_add_f32 v%d, v%d, v%d' % (q + 1, q + 1, q + 3))
        for q in qs:
            a('v_permlane16_swap_b32 v%d, v%d' % (q, q + 1))
        for q in qs:
            a('v_add_f32 v%d, v%d, v%d' % (q, q, q + 1))

    def rbf(d, s):
        a('v_cvt_pk_bf16_f32 v%d, 0, v%d' % (d, s))

    def each(n, fmt, **regs):
        for i in range(n):
            a(fmt.format(**{k: v + i for k, v in regs.items()}))

    def blk_perm(base, n, rows=8):
        src, dst = base + 16 * (n + 1), base + 16 * n
        h = rows // 2
        for cc in range(4):
            for ip in range(h):
                a('v_perm_b32 v%d, v%d, v%d, s%d' % (dst + h * cc + ip, src + 2 * (2 * ip + 1) + (cc >> 1),
                                                    src + 2 * (2 * ip) + (cc >> 1), 82 + (cc & 1)))

    def dma_chunk(d, t):
        a('''v_lshrrev_b32 v{t}, 4, v0
             v_lshlrev_b32 v{t}, 1, v{t}
             v_xor_b32 v{t}, v{t}, v0
             v_and_b32 v{t}, 7, v{t}
             v_lshlrev_b32 v{d}, 4, v{t}'''.format(d=d, t=t))

    def tr_addrs(d, row, base, t):
        a('''v_and_b32 v{t}, 3, v0
             v_lshl_add_u32 v{t}, v{t}, 3, {base}
             v_lshl_add_u32 v{t}, v{row}, 7, v{t}
             v_bfe_u32 v{row}, v{row}, 1, 2'''.format(t=t, row=row, base=base))
        for j in range(4):
            a('v_xor_b32 v%d, %d, v%d' % (d + j, j, row))
        for j in range(4):
            a('v_lshl_add_u32 v%d, v%d, 5, v%d' % (d + j, d + j, t))

    def pace(i, w):
        if w and i >= w:
            a('s_waitcnt vmcnt(%d)' % (w - 1))

    def tbarrier():
        a('s_waitcnt lgkmcnt(0)\ns_barrier')

    MF32, MF16 = 'v_mfma_f32_16x16x32_bf16', 'v_mfma_f32_16x16x16_bf16'

    a.raw('; @launch grid=(256,1,1) block=(512,1,1) lds=%d' % 0x28000)
    a.raw('.amdgcn_target "amdgcn-amd-amdhsa--gfx950"\n.text\n.globl %s_kernel\n.p2align 8\n.type %s_kernel,@function\n%s_kernel:' % (NAME, NAME, NAME))
    a('''s_cmp_ge_u32 s2, 256
         s_cbranch_scc1 L_end
         s_load_dwordx4 s[4:7], s[0:1], 8
         v_lshrrev_b32 v1, 6, v0
         v_and_b32 v0, 63, v0
         v_readfirstlane_b32 s3, v1
         s_mov_b32 s19, 0x3fb8aa3b
         ; s34 = kv head * 16 + split: the 32 workgroups with equal id % 8 share two heads
         s_and_b32 s34, s2, 7
         s_lshl_b32 s34, s34, 5
         s_and_b32 s17, s2, 8
         s_lshl_b32 s17, s17, 1
         s_or_b32 s34, s34, s17
         s_lshr_b32 s17, s2, 4
         s_or_b32 s34, s34, s17''')
    if 'map0' in ABL:
        a('s_mov_b32 s34, s2')
    if P['stamps']:
        a('v_mov_b32 v%d, 0' % vST)
    stamp(0)
    a('''s_cmp_ge_u32 s3, 4
         s_cbranch_scc1 L_service''')

    vO0, vME, vM, vL, vS, vP, vW, vSA = 2, 6, 7, 8, 9, 10, 12, 14
    BQ, O, AS, DD, TT, RING = 16, 24, 28, 36, 52, 64
    vS2 = 56
    NR, NL = P['npre'], P['nl']
    NP = NR + NL
    a('''; ---- stream wave: K lane map row=(l>>2)&3, chunk=(l>>4)*4+(l&3); V lane map linear
         v_bfe_u32 v2, v0, 2, 2
         v_lshlrev_b32 v2, 8, v2
         v_lshrrev_b32 v3, 4, v0
         v_lshlrev_b32 v3, 6, v3
         v_and_b32 v4, 3, v0
         v_lshlrev_b32 v4, 4, v4
         v_add3_u32 v2, v2, v3, v4
         v_add_u32 v3, 0x1000, v2
         s_lshl_b32 s17, s34, 20
         s_lshl_b32 s16, s3, 13
         s_mov_b32 s10, 0x100000
         s_mov_b32 s11, 0x20000
         s_waitcnt lgkmcnt(0)
         s_add_u32 s8, s4, s17
         s_addc_u32 s9, s5, 0''')
    if P['prio']:
        a('s_setprio %d' % P['prio'])
    Dp = P['D']
    ldn = [0]

    def load(buf, j, wait=True, var=False):
        r = RING + 32 * buf + 4 * j
        if buf >= NR and j % 4 == 0:
            a('s_add_u32 m0, s21, %d' % ((buf - NR) * 8192 + (j >> 2) * 4096))
        if var:
            skip = lab('w')
            a('s_waitcnt vmcnt(%d)\ns_cbranch_vccnz %s' % (P['Dhi'] - 1, skip))
            a.raw('    s_waitcnt vmcnt(%d)' % (Dp[ldn[0] % len(Dp)] - 1))
            a.label(skip)
        elif wait:
            a('s_waitcnt vmcnt(%d)' % (Dp[ldn[0] % len(Dp)] - 1))
        ldn[0] += 1
        if buf >= NR:
            a('buffer_load_dwordx4 v%d, s[8:11], s16 offen offset:%d nt lds' % (vO0 + (j >> 2), (j & 3) * 1024))
        else:
            a('buffer_load_dwordx4 %s, v%d, s[8:11], s16 offen offset:%d nt' % (vr(r, 4), vO0 + (j >> 2), (j & 3) * 1024))
        if j == 7:
            a('s_add_u32 s16, s16, 0x8000')

    n = 0
    for buf in range(NP):
        if buf and buf in (P['qtile'], P['mtile']):
            a('v_mov_b32 v1, %d\nds_write_b32 v56, v1 offset:%d' % (buf, L_PPROG))
        for j in range(8):
            load(buf, j, wait=n >= min(Dp))
            n += 1
            if n == min(Dp):
                a('''s_barrier
                     s_load_dwordx2 s[24:25], s[0:1], 96
                     s_load_dwordx2 s[36:37], s[0:1], 56
                     s_add_u32 s12, s6, s17
                     s_addc_u32 s13, s7, 0
                     s_mov_b32 s18, 0x3db504f3
                     v_lshlrev_b32 v4, 4, v0
                     v_add_u32 v5, 0x1000, v4
                     v_and_b32 v1, 1, v0
                     v_cmp_eq_u32 vcc, 1, v1
                     v_mov_b32 v6, 0xffff
                     v_mov_b32 v11, 0xffff0000
                     v_cndmask_b32 v6, v6, v11, vcc
                     v_mov_b32 v7, 0xff800000''')
                each(12, 'v_mov_b32 v{r}, 0', r=O)
                a('''v_lshlrev_b32 v1, 8, v1
                     v_lshrrev_b32 v11, 2, v0
                     v_lshl_add_u32 v13, v11, 4, v1
                     s_lshl_b32 s20, s3, 12
                     s_add_u32 s20, s20, %d
                     v_lshl_add_u32 v14, v0, 1, s20
                     s_mul_i32 s21, s3, %d
                     s_add_u32 s21, s21, %d
                     v_add_u32 v58, s21, v4
                     v_mov_b32 v56, 0
                     v_mov_b32 v57, 0
                     s_mov_b32 s26, %d
                     s_mov_b32 s27, 0x20000
                     s_mov_b32 s38, %d
                     s_mov_b32 s39, 0x20000
                     s_mov_b32 s82, 0x05040100
                     s_mov_b32 s83, 0x07060302
                     s_waitcnt lgkmcnt(0)
                     s_load_dword s35, s[24:25], %d''' % (L_SC, 8192 * NL, L_PF, WS_SIZE, 0 if 'noffn' in ABL else 4608 * 1152, WS_EPOCH))
    stamp(1)
    if P['bar2']:
        a('s_barrier     ; #2 (q ready)')
    a('''L_qwait:
         ds_read_b32 v1, v56 offset:%d
         ds_read_b128 v[16:19], v13 offset:%d
         s_waitcnt lgkmcnt(0)
         v_cmp_eq_u32 vcc, 0, v1
         s_cbranch_vccnz L_qwait
         v_and_b32 v1, 2, v0
         v_cmp_eq_u32 vcc, 0, v1
         s_mov_b32 s17, %d''' % (L_QOK, L_Q, (32 - NP) // 2))
    each(4, 'v_cndmask_b32 v{d}, v{s}, 0, vcc', d=BQ + 4, s=BQ)
    each(4, 'v_cndmask_b32 v{s}, 0, v{s}, vcc', s=BQ)
    stamp(2)

    def control():
        a('''v_add_u32 v63, v61, v62
             v_cmp_lt_i32 vcc, s33, v63
             s_mov_b64 exec, 1
             ds_add_rtn_u32 v61, v60, v59 offset:%d
             ds_read_b32 v62, v60 offset:%d
             s_mov_b64 exec, -1
             s_add_u32 s33, s33, 4''' % (L_TRIG, L_BOOST))

    def ktile(buf, refill, slot):
        K = RING + 32 * buf
        if refill:
            a('s_waitcnt lgkmcnt(1)')
            control()
        for p in range(4):
            d = vr(DD + 4 * p, 4)
            a('%s %s, %s, %s, 0' % (MF32, d, vr(K + 8 * p, 4), vr(BQ, 4)))
            if refill:
                load(buf, 2 * p, var=True)
            a('%s %s, %s, %s, %s' % (MF32, d, vr(K + 8 * p + 4, 4), vr(BQ + 4, 4), d))
            if refill:
                load(buf, 2 * p + 1, var=True)
        for step in (1, 2, 3):
            for p in range(4):
                c = (p + step) & 3
                rot = 4 * ((p - c) & 3)
                src1 = DD + 4 * p + p if step == 1 else TT + p
                if step < 3:
                    a('v_add_f32_dpp v%d, v%d, v%d row_ror:%d %s' % (TT + p, DD + 4 * p + c, src1, rot, FULL))
                else:
                    a('v_add_f32_dpp v%d, v%d, v%d row_ror:%d row_mask:0xf bank_mask:0x%x' % (vS, DD + 4 * p + c, src1, rot, 1 << p))
        rbf(vS, vS)
        a('v_mul_f32 v%d, s18, v%d' % (vS, vS))
        rbf(vP, vS)
        a('v_max_f32 v%d, v%d, v%d' % (vM, vM, vP))
        a('ds_write_b16_d16_hi v%d, v%d offset:%d' % (vSA, vP, 128 * slot))

    def vtile(buf, refill, nxt, last=False):
        V = RING + 32 * buf
        a('s_waitcnt lgkmcnt(%d)' % (0 if last else 1))
        a('''v_sub_f32 v{P}, v{S}, v{M}
             v_mul_f32 v{P}, s19, v{P}
             v_exp_f32 v{P}, v{P}'''.format(P=vP, S=vS2 + buf, M=vM))
        if refill:
            control()
        if nxt is not None:
            a('ds_read_u16_d16_hi v%d, v%d offset:%d' % (vS2 + buf, vSA, 128 * nxt))
        a('v_cvt_pk_bf16_f32 v{P}, v{P}, v{P}'.format(P=vP))
        a('v_and_b32_dpp v%d, v%d, v%d quad_perm:[0,0,1,1] %s' % (vW, vP, vME, FULL))
        a('v_and_b32_dpp v%d, v%d, v%d quad_perm:[2,2,3,3] %s' % (vW + 1, vP, vME, FULL))

        def build(jv):
            p, u = jv >> 1, jv & 1
            A = AS + 4 * u
            for t in range(4):
                rot = 4 * ((t - p) & 3)
                pat = 'row_ror:%d' % rot if rot else 'quad_perm:[0,1,2,3]'
                a('v_mov_b32_dpp v%d, v%d %s row_mask:0xf bank_mask:0x%x' % (A + t, vW + u, pat, 1 << t))
        build(0)
        for jv in range(8):
            if jv < 7:
                build(jv + 1)
            if last and jv == 1:
                a('''s_lshl_b32 s21, s3, 10
                     v_add_u32 v1, s21, v4
                     s_lshl_b32 s20, s3, 3
                     v_mov_b32 v2, s20
                     s_lshl_b32 s22, s34, 10
                     s_add_u32 s22, s22, %d
                     v_mov_b32 v11, 0xffffff00
                     %s
                     L_fwait:
                     ds_read_b32 v3, v60 offset:%d
                     ds_read_b64 v[8:9], v2 offset:%d
                     s_waitcnt lgkmcnt(0)
                     v_readfirstlane_b32 s23, v3
                     s_cmp_eq_u32 s23, 0
                     s_cbranch_scc1 L_fwait''' % (WS_H1O, TAGBYTES, L_FOK, L_F))
            if last and 7 - jv < max(max(Dp), P['Dhi']):
                a('s_waitcnt vmcnt(%d)' % (7 - jv))
            a('%s %s, %s, %s, %s' % (MF32, vr(O, 4), vr(AS + 4 * (jv & 1), 4), vr(V + 4 * jv, 4), vr(O, 4)))
            if refill:
                load(buf, jv, var=True)

    assert max(Dp) <= 8 and P['Dhi'] <= 8 and 16 % len(Dp) == 0 and NP % 2 == 0 and NL <= NR - 2
    nld = 0
    for t in range(NP):
        if t >= NR:
            a('s_waitcnt lgkmcnt(0)')
        ktile(t if t < NR else t - NR + 2, False, t)
        lt = t - (NR - 1)
        if 0 <= lt < NL:
            assert nld >= max(Dp) and lt + 2 <= t
            for j in range(8):
                a('ds_read_b128 %s, v58 offset:%d' % (vr(RING + 32 * (lt + 2) + 4 * j, 4), lt * 8192 + j * 1024))
        upto = min(16, max(2 * (t + 1) if t < 4 else 0, -(-16 * (t + 1) // NP)))
        while nld < upto:
            load(nld >> 3, nld & 7)
            nld += 1
    assert nld == 16
    a('v_add_u32 v%d, %d, v%d' % (vSA, 128 * NP, vSA))
    a('''v_mov_b32 v59, 1
         v_mov_b32 v60, 0
         v_mov_b32 v61, 0xc0000000
         v_mov_b32 v62, 0
         s_mov_b32 s33, %d''' % (P['th'] - 4))
    a('''L_kloop:
         s_cmp_lg_u32 s17, 1
         s_cbranch_scc1 L_kbody
         s_mov_b32 s8, s12
         s_mov_b32 s9, s13
         s_lshl_b32 s16, s3, 13
         v_mov_b32 v2, v4
         v_mov_b32 v3, v5
         L_kbody:''')
    ktile(0, True, 0)
    ktile(1, True, 1)
    a('''v_add_u32 v%d, 256, v%d
         s_sub_u32 s17, s17, 1
         s_cmp_lg_u32 s17, 0
         s_cbranch_scc1 L_kloop''' % (vSA, vSA))
    stamp(5)
    a.label('L_vphase')
    a('v_subrev_u32 v%d, 0x1000, v%d' % (vSA, vSA))
    a('ds_read_u16_d16_hi v%d, v%d\nds_read_u16_d16_hi v%d, v%d offset:128' % (vS2, vSA, vS2 + 1, vSA))
    allred('v_max_f32', [vM], [1], first=1)
    a('''s_lshl_b32 s20, s3, 3
         v_lshl_add_u32 v1, v0, 2, s20
         s_mov_b64 exec, 3
         ds_write_b32 v1, v7 offset:%d
         s_mov_b64 exec, 1
         ds_add_u32 v60, v59 offset:%d
         s_mov_b64 exec, -1
         s_mov_b32 s17, 15''' % (L_SS, L_KCNT))

    a.label('L_vloop')
    vtile(0, True, 2)
    vtile(1, True, 3)
    a('''v_add_u32 v%d, 256, v%d
         s_sub_u32 s17, s17, 1
         s_cmp_lg_u32 s17, 0
         s_cbranch_scc1 L_vloop''' % (vSA, vSA))
    stamp(3)
    if min(P['trig'], P['trigo']) < 0:
        a('s_mov_b64 exec, 1\nds_add_u32 v60, v59 offset:%d\ns_mov_b64 exec, -1' % L_TRIG)
    vtile(0, False, None)
    vtile(1, False, None, last=True)
    SO = 64
    for r in range(4):
        a('v_mul_f32 v%d, v%d, v%d' % (O + r, O + r, 8 + (r >> 1)))
    a('''ds_write_b128 v1, v[24:27] offset:%d
         s_mov_b64 exec, 1
         ds_add_rtn_u32 v9, v60, v59 offset:%d
         s_mov_b64 exec, -1''' % (L_SO, L_SCNT))
    for w in range(4):
        a('ds_read_b128 %s, v4 offset:%d' % (vr(SO + 4 * w, 4), L_SO + 1024 * w))
    stamp(4)
    a('''s_waitcnt lgkmcnt(2)
         v_readfirstlane_b32 s20, v9
         v_pk_add_f32 v[64:65], v[64:65], v[68:69]
         v_pk_add_f32 v[66:67], v[66:67], v[70:71]
         s_cmp_lg_u32 s20, 3
         s_cbranch_scc1 L_sdone
         s_waitcnt lgkmcnt(0)
         v_pk_add_f32 v[72:73], v[72:73], v[76:77]
         v_pk_add_f32 v[74:75], v[74:75], v[78:79]
         s_cmp_eq_u32 s23, 2
         v_pk_add_f32 v[64:65], v[64:65], v[72:73]
         v_pk_add_f32 v[66:67], v[66:67], v[74:75]''')
    each(4, 'v_and_or_b32 v{r}, v{r}, v11, s{t}', r=64, t=96)
    a('''s_cbranch_scc0 L_h1far
         buffer_store_dwordx4 v[64:67], v4, s[24:27], s22 offen
         s_branch L_h1done
         L_h1far:
         buffer_store_dwordx4 v[64:67], v4, s[24:27], s22 offen %s
         L_h1done:''' % ST)
    stamp(6)
    a.label('L_sdone')
    QB = 128
    a('''s_mov_b32 s29, s3
         s_cmp_eq_u32 s29, 3
         s_cbranch_scc1 L_sexit
         L_stick:
         ds_read_b32 v9, v60 offset:{tick}
         s_waitcnt lgkmcnt(0)
         v_readfirstlane_b32 s21, v9
         s_cmp_eq_u32 s21, 0
         s_cbranch_scc1 L_stick
         s_sub_u32 s21, s21, 1
         s_cmp_ge_u32 s21, 72
         s_cbranch_scc1 L_sexit
         s_setprio 0
         v_lshrrev_b32 v16, 4, v0
         v_and_b32 v17, 15, v0
         s_mul_i32 s16, s21, {rows}
         s_mul_i32 s20, s29, 384
         s_add_u32 s16, s16, s20
         s_mul_i32 s12, s29, 20480
         s_add_u32 s12, s12, {pf}
         s_lshl_b32 s13, s29, 12
         s_add_u32 s13, s13, {sc}
         s_sub_u32 s14, s12, s13
         v_bfe_u32 v1, v0, 3, 2
         v_lshrrev_b32 v2, 5, v0
         v_lshl_add_u32 v1, v2, 3, v1
         v_mul_u32_u24 v1, 1152, v1'''.format(tick=L_TICK, rows=64 * 1152, pf=L_PF + 72 * 1024, sc=L_SC))
    dma_chunk(2, 3)
    a('v_add_u32 v1, v1, v2\nv_lshrrev_b32 v2, 2, v0')
    tr_addrs(28, 2, 's12', 3)
    each(4, 'v_subrev_u32 v{d}, s14, v{x}', d=32, x=28)
    if P['w2after']:
        a('''L_w2wait:
             s_sleep 2
             ds_read_b32 v9, v60 offset:20
             s_waitcnt lgkmcnt(0)
             v_cmp_gt_u32 vcc, 4, v9
             s_cbranch_vccnz L_w2wait''')
    for u in range(6):
        ks, blk = divmod(u, 3)
        for t in range(4):
            a('s_add_u32 m0, %s, %d' % ('s12' if u < 5 else 's13', (4096 * u if u < 5 else 0) + 1024 * t))
            a('s_add_u32 s20, s16, %d' % ((32 * ks + 16 * (t & 1) + 4 * (t >> 1)) * 1152 + 128 * blk))
            pace(4 * u + t, P['pace_2'])
            a('buffer_load_dwordx4 v1, s[36:39], s20 offen %s lds' % WPOL)
    a('''s_lshl_b32 s20, s29, 7
         s_add_u32 s20, s20, {hv}
         v_and_b32 v18, 3, v0
         v_lshlrev_b32 v18, 4, v18
         v_lshrrev_b32 v19, 2, v0
         v_add_u32 v18, v18, v19
         v_lshl_add_u32 v18, v18, 1, s20
         v_lshl_add_u32 v19, v16, 4, s20
         v_lshlrev_b32 v23, 2, v0
         v_lshrrev_b32 v17, 2, v17
         v_mov_b32 v16, {zero}'''.format(hv=L_HV, zero=L_ZERO))
    for blk in range(3):
        a('v_cmp_eq_u32 vcc, %d, v17\nv_cndmask_b32 v%d, v16, v19, vcc' % (blk, 20 + blk))
    a('''s_mul_i32 s22, s21, 2304
         s_mul_i32 s20, s29, 768
         s_add_u32 s22, s22, s20
         s_add_u32 s22, s22, %d''' % WS_H3)
    for u in range(6):
        a('s_waitcnt vmcnt(%d) lgkmcnt(4)' % (20 - 4 * u))
        for j in range(4):
            for h in range(2):
                a('ds_read_b64_tr_b16 %s, v%d offset:%d' % (vr(QB + 16 * u + 4 * j + 2 * h, 2), (28 if u < 5 else 32) + j, (4096 * u if u < 5 else 0) + 2048 * h))
    stamp(7)
    a('''L_await:
         s_sleep 2
         ds_read_b32 v9, v60 offset:{ac}
         s_waitcnt lgkmcnt(0)
         v_cmp_gt_u32 vcc, 3, v9
         s_cbranch_vccnz L_await
         L_bwait:
         ds_read_b32 v9, v60 offset:{bc}
         ds_read2st64_b32 v[24:25], v23 offset0:{p0} offset1:{p1}
         ds_read2st64_b32 v[26:27], v23 offset0:{p2} offset1:{p3}
         s_waitcnt lgkmcnt(0)
         v_cmp_gt_u32 vcc, 4, v9
         v_add_f32 v24, v24, v25
         v_add_f32 v26, v26, v27
         s_cbranch_vccnz L_bwait
         v_add_f32 v24, v24, v26
         v_maximum3_f32 v24, v24, 0, 0
         v_cvt_pk_bf16_f32 v24, v24, v24
         ds_write_b16 v18, v24'''.format(ac=L_ACNT, bc=L_BCNT, p0=L_PART // 256, p1=L_PART // 256 + 1, p2=L_PART // 256 + 2, p3=L_PART // 256 + 3))
    for ks in range(2):
        for blk in range(3):
            a('ds_read_b128 %s, v%d offset:%d' % (vr(64 + 4 * (ks * 3 + blk), 4), 20 + blk, 64 * ks))
    for u in range(6):
        a('s_waitcnt lgkmcnt(%d)' % (5 - u))
        for cc in range(4):
            d = vr(DD + 4 * cc, 4)
            a('%s %s, %s, %s, %s' % (MF32, d, vr(64 + 4 * u, 4), vr(QB + 16 * u + 4 * cc, 4), d if u else '0'))
    for cc in range(4):
        a('v_and_or_b32 v%d, v%d, v11, s%d' % (24 + cc, DD + 4 * cc, 96 + cc))
    a('''s_mov_b32 exec_hi, 0xffff
         buffer_store_dwordx4 v[24:27], v4, s[24:27], s22 offen %s
         s_mov_b64 exec, -1''' % ST)
    stamp(8)
    a.label('L_sexit')
    stamp_flush()
    a('s_endpgm')
    a.fence()

    sW, sWS, sIN, sOUT, sDBG = 's[36:39]', 's[40:43]', 's[44:47]', 's[48:51]', 's[52:55]'
    RAW = 16
    XB, DR = 64, 84
    PB = 116
    XI, XF = 204, 212
    vSH, vSC, vX, vGA = 228, 232, 236, 240
    vGQ, vN, vXVw, vXVr, vPW, vMK, vA1, vA2, vA3, vA4, vA5, vXo = range(244, 256)
    a.label('L_service')
    a('''s_load_dwordx2 s[56:57], s[0:1], 0
         s_load_dwordx4 s[60:63], s[0:1], 24
         s_load_dwordx4 s[64:67], s[0:1], 48
         s_load_dwordx4 s[68:71], s[0:1], 64
         s_load_dwordx4 s[72:75], s[0:1], 80
         s_load_dwordx2 s[76:77], s[0:1], 96
         v_mov_b32 v1, 0
         v_lshlrev_b32 v2, 2, v0
         ds_write_b32 v2, v1
         s_sub_u32 s33, s3, 4
         v_lshrrev_b32 v{GQ}, 4, v0
         v_and_b32 v{N}, 15, v0
         v_lshlrev_b32 v14, 4, v0
         s_mov_b32 s39, 0x20000
         s_mov_b32 s42, {wsz}
         s_mov_b32 s43, 0x20000
         s_mov_b32 s46, 1152
         s_mov_b32 s47, 0x20000
         s_mov_b32 s50, 1152
         s_mov_b32 s51, 0x20000
         s_mov_b32 s54, 256
         s_mov_b32 s55, 0x20000
         s_mov_b32 s81, 0
         s_mov_b32 s82, 0x05040100
         s_mov_b32 s83, 0x07060302
         s_mov_b32 s84, -1
         s_mov_b32 s85, 15
         ; prologue role: s89 = 0 wq slice s80, 1 w_mod slice s80, 2 none; s31 = row half; s29 = row quarter
         {rolemap}
         s_lshl_b32 s87, s32, 2
         s_add_u32 s87, s87, s86
         s_lshl_b32 s80, s86, 4
         s_add_u32 s80, s80, s32
         s_cmp_eq_u32 s89, 0
         s_cselect_b32 s80, s87, s80
         s_cselect_b32 s87, 64, 54
         s_cmp_lt_u32 s80, s87
         s_cselect_b32 s89, s89, 2
         s_cmp_lt_u32 s33, 2
         s_cselect_b32 s89, s89, 2
         s_lshl_b32 s29, s31, 1
         s_add_u32 s29, s29, s33
         s_mov_b32 s58, {hs}
         s_waitcnt lgkmcnt(0)
         s_barrier     ; #1
         s_load_dword s35, s[76:77], {ep}
         s_mov_b32 s40, s76
         s_mov_b32 s41, s77
         s_mov_b32 s48, s72
         s_mov_b32 s49, s73
         s_mov_b32 s52, s74
         s_mov_b32 s53, s75
         s_cmp_eq_u32 s89, 1
         s_cselect_b32 s36, s70, s60
         s_cselect_b32 s37, s71, s61
         s_cselect_b32 s78, 1280, 0
         s_cselect_b32 s44, s68, s56
         s_cselect_b32 s45, s69, s57
         s_sub_u32 s78, 8192, s78
         s_mul_i32 s38, s78, {rows}
         s_mul_i32 s86, s33, {xs}
         s_add_u32 s86, s86, {xv}
         v_lshl_add_u32 v{XVw}, v0, 3, s86
         v_mul_u32_u24 v1, 72, v{GQ}
         v_add_u32 v{XVr}, s86, v1
         s_lshl_b32 s86, s33, 8
         v_add_u32 v{PW}, s86, v14
         s_cmp_eq_u32 s89, 2
         s_cbranch_scc1 L_norole'''.format(GQ=vGQ, N=vN, wsz=WS_SIZE, ep=WS_EPOCH, rows=0 if 'noprow' in ABL else 576,
                                           xs=XV_STRIDE, xv=L_XV, XVw=vXVw, XVr=vXVr, PW=vPW, hs=HS, rolemap=('''s_lshr_b32 s32, s34, 4
         s_bfe_u32 s86, s34, 0x20001
         s_bfe_u32 s31, s34, 0x10003
         s_and_b32 s89, s34, 1''', '''s_lshr_b32 s32, s2, 4
         s_lshr_b32 s86, s2, 5
         s_lshr_b32 s87, s2, 1
         s_add_u32 s86, s86, s87
         s_and_b32 s86, s86, 3
         s_bfe_u32 s31, s2, 0x10003
         s_xor_b32 s89, s32, s2
         s_and_b32 s89, s89, 1''')[P['pmap']]))
    stamp(17)

    def gemv_loads(quarter, w, wfast=None, sig=0):
        a('''s_mul_i32 s86, %s, 144
             v_mul_u32_u24 v1, 36, v%d
             v_add_u32 v1, s86, v1
             v_mul_lo_u32 v1, v1, s78
             v_lshl_add_u32 v1, v%d, 3, v1
             s_lshl_b32 s79, s80, 7''' % (quarter, vGQ, vN))
        for i in range(36):
            if wfast is None or wfast == w:
                pace(i, w)
            elif w and i >= w:
                skip = lab('pc')
                pace(i, wfast)
                a('s_cbranch_vccnz %s' % skip)
                pace(i, w)
                a.label(skip)
            a('buffer_load_dwordx2 %s, v1, %s, s79 offen %s' % (vr(PB + 16 + 2 * i, 2), sW, WPOL))
            if i < 35:
                a('s_add_u32 s79, s79, s78')
            if sig and i + 1 == sig:
                a('v_mov_b32 v2, 0\nv_mov_b32 v3, 1\ns_mov_b64 exec, 1\nds_add_u32 v2, v3 offset:20\ns_mov_b64 exec, -1')

    def gemv_perm():
        for u in range(4):
            blk_perm(PB, u)
        blk_perm(PB, 4, rows=4)

    def gemv_run():
        a('s_mov_b64 exec, -1')
        a('ds_read_b64 %s, v%d offset:64' % (vr(XB + 16, 2), vXVr))
        for z in range(4):
            a('ds_read2_b64 %s, v%d offset0:%d offset1:%d' % (vr(XB + 4 * z, 4), vXVr, 2 * z, 2 * z + 1))
        a('s_waitcnt lgkmcnt(4)')
        for cc in range(4):
            a('%s %s, %s, %s, 0' % (MF16, vr(DR + 16 + 4 * cc, 4), vr(XB + 16, 2), vr(PB + 64 + 2 * cc, 2)))
        for z in range(4):
            a('s_waitcnt lgkmcnt(%d)' % (3 - z))
            for cc in range(4):
                d = vr(DR + 4 * cc, 4)
                a('%s %s, %s, %s, %s' % (MF32, d, vr(XB + 4 * z, 4), vr(PB + 16 * z + 4 * cc, 4), d if z else '0'))
        for cc in range(4):
            a('v_add_f32 v%d, v%d, v%d' % (4 + cc, DR + 4 * cc, DR + 16 + 4 * cc))
        a('''s_mov_b64 exec, 0xffff
             ds_write_b128 v%d, v[4:7] offset:%d''' % (vPW, L_PART))

    def unpack(dst, src):
        for i, r in enumerate(src):
            a('v_lshlrev_b32 v%d, 16, v%d' % (dst + 2 * i, r))
            a('v_and_b32 v%d, 0xffff0000, v%d' % (dst + 2 * i + 1, r))

    def ln_finish(X):
        a('''v_mul_f32 v2, 0x3ae38e39, v2
             v_mul_f32 v3, 0x3ae38e39, v3
             v_fma_f32 v3, -v2, v2, v3
             v_cvt_pk_bf16_f32 v2, 0, v2
             v_max_f32 v3, 0, v3
             v_cvt_pk_bf16_f32 v3, 0, v3
             v_sub_f32 v{x0}, v{x0}, v2
             v_add_f32 v3, 0x3727c5ac, v3
             v_sub_f32 v{x1}, v{x1}, v2
             v_cvt_pk_bf16_f32 v3, 0, v3
             v_sub_f32 v{x2}, v{x2}, v2
             v_sqrt_f32 v3, v3
             v_sub_f32 v{x3}, v{x3}, v2
             v_cvt_pk_bf16_f32 v{x0}, 0, v{x0}
             v_cvt_pk_bf16_f32 v3, 0, v3
             v_cvt_pk_bf16_f32 v{x1}, 0, v{x1}
             v_rcp_f32 v3, v3
             v_cvt_pk_bf16_f32 v{x2}, 0, v{x2}
             v_cvt_pk_bf16_f32 v{x3}, 0, v{x3}'''.format(x0=X, x1=X + 1, x2=X + 2, x3=X + 3))
        each(4, 'v_mul_f32 v{x}, v{x}, v3', x=X)
        each(4, 'v_cvt_pk_bf16_f32 v{x}, 0, v{x}', x=X)

    def modulate(X):
        each(4, 'v_mul_f32 v{x}, v{x}, v{c}', x=X, c=vSC)
        each(4, 'v_cvt_pk_bf16_f32 v{x}, 0, v{x}', x=X)
        each(4, 'v_add_f32 v{x}, v{x}, v{s}', x=X, s=vSH)
        a('''v_cvt_pk_bf16_f32 v2, v%d, v%d
             v_cvt_pk_bf16_f32 v3, v%d, v%d
             ds_write_b64 v%d, v[2:3]''' % (X, X + 1, X + 2, X + 3, vXVw))

    def wait_lds(off, val, sl):
        loop = lab('wl')
        a('''%s:
             s_sleep %d
             ds_read_b32 v2, v1 offset:%d
             s_waitcnt lgkmcnt(0)
             v_cmp_gt_u32 vcc, %s, v2
             s_cbranch_vccnz %s''' % (loop, sl, off, val, loop))

    def spin_tail(loop, sl):
        if sl:
            a('s_sleep %d' % sl)
        a('''s_add_u32 s81, s81, 1
             s_cmp_lt_u32 s81, %d
             s_cbranch_scc1 %s''' % (P['spin'], loop))

    def poll_nib(loads, regs, lane_tag=False):
        if 'nopoll' in ABL:
            return
        loop, done = lab('pt'), lab('ptd')
        if lane_tag:
            a('v_and_b32 v3, 12, v%d\nv_lshlrev_b32 v3, 1, v3\nv_bfe_u32 v3, s35, v3, 4' % vA4)
        a.label(loop)
        for l in loads:
            a(l + ' ' + LD)
        a('s_waitcnt vmcnt(0)')
        for i, r in enumerate(regs):
            a('v_xor_b32 v%d, %s, v%d' % (r, 'v3' if lane_tag else 's%d' % (24 + (i & 3)), r))
        a('v_or_b32 v2, v%d, v%d' % (regs[0], regs[1]))
        for i in range(2, len(regs), 2):
            a('v_or3_b32 v2, v2, v%d, v%d' % (regs[i], regs[i + 1]))
        a('''v_and_b32 v2, 15, v2
             v_cmp_ne_u32 vcc, 0, v2
             s_cbranch_vccz %s''' % done)
        spin_tail(loop, P['psl'])
        a.label(done)

    def poll_masked(groups, hi='-1', base=4, sl=None, between=None):
        loop, done = lab('pm'), lab('pmd')
        ms = ['s[%d:%d]' % (base + 2 * i, base + 1 + 2 * i) for i in range(len(groups))]
        for i in range(len(groups)):
            a('s_mov_b32 s%d, -1\ns_mov_b32 s%d, %s' % (base + 2 * i, base + 1 + 2 * i, hi))
        chk = lab('pmc')
        if between:
            for loads, quads in groups:
                for l in loads:
                    a(l + ' ' + LD)
            between()
            a('s_branch %s' % chk)
        a.label(loop)
        for m, (loads, quads) in zip(ms, groups):
            skip = lab('sk')
            a('s_mov_b64 exec, %s\ns_cbranch_execz %s' % (m, skip))
            for l in loads:
                a(l + ' ' + LD)
            a.label(skip)
        a.label(chk)
        a('s_mov_b64 vcc, 0\ns_waitcnt vmcnt(0)')
        for m, (loads, quads) in zip(ms, groups):
            skip = lab('sk')
            a('s_mov_b64 exec, %s\ns_cbranch_execz %s' % (m, skip))
            for qi, r in enumerate(quads):
                each(4, 'v_xor_b32 v{r}, s{t}, v{r}', r=r, t=96)
                if qi == 0:
                    a('v_or3_b32 v2, v%d, v%d, v%d' % (r, r + 1, r + 2))
                    last = r + 3
                else:
                    a('v_or3_b32 v2, v2, v%d, v%d' % (r, r + 1))
                    a('v_or3_b32 v2, v2, v%d, v%d' % (r + 2, r + 3))
            a('''v_or_b32 v2, v2, v%d
                 v_and_b32 v2, 0xff, v2
                 v_cmp_ne_u32 %s, 0, v2
                 s_wqm_b64 %s, %s
                 s_or_b64 vcc, vcc, %s''' % (last, m, m, m, m))
            a.label(skip)
        a('s_cbranch_vccz %s' % done)
        spin_tail(loop, P['sleep'] if sl is None else sl)
        a.label(done)
        a('s_mov_b64 exec, -1')

    def gate(addr, maxmiss):
        if maxmiss >= 8:
            return
        loop, done = lab('gt'), lab('gtd')
        a('s_mov_b64 exec, 0xff')
        a.label(loop)
        a('''buffer_load_dwordx2 v[4:5], v%d, %s, 0 offen %s
             s_waitcnt vmcnt(0)
             v_xor_b32 v4, s96, v4
             v_xor_b32 v5, s97, v5
             v_or_b32 v4, v4, v5
             v_and_b32 v4, 0xff, v4
             v_cmp_ne_u32 vcc, 0, v4
             s_bcnt1_i32_b64 s86, vcc
             s_cmp_le_u32 s86, %d
             s_cbranch_scc1 %s''' % (addr, sWS, LD, maxmiss, done))
        spin_tail(loop, P['gsleep'])
        a.label(done)

    def load_shift_scale(first, quarter):
        a('''s_mul_i32 s86, %s, 576
             s_add_u32 s86, s86, %d
             v_add_u32 v1, s86, v14''' % (quarter, WS_MOD + first * 2304))
        poll_nib(['buffer_load_dwordx4 %s, v1, %s, %s offen offset:%d' % (vr(RAW + 8 * h + 4 * k, 4), sWS, ('0', 's58')[h], 2304 * k)
                  for h in range(2) for k in range(2)], list(range(RAW, RAW + 16)))
        each(8, 'v_add_f32 v{d}, v{x}, v{y}', d=vSH, x=RAW, y=RAW + 8)
        each(8, 'v_cvt_pk_bf16_f32 v{d}, 0, v{d}', d=vSH)
        each(4, 'v_add_f32 v{c}, 1.0, v{c}', c=vSC)
        each(4, 'v_cvt_pk_bf16_f32 v{c}, 0, v{c}', c=vSC)

    each(8, 'v_mov_b32 v{r}, 0', r=XI)
    a('''s_mov_b64 exec, s[84:85]
         v_lshlrev_b32 v2, 3, v0''')
    for k in range(4):
        a('''s_add_u32 s86, s29, %d
             s_and_b32 s86, s86, 3
             s_mul_i32 s86, s86, 288
             buffer_load_dwordx2 %s, v2, %s, s86 offen nt''' % (k, vr(XI + 2 * k, 2), sIN))
    a('''s_mov_b64 exec, -1
         s_cmp_lt_u32 s80, 18
         s_cselect_b32 s86, s89, 0
         s_cmp_eq_u32 s86, 1
         s_cselect_b64 vcc, -1, 0''')
    a('''s_lshl_b32 s86, s80, 2
         s_or_b32 s86, s86, s29
         s_lshl_b32 s86, s86, 2
         s_or_b32 s86, s86, s89
         s_cmp_lg_u32 s86, 1
         s_cbranch_scc1 L_nozero
         v_mul_u32_u24 v1, 0x1100, v0
         v_mov_b32 v2, 0
         v_mov_b32 v3, 0
         s_mov_b32 s86, %d
         s_mov_b64 exec, 0x%x
         buffer_store_dwordx2 v[2:3], v1, %s, s86 offen %s
         s_mov_b64 exec, -1
         L_nozero:''' % (WS_TK, (1 << (8 + (P['mile'][2] if P['mile'] else 0))) - 1, sWS, ST))
    gemv_loads('s29', P['ppace'], P['apace'])
    stamp(18)
    a('''s_waitcnt lgkmcnt(0)
         %s
         s_waitcnt vmcnt(36)''' % TAGGEN)
    unpack(XF, range(XI, XI + 8))
    a('''s_cmp_eq_u32 s89, 0
         s_cbranch_scc1 L_qrole''')
    a('s_mov_b64 exec, s[84:85]\ns_mov_b32 s86, 0x32a57060\ns_mov_b32 s87, 0x7f7fffff')
    for ins in ['v_mul_f32 v{t}, 0xbfb8aa3b, v{x}',
                'v_fma_f32 v{r}, -v{x}, s19, -v{t}',
                'v_exp_f32 v{t}, v{t}',
                'v_fma_f32 v{r}, -v{x}, s86, v{r}',
                'v_mul_f32 v{r}, 0x3f317218, v{r}',
                'v_med3_f32 v{r}, v{r}, -0.5, 0.5',
                'v_min_f32 v{e}, s87, v{t}',
                'v_fma_f32 v{t}, v{e}, v{r}, v{t}',
                'v_add_f32 v{t}, 1.0, v{t}',
                'v_rcp_f32 v{r}, v{t}',
                'v_mul_f32 v{e}, v{x}, v{r}',
                'v_fma_f32 v{f}, -v{e}, v{t}, v{x}',
                'v_fma_f32 v{e}, v{f}, v{r}, v{e}',
                'v_div_fixup_f32 v{t}, v{e}, v{t}, v{x}']:
        each(4, ins, t=4, r=8, e=XF + 4, f=XF + 8, x=XF)
    a('''v_cvt_pk_bf16_f32 v2, v4, v5
         v_cvt_pk_bf16_f32 v3, v6, v7
         ds_write_b64 v%d, v[2:3]
         s_mov_b64 exec, -1
         s_mov_b32 s88, %d
         s_branch L_wperm''' % (vXVw, WS_MOD))
    a.fence()
    a.label('L_qrole')
    a('v_add_f32 v2, v%d, v%d\nv_mul_f32 v3, v%d, v%d' % (XF, XF + 1, XF, XF))
    a('v_fmac_f32 v3, v%d, v%d' % (XF + 1, XF + 1))
    for i in range(2, 16):
        a('v_add_f32 v2, v2, v%d\nv_fmac_f32 v3, v%d, v%d' % (XF + i, XF + i, XF + i))
    allred('v_add_f32', [2, 3], [4, 5])
    ln_finish(XF)
    a('s_mov_b32 s88, %d' % WS_Q)
    a.label('L_wperm')
    a('s_waitcnt vmcnt(0)')
    stamp(1)
    gemv_perm()
    a('''s_cmp_eq_u32 s89, 1
         s_cbranch_scc1 L_gemv_run
         s_mov_b64 exec, s[84:85]''')
    if P['mtile']:
        a('v_mov_b32 v1, 0')
        wait_lds(L_PPROG, P['mtile'], 4)
    load_shift_scale(0, 's29')
    stamp(2)
    modulate(XF)
    a.label('L_gemv_run')
    gemv_run()
    a('''s_mov_b64 exec, 1
         v_mov_b32 v1, 0
         v_mov_b32 v2, 1
         ds_add_rtn_u32 v2, v1, v2 offset:%d
         s_mov_b64 exec, 0xffff''' % L_CNT)
    a('''ds_read_b128 v[4:7], v14 offset:{p0}
         ds_read_b128 v[8:11], v14 offset:{p1}
         s_lshl_b32 s86, s80, 8
         s_add_u32 s88, s88, s86
         s_mul_i32 s86, s31, {hs}
         s_add_u32 s88, s88, s86
         s_waitcnt lgkmcnt(0)
         v_readfirstlane_b32 s86, v2'''.format(p0=L_PART, p1=L_PART + 256, hs=HS))
    each(4, 'v_add_f32 v{x}, v{x}, v{y}', x=4, y=8)
    each(4, 'v_add_u32 v{x}, 8, v{x}', x=4)
    each(4, 'v_and_or_b32 v{x}, v{x}, -16, s{t}', x=4, t=24)
    a('''s_cmp_lg_u32 s86, 1
         s_cbranch_scc1 L_pro_done
         buffer_store_dwordx4 v[4:7], v14, %s, s88 offen %s''' % (sWS, '' if 'nopoll' in ABL else ST))
    stamp(3)
    a('s_branch L_pro_done')
    a.fence()
    a.label('L_norole')
    a('s_waitcnt lgkmcnt(0)\n' + TAGGEN)
    a.label('L_pro_done')
    a('''s_mov_b64 exec, -1
         s_cmp_lg_u32 s33, 2
         s_cbranch_scc1 L_q_done
         v_mov_b32 v1, 0''')
    if P['qtile']:
        wait_lds(L_PPROG, P['qtile'], 4)
    a('''s_lshr_b32 s86, s34, 4
         s_lshl_b32 s86, s86, 10
         s_add_u32 s86, s86, %d
         v_add_u32 v1, s86, v14''' % WS_Q)
    if P['qdelay']:
        a('s_sleep %d' % P['qdelay'])
    poll_nib(['buffer_load_dwordx4 v[4:7], v1, %s, 0 offen' % sWS, 'buffer_load_dwordx4 v[8:11], v1, %s, s58 offen' % sWS], list(range(4, 12)))
    each(4, 'v_add_f32 v{x}, v{x}, v{y}', x=4, y=8)
    a('''v_lshlrev_b32 v1, 3, v0
         v_cvt_pk_bf16_f32 v4, v4, v5
         v_cvt_pk_bf16_f32 v5, v6, v7
         ds_write_b64 v1, v[4:5] offset:%d
         v_mov_b32 v1, 0
         v_mov_b32 v2, 1
         ds_write_b32 v1, v2 offset:%d''' % (L_Q, L_QOK))
    stamp(4)
    a.label('L_q_done')
    if P['bar2']:
        a('s_waitcnt lgkmcnt(0)\ns_barrier     ; #2')
    else:
        a('v_mov_b32 v1, 0')
        wait_lds(L_QOK, 1, 8)
    stamp(5)
    a('''v_mov_b32 v{MK}, 0xffffff00
         s_mov_b32 s44, s56
         s_mov_b32 s45, s57
         s_mul_i32 s86, s33, 192
         v_add_u32 v1, s86, v0
         v_lshlrev_b32 v{A4}, 2, v1
         v_lshlrev_b32 v2, 1, v1
         s_getreg_b32 s4, hwreg(HW_REG_XCC_ID, 0, 4)
         s_and_b32 s87, s4, {rm}
         s_mul_i32 s87, s87, {h2r}
         s_mul_i32 s86, s33, 6144
         s_add_u32 s86, s86, s87
         s_add_u32 s86, s86, {h2}
         v_add_u32 v{A3}, s86, v14
         v_lshl_add_u32 v{A5}, v{N}, 8, s86
         s_mul_i32 s86, s33, 576
         v_add_u32 v{Xo}, s86, v14
         v_mov_b32 v{A1}, 0
         v_mov_b32 v{A2}, 0
         s_mov_b32 s22, 4096
         s_and_b32 s15, s4, 7
         s_mul_i32 s4, s4, 0x1400
         s_add_u32 s4, s4, {pg}
         s_lshl_b32 s6, s35, 9
         s_movk_i32 s7, 0x200
         s_sub_u32 s86, s2, 72
         s_cmp_ge_u32 s86, {ncand}
         s_cbranch_scc1 L_prep_skip
         s_cmp_eq_u32 s33, 3
         s_cbranch_scc1 L_prep_join'''.format(GQ=vGQ, N=vN, A4=vA4, A3=vA3, A1=vA1, A2=vA2, A5=vA5, h2=WS_H2, MK=vMK, Xo=vXo, ncand=72 if P['sffn'] else 184, rm=P['nrep'] - 1, h2r=H2R, pg=WS_PG))
    for i in range(3):
        a('buffer_load_ushort v%d, v2, %s, 0 offen offset:%d nt' % (vX + i, sIN, 128 * i))
    a('v_add_u32 v1, %d, v%d' % (WS_MOD + 2 * 2304, vA4))
    poll_nib(['buffer_load_dword v%d, v1, %s, %s offen offset:%d' % (4 + 3 * h + i, sWS, ('0', 's58')[h], 256 * i) for h in range(2) for i in range(3)],
             list(range(4, 10)), lane_tag=True)
    a('s_waitcnt vmcnt(0)')
    each(3, 'v_lshlrev_b32 v{x}, 16, v{x}', x=vX)
    each(3, 'v_add_f32 v{g}, v{x}, v{y}', g=vGA, x=4, y=7)
    each(3, 'v_cvt_pk_bf16_f32 v{g}, 0, v{g}', g=vGA)
    a.label('L_prep_join')
    a('s_mov_b64 exec, s[84:85]')
    load_shift_scale(3, 's33')
    a('s_mov_b64 exec, -1')
    a.label('L_prep_skip')
    stamp(6)
    STEPS = 4 * (32 - NP + 30)

    def wo_dma(q):
        a('''s_and_b32 s29, s2, 7
             s_lshr_b32 s32, s2, 3
             s_mov_b32 s36, s62
             s_mov_b32 s37, s63
             s_mov_b32 s38, {szo}
             v_bfe_u32 v3, v0, 3, 2
             v_lshrrev_b32 v2, 5, v0
             v_lshl_add_u32 v3, v3, 3, v2
             v_mul_u32_u24 v3, 1152, v3
             s_lshl_b32 s86, s29, 9
             s_lshl_b32 s87, {q}, 1
             s_add_u32 s86, s86, s87
             s_mul_i32 s86, s86, 1152
             s_lshl_b32 s79, s32, 7
             s_add_u32 s79, s79, s86
             s_lshl_b32 s87, {q}, 14
             s_add_u32 s87, s87, {pf}'''.format(pf=L_PF, q=q, szo=0 if 'nowo' in ABL else 4096 * 1152))
        dma_chunk(2, 4)
        a('v_add_u32 v3, v3, v2')
        for t in range(16):
            gi, m = t >> 3, (t >> 1) & 3
            a('s_add_u32 m0, s87, %d' % (1024 * t))
            a('s_add_u32 s86, s79, %d' % ((gi * 256 + (t & 1) * 128 + 32 * m) * 1152))
            if P['wo_early']:
                a('s_waitcnt vmcnt(%d)' % (P['pace_o'] - 1))
            else:
                pace(t, P['pace_o'])
            a('buffer_load_dwordx4 v3, %s, s86 offen %s lds' % (sW, WPOL))

    a('''v_mov_b32 v1, 0
         s_cmp_eq_u32 s33, 0
         s_cbranch_scc1 L_control
         s_cmp_lg_u32 s33, 1
         s_cbranch_scc1 L_w23''')
    if 'nostats' in ABL:
        a('v_mov_b32 v2, 2\nds_write_b32 v1, v2 offset:%d\ns_branch L_wait_ticket' % L_FOK)
    wait_lds(L_KCNT, 4, 16)
    a('''ds_read_b128 v[4:7], v1 offset:{ss}
         ds_read_b128 v[8:11], v1 offset:{ss2}
         v_and_b32 v2, 31, v0
         s_and_b32 s86, s2, 7
         s_lshl_b32 s86, s86, 2
         v_lshl_add_u32 v2, v2, 5, s86
         buffer_load_dword v3, v2, {ws}, s4 offen {ld}
         v_add_u32 v12, {sc}, v14
         v_mov_b32 v22, 0
         v_mov_b32 v23, 0
         s_mov_b32 s86, 16
         s_waitcnt lgkmcnt(0)
         v_max3_f32 v20, v4, v6, v8
         v_max3_f32 v21, v5, v7, v9
         v_max_f32 v20, v20, v10
         v_max_f32 v21, v21, v11
         L_lsum:
         ds_read_b128 v[4:7], v12
         v_add_u32 v12, 1024, v12
         s_waitcnt lgkmcnt(0)'''.format(ss=L_SS, ss2=L_SS + 16, ws=sWS, ld=LD, sc=L_SC))
    each(4, 'v_lshlrev_b32 v{d}, 16, v{x}', d=8, x=4)
    each(4, 'v_and_b32 v{x}, 0xffff0000, v{x}', x=4)
    each(4, 'v_sub_f32 v{d}, v{d}, v20', d=8)
    each(4, 'v_sub_f32 v{x}, v{x}, v21', x=4)
    each(8, 'v_mul_f32 v{x}, s19, v{x}', x=4)
    each(8, 'v_exp_f32 v{x}, v{x}', x=4)
    each(4, 'v_add_f32 v23, v23, v{x}', x=4)
    each(4, 'v_add_f32 v22, v22, v{x}', x=8)
    a('''s_sub_u32 s86, s86, 1
         s_cmp_lg_u32 s86, 0
         s_cbranch_scc1 L_lsum''')
    allred('v_add_f32', [22, 23], [4, 5])
    a('''s_waitcnt vmcnt(0)
         v_xor_b32 v3, s6, v3
         v_cmp_le_u32 vcc, s7, v3
         s_lshl_b32 s86, s34, 4
         s_add_u32 s86, s86, {h1s}
         s_cmp_eq_u64 vcc, 0
         s_cselect_b32 s5, {loc}, 1'''.format(h1s=WS_H1S, loc=2 if P['local'] else 1))
    each(4, 'v_and_or_b32 v{r}, v{r}, v%d, s{t}' % vMK, r=20, t=96)
    a('''s_mov_b64 exec, 1
         s_cmp_eq_u32 s5, 2
         s_cbranch_scc0 L_stfar
         buffer_store_dwordx4 v[20:23], v1, {ws}, s86 offen
         s_branch L_stdone
         L_stfar:
         buffer_store_dwordx4 v[20:23], v1, {ws}, s86 offen {st}
         L_stdone:
         s_mov_b64 exec, -1'''.format(ws=sWS, st=ST))
    wait_lds(L_TRIG, STEPS - P['pret'], 16)
    a('''s_cmp_eq_u32 s5, 2
         s_cbranch_scc0 L_nopre
         ; bring this workgroup's outgoing lines into L2 and mark them as not yet written
         s_lshl_b32 s87, s34, 10
         s_add_u32 s87, s87, {h1o}
         buffer_load_dwordx4 v[4:7], v14, {ws}, s87 offen nt
         s_waitcnt vmcnt(0)
         v_not_b32 v4, s96
         v_not_b32 v5, s97
         v_not_b32 v6, s98
         v_not_b32 v7, s99
         buffer_store_dwordx4 v[4:7], v14, {ws}, s87 offen
         L_nopre:
         s_and_b32 s86, s86, 0xffffff00
         v_lshl_add_u32 v3, v{N}, 4, s86
         v_lshlrev_b32 v12, 3, v0
         ds_read_b64 v[10:11], v12 offset:{ss}'''.format(h1o=WS_H1O, ws=sWS, N=vN, ss=L_SS))
    poll_masked([(['buffer_load_dwordx4 v[20:23], v3, %s, 0 offen' % sWS], [20])], base=8, sl=16)
    a('v_mov_b32 v4, v20\nv_mov_b32 v5, v21')
    rowred('v_max_f32', [4, 5])
    each(2, 'v_sub_f32 v{d}, v{d}, v{m}', d=20, m=4)
    a('s_waitcnt lgkmcnt(0)')
    each(2, 'v_sub_f32 v{d}, v{d}, v{m}', d=10, m=4)
    each(2, 'v_mul_f32 v{d}, s19, v{d}', d=20)
    each(2, 'v_mul_f32 v{d}, s19, v{d}', d=10)
    each(2, 'v_exp_f32 v{d}, v{d}', d=20)
    each(2, 'v_exp_f32 v{d}, v{d}', d=10)
    each(2, 'v_mul_f32 v{l}, v{l}, v{d}', l=22, d=20)
    rowred('v_add_f32', [22, 23])
    each(2, 'v_rcp_f32 v{l}, v{l}', l=22)
    each(2, 'v_mul_f32 v{d}, v{d}, v{l}', d=10, l=22)
    a('''v_mov_b32 v2, s5
         s_mov_b64 exec, 15
         ds_write_b64 v12, v[10:11] offset:%d
         s_mov_b64 exec, 1
         ds_write_b32 v1, v2 offset:%d
         s_mov_b64 exec, -1''' % (L_F, L_FOK))
    stamp(20)
    a('s_branch L_wait_ticket')
    a.fence()
    a.label('L_w23')
    if P['wo_early']:
        a('s_cmp_ge_u32 s2, 72\ns_cbranch_scc1 L_wait_ticket')
        wait_lds(L_KCNT, 4, 16)
        a('s_sub_u32 s20, s33, 2\nL_wo2:')
        wo_dma('s20')
        a('''s_add_u32 s20, s20, 2
             s_cmp_lt_u32 s20, 4
             s_cbranch_scc1 L_wo2
             v_mov_b32 v2, 1
             s_waitcnt vmcnt(0)
             s_mov_b64 exec, 1
             ds_add_u32 v1, v2 offset:%d
             s_mov_b64 exec, -1''' % L_OCNT)
    a('s_branch L_wait_ticket')
    a.fence()
    a('''L_control:
         s_lshl_b32 s15, s15, 2
         s_lshr_b32 s15, {xb}, s15
         s_and_b32 s15, s15, 15
         s_sub_i32 s15, s15, 8
         s_lshl_b32 s5, s2, 2
         s_add_u32 s5, s5, s4
         s_mov_b32 s11, {lim}
         s_and_b32 s20, s2, 7
         s_mul_i32 s20, s20, 9
         s_lshr_b32 s21, s2, 3
         s_add_u32 s21, s21, s20
         s_sub_u32 s21, s21, 8
         s_and_b32 s20, s21, 7
         s_cmp_eq_u32 s20, 4
         s_cselect_b32 s10, {lf3}, {lf}
         s_cmp_lt_u32 s2, 144
         s_cselect_b32 s10, s10, 0
         s_cselect_b32 s21, s21, 0xff
         s_cmp_lt_u32 s2, 72
         s_cselect_b32 s10, {lead}, s10
         s_cselect_b32 s11, {limo}, s11
         s_min_u32 s12, s11, {fast}
         s_cmp_ge_u32 s2, 248
         s_cselect_b32 s13, {m0}, -1
         s_mov_b32 s16, {mc}
         L_ctl:
         ds_read_b32 v2, v1 offset:{trig}
         s_waitcnt lgkmcnt(0)
         v_readfirstlane_b32 s8, v2
         s_cmp_ge_u32 s8, s12
         s_cbranch_scc1 L_ctl_fin
         s_sub_i32 s8, s8, s10
         s_max_i32 s8, s8, 0
         s_or_b32 s14, s6, s8
         v_mov_b32 v2, s14
         s_mov_b64 exec, 1
         buffer_store_dword v2, v1, {ws}, s5 offen
         s_mov_b64 exec, -1
         buffer_load_dwordx4 v[4:7], v14, {ws}, s4 offen {ld}
         {mload}
         s_sub_i32 s9, s15, s8
         v_mov_b32 v3, 0
         s_waitcnt vmcnt(0)'''.format(xb=hex(sum((P['bias'] + b + 8) << (4 * i) for i, b in enumerate(P['xb']))), lead=P['lead'], lf=(P['sffn'] or (0, 0))[0], lf3=(P['sffn'] or (0, 0))[1], mload='buffer_load_dword v8, v1, %s, s4 offen offset:1024 %s' % (sWS, LD) if P['mile'] else '',
                                      m0=P['mile'][0] if P['mile'] else -1, mc=WS_TK + 8 * 0x1100, limo=STEPS - P['trigo'], lim=STEPS - P['trig'], fast=STEPS - 2, trig=L_TRIG, ws=sWS, ld=LD))
    for r in range(4, 8):
        a('''v_xor_b32 v{r}, s6, v{r}
             v_cmp_gt_u32 vcc, s7, v{r}
             v_add_u32 v{r}, 0x10000, v{r}
             v_cndmask_b32 v{r}, 0, v{r}, vcc
             v_add_u32 v3, v3, v{r}'''.format(r=r))
    allred('v_add_u32', [3], [4])
    a('''v_lshrrev_b32 v4, 16, v3
         v_and_b32 v3, 0xffff, v3
         v_max_u32 v4, 1, v4
         v_cvt_f32_u32 v4, v4
         v_cvt_f32_u32 v3, v3
         v_rcp_f32 v4, v4
         v_fma_f32 v3, v3, v4, 0.5
         v_cvt_u32_f32 v3, v3''')
    if P['mile']:
        a('''v_readfirstlane_b32 s17, v3
             v_xor_b32 v8, s6, v8
             v_cmp_gt_u32 vcc, s7, v8
             v_subrev_u32 v8, 8, v8
             v_cndmask_b32 v8, 0, v8, vcc
             v_add_u32 v3, v3, v8
             s_cmp_lt_u32 s17, s13
             s_cbranch_scc1 L_nomile
             v_mov_b32 v2, 1
             s_mov_b64 exec, 1
             buffer_atomic_add v2, v1, {ws}, s16 offen sc0
             s_add_u32 s16, s16, 0x1100
             s_add_u32 s13, s13, {dm}
             s_cmp_gt_u32 s13, {last}
             s_cselect_b32 s13, -1, s13
             s_mov_b32 s17, {rt}
             s_waitcnt vmcnt(0)
             v_and_b32 v2, 7, v2
             v_lshlrev_b32 v2, 2, v2
             v_bfe_u32 v2, s17, v2, 4
             v_or_b32 v2, s6, v2
             buffer_store_dword v2, v1, {ws}, s4 offen offset:1024
             s_mov_b64 exec, -1
             L_nomile:'''.format(ws=sWS, dm=P['mile'][1], last=P['mile'][0] + P['mile'][1] * (P['mile'][2] - 1),
                                 rt=hex(sum((b + 8) << (4 * i) for i, b in enumerate(P['rt'])))))
    a('''v_add_u32 v3, s9, v3
         ds_write_b32 v1, v3 offset:{boost}
         s_sleep {per}
         s_branch L_ctl
         L_ctl_fin:
         s_or_b32 s8, s6, {steps}
         v_mov_b32 v2, s8
         v_mov_b32 v3, {fin}
         s_mov_b64 exec, 1
         buffer_store_dword v2, v1, {ws}, s5 offen
         ds_write_b32 v1, v3 offset:{boost}'''.format(boost=L_BOOST, per=P['period'], steps=STEPS, fin=P['fin'], ws=sWS))
    wait_lds(L_TRIG, 's11', 1)
    if 'notail' in ABL:
        a('s_movk_i32 s80, 0xff\ns_branch L_post_ticket')
    a('''s_movk_i32 s80, 100
         s_cmp_lt_u32 s2, 72
         s_cbranch_scc1 L_post_ticket
         {stat}
         s_sub_u32 s87, s2, 72
         s_mul_i32 s87, s87, 179
         s_lshr_b32 s87, s87, 12
         s_mul_i32 s86, s87, 0x1100
         s_add_u32 s86, s86, {tk}
         v_mov_b32 v2, 1
         buffer_atomic_add v2, v1, {ws}, s86 offen sc0
         s_waitcnt vmcnt(0)
         v_readfirstlane_b32 s20, v2
         s_lshl_b32 s21, s20, 3
         s_add_u32 s21, s21, s87
         s_mul_i32 s86, s21, 57
         s_lshr_b32 s86, s86, 9
         s_mul_i32 s87, s86, 9
         s_sub_u32 s21, s21, s87
         s_lshl_b32 s21, s21, 3
         s_add_u32 s86, s86, 3
         s_and_b32 s86, s86, 7
         s_add_u32 s21, s21, s86
         s_add_u32 s21, s21, 1
         s_cmp_lt_u32 s20, 9
         s_cselect_b32 s80, s21, 0xff'''.format(tk=WS_TK, ws=sWS, stat='s_mov_b32 s80, s21\ns_branch L_post_ticket' if P['sffn'] else ''))
    if P['tr']:
        a('''s_min_u32 s20, s20, 9
             s_mul_i32 s20, s20, 3
             s_lshr_b32 s20, %s, s20
             s_and_b32 s20, s20, 7
             s_lshl_b32 s20, s20, 1
             s_sub_u32 s11, %d, s20''' % (hex(sum(((t + 4) // 2) << (3 * i) for i, t in enumerate(P['tr'] + (10,)))), STEPS + 4))
        wait_lds(L_TRIG, 's11', 1)
    a('''L_post_ticket:
         v_mov_b32 v2, s80
         ds_write_b32 v1, v2 offset:{tick}
         s_mov_b64 exec, -1
         s_branch L_have_ticket
         L_wait_ticket:'''.format(tick=L_TICK))
    wait_lds(L_TICK, 1, 3)
    a('''L_have_ticket:
         v_readfirstlane_b32 s80, v2''')
    stamp(8)
    a('''s_sub_u32 s80, s80, 1
         s_mov_b32 s38, {szf}
         s_cmp_lt_u32 s80, 72
         s_cbranch_scc1 L_ffn_role
         s_cmp_lg_u32 s80, 99
         s_cbranch_scc1 L_exit'''.format(szf=0 if 'noffn' in ABL else 576 * 9216))

    if P['wo_early']:
        a('s_and_b32 s29, s2, 7\ns_lshl_b32 s87, s33, 14\ns_add_u32 s87, s87, %d' % L_PF)
        wait_lds(L_OCNT, 2, 1)
    else:
        wo_dma('s33')
    a('v_lshrrev_b32 v2, 2, v0')
    tr_addrs(4, 2, 's87', 3)
    a('''s_lshl_b32 s26, s2, 8
         s_add_u32 s26, s26, {h2}
         s_lshl_b32 s86, s29, 15
         s_lshl_b32 s87, s33, 8
         s_add_u32 s86, s86, s87
         s_add_u32 s86, s86, {h1o}
         v_lshlrev_b32 v{A2}, 4, v{N}
         v_lshl_add_u32 v1, v{GQ}, 12, v{A2}
         v_add_u32 v{A1}, s86, v1
         v_mul_u32_u24 v1, {h2r}, v{GQ}
         v_add_u32 v{A3}, v1, v{A2}
         s_mul_i32 s86, s33, {xs}
         s_add_u32 s86, s86, {xv}
         v_lshl_add_u32 v12, v0, 1, s86
         v_lshl_add_u32 v13, v{GQ}, 5, s86
         s_movk_i32 s22, 0x4000
         v_mov_b32 v10, 0
         v_mov_b32 v11, 1'''.format(GQ=vGQ, N=vN, A1=vA1, A2=vA2, A3=vA3, h1o=WS_H1O, h2=WS_H2, h2r=H2R, xs=XV_STRIDE, xv=L_XV))

    def wo_tr():
        for z in range(4):
            a('s_waitcnt vmcnt(%d) lgkmcnt(4)' % (12 - 4 * z + (8 if P['h1early'] else 0)))
            for j in range(4):
                for h in range(2):
                    a('ds_read_b64_tr_b16 %s, v%d offset:%d' % (vr(PB + 16 * z + 4 * j + 2 * h, 2), 4 + j, 4096 * z + 2048 * h))
        stamp(9)
    if not P['h1early']:
        wo_tr()
    poll_masked([(['buffer_load_dwordx4 %s, v%d, %s, %s offen offset:%d' % (vr(RAW + 16 * gi + 4 * k, 4), vA1, sWS, ('0', 's22')[gi], 1024 * k)
                   for gi in range(2)], [RAW + 16 * gi + 4 * k for gi in range(2)]) for k in range(4)], between=wo_tr if P['h1early'] else None)
    stamp(10)
    for x, y in ((0, 4), (8, 12), (0, 8)):
        for gi in range(2):
            for h in range(2):
                q = RAW + 16 * gi + 2 * h
                a('v_pk_add_f32 %s, %s, %s' % (vr(q + x, 2), vr(q + x, 2), vr(q + y, 2)))
    quadred([RAW, RAW + 16])
    a('''v_cvt_pk_bf16_f32 v8, v{a}, v{b}
         ds_write_b16 v12, v8
         ds_write_b16_d16_hi v12, v8 offset:128'''.format(a=RAW, b=RAW + 16))
    for z in range(4):
        a('ds_read_b128 %s, v13 offset:%d' % (vr(XB + 4 * z, 4), 128 * (z >> 1) + 16 * (z & 1)))
    for z in range(4):
        a('s_waitcnt lgkmcnt(%d)' % (3 - z))
        for cc in range(4):
            d = vr(DR + 4 * cc, 4)
            a('%s %s, %s, %s, %s' % (MF32, d, vr(XB + 4 * z, 4), vr(PB + 16 * z + 4 * cc, 4), d if z else '0'))
    for cc in range(1, 4):
        a('v_mov_b32 v%d, v%d' % (DR + cc, DR + 4 * cc))
    a('''s_mov_b64 exec, 0xffff
         ds_write_b128 v{PW}, {d} offset:{part}
         s_mov_b64 exec, 1
         ds_add_rtn_u32 v11, v10, v11 offset:{cnt}
         s_mov_b32 exec_lo, {lo}
         s_mov_b32 exec_hi, {hi}'''.format(PW=vPW, d=vr(DR, 4), part=L_PART, cnt=L_WCNT,
                                           lo='0xffff' if P['nrep'] == 1 else '-1', hi='-1' if P['nrep'] == 4 else '0'))
    for w in range(4):
        a('ds_read_b128 %s, v%d offset:%d' % (vr(RAW + 4 * w, 4), vA2, L_PART + 256 * w))
    a('''s_waitcnt lgkmcnt(2)
         v_readfirstlane_b32 s86, v11
         v_pk_add_f32 v[16:17], v[16:17], v[20:21]
         v_pk_add_f32 v[18:19], v[18:19], v[22:23]
         s_cmp_lg_u32 s86, 3
         s_cbranch_scc1 L_exit
         s_waitcnt lgkmcnt(0)
         v_pk_add_f32 v[24:25], v[24:25], v[28:29]
         v_pk_add_f32 v[26:27], v[26:27], v[30:31]
         v_pk_add_f32 v[16:17], v[16:17], v[24:25]
         v_pk_add_f32 v[18:19], v[18:19], v[26:27]''')
    each(4, 'v_and_or_b32 v{r}, v{r}, v%d, s{t}' % vMK, r=16, t=96)
    a('buffer_store_dwordx4 v[16:19], v%d, %s, s26 offen %s' % (vA3, sWS, ST))
    stamp(11)
    a('s_branch L_exit')
    a.fence()

    a.label('L_ffn_role')
    a('''s_mov_b32 s36, s64
         s_mov_b32 s37, s65
         v_lshrrev_b32 v1, 3, v0
         v_mul_u32_u24 v1, 9216, v1
         s_mul_i32 s79, s33, %d
         s_lshl_b32 s86, s80, 7
         s_add_u32 s79, s79, s86
         s_mul_i32 s87, s33, 18432
         s_add_u32 s87, s87, %d''' % (144 * 9216, L_PF))
    dma_chunk(2, 3)
    a('v_add_u32 v1, v1, v2')
    for t in range(18):
        a('s_add_u32 m0, s87, %d' % (1024 * t))
        a('s_add_u32 s86, s79, %d' % (8 * t * 9216))
        pace(t, P['pace_1'])
        a('buffer_load_dwordx4 v1, %s, s86 offen %s lds' % (sW, WPOL))
        if t + 1 == P['w2after']:
            a('v_mov_b32 v2, 0\nv_mov_b32 v3, 1\ns_mov_b64 exec, 1\nds_add_u32 v2, v3 offset:20\ns_mov_b64 exec, -1')
    a('v_bfe_u32 v2, v0, 2, 2\nv_mad_u32_u24 v2, v%d, 36, v2' % vGQ)
    tr_addrs(8, 2, 's87', 3)
    a('''s_cmp_lg_u32 s33, 3
         s_cbranch_scc1 L_ffn_join
         ; wave 3 is the final consumer: column c = 8 jf + 4 (lane&1) + row
         s_lshr_b32 s86, s80, 3
         s_lshl_b32 s86, s86, 6
         s_and_b32 s87, s80, 7
         s_lshl_b32 s87, s87, 1
         s_add_u32 s86, s86, s87
         v_and_b32 v3, 1, v0
         v_lshl_add_u32 v1, v{GQ}, 4, v3
         v_add_u32 v1, s86, v1
         v_lshlrev_b32 v{A4}, 2, v1
         v_lshrrev_b32 v2, 1, v0
         v_mul_u32_u24 v2, 2304, v2
         v_lshl_add_u32 v2, v3, 4, v2
         s_lshl_b32 s86, s80, 5
         s_add_u32 s86, s86, {h3}
         v_add_u32 v{A3}, s86, v2
         s_mov_b32 s22, {k1}
         s_mov_b32 s23, {k2}
         v_add_u32 v1, {gb}, v{A4}'''.format(GQ=vGQ, A4=vA4, A3=vA3, h3=WS_H3, k1=24 * 2304, k2=48 * 2304, gb=WS_MOD + 5 * 2304))
    poll_nib(['buffer_load_dword v4, v1, %s, 0 offen' % sWS, 'buffer_load_dword v5, v1, %s, s58 offen' % sWS], [4, 5], lane_tag=True)
    a('v_add_f32 v4, v4, v5\nv_cvt_pk_bf16_f32 v%d, 0, v4' % vGA)
    a.label('L_ffn_join')
    a('s_waitcnt vmcnt(0)')
    for z in range(4):
        for j in range(4):
            for h in range(2):
                a('ds_read_b64_tr_b16 %s, v%d offset:%d' % (vr(PB + 16 * z + 4 * j + 2 * h, 2), 8 + (j ^ (2 * h)), 1024 * z + 512 * h))
        a('s_waitcnt lgkmcnt(4)')
    for j in range(4):
        a('ds_read_b64_tr_b16 %s, v%d offset:%d' % (vr(PB + 64 + 2 * j, 2), 8 + j, 4096))
    stamp(19)
    a('''v_mov_b32 v13, 0
         s_waitcnt lgkmcnt(0)
         v_mov_b32 v11, 1
         s_lshl_b32 s86, s33, 3
         v_mov_b32 v12, s86
         s_cmp_eq_u32 s33, 3
         s_cbranch_scc1 L_t2w3''')
    gate(vA5, P['gate'])
    poll_masked([(['buffer_load_dwordx4 %s, v%d, %s, %s offen offset:%d' % (vr(RAW + 16 * i + 4 * k, 4), vA3, sWS, ('0', '0', 's22')[i], 2048 * (i & 1) + 1024 * k)
                   for i in range(3)], [RAW + 16 * i + 4 * k for i in range(3)]) for k in range(2)])
    stamp(12)
    for i in range(3):
        q = RAW + 16 * i
        for h in range(2):
            a('v_pk_add_f32 %s, %s, %s' % (vr(q + 2 * h, 2), vr(q + 2 * h, 2), vr(q + 4 + 2 * h, 2)))
    quadred([RAW, RAW + 16, RAW + 32])
    for i in range(3):
        rbf(4 + i, RAW + 16 * i)
    each(3, 'v_mul_f32 v{x}, v{x}, v{g}', x=4, g=vGA)
    each(3, 'v_cvt_pk_bf16_f32 v{x}, 0, v{x}', x=4)
    each(3, 'v_add_f32 v{x}, v{x}, v{y}', x=4, y=vX)
    each(3, 'v_cvt_pk_bf16_f32 v{x}, 0, v{x}', x=4)
    a('''v_add_f32 v2, v4, v5
         v_mul_f32 v3, v4, v4
         ds_write_b32 v{A4}, v4 offset:{x0}
         v_fmac_f32 v3, v5, v5
         v_add_f32 v2, v2, v6
         ds_write_b32 v{A4}, v5 offset:{x1}
         v_fmac_f32 v3, v6, v6
         ds_write_b32 v{A4}, v6 offset:{x2}'''.format(A4=vA4, x0=L_X2, x1=L_X2 + 256, x2=L_X2 + 512))
    allred('v_add_f32', [2, 3], [8, 9])
    a('''s_mov_b64 exec, 1
         ds_write_b64 v12, v[2:3] offset:%d
         ds_add_u32 v13, v11 offset:%d''' % (L_ST, L_ACNT))
    a('s_branch L_t2b\nL_t2w3:\nv_mov_b32 v1, 0')
    wait_lds(L_ACNT, 1, 1)
    a.label('L_t2b')
    a('s_mov_b64 exec, s[84:85]')
    a('''L_xwait:
         ds_read_b32 v10, v13 offset:{ac}
         ds_read_b128 v[4:7], v13 offset:{st}
         ds_read_b64 v[8:9], v13 offset:{st2}
         ds_read_b128 {x}, v{Xo} offset:{x2}
         s_waitcnt lgkmcnt(3)
         v_cmp_gt_u32 vcc, 3, v10
         s_cbranch_vccnz L_xwait
         s_waitcnt lgkmcnt(1)
         v_add_f32 v2, v4, v6
         v_add_f32 v3, v5, v7
         v_add_f32 v2, v2, v8
         v_add_f32 v3, v3, v9
         s_waitcnt lgkmcnt(0)'''.format(ac=L_ACNT, st=L_ST, st2=L_ST + 16, x=vr(RAW, 4), Xo=vXo, x2=L_X2))
    ln_finish(RAW)
    modulate(RAW)
    gemv_run()
    a('s_mov_b64 exec, 1\nds_add_u32 v13, v11 offset:%d' % L_BCNT)
    stamp(13)
    a('''s_mov_b64 exec, -1
         s_cmp_lg_u32 s33, 3
         s_cbranch_scc1 L_exit''')
    a('ds_read_b32 v12, v%d offset:%d' % (vA4, L_X2))
    each(12, 'v_mov_b32 v{r}, 0', r=RAW)
    a('v_lshrrev_b32 v1, 1, v%d' % vA4)
    if P['d3']:
        a('s_sleep %d' % P['d3'])
    poll_masked([(['buffer_load_dwordx4 %s, v%d, %s, %s offen' % (vr(RAW + 4 * k, 4), vA3, sWS, ('0', 's22', 's23')[k])], [RAW + 4 * k])
                 for k in range(3)], hi='0xffff')
    stamp(15)
    each(4, 'v_add_f32 v{x}, v{x}, v{y}', x=RAW, y=RAW + 4)
    each(4, 'v_add_f32 v{x}, v{x}, v{y}', x=RAW, y=RAW + 8)
    quadred([RAW])
    rowred('v_add_f32', [RAW], first=1)
    rbf(4, RAW)
    a('v_mul_f32 v4, v4, v%d' % vGA)
    rbf(4, 4)
    a('''s_waitcnt lgkmcnt(0)
         v_add_f32 v4, v4, v12
         v_cvt_pk_bf16_f32 v4, v4, v4
         s_mov_b32 exec_lo, 0x00030003
         s_mov_b32 exec_hi, 0x00030003
         buffer_store_short v4, v1, %s, 0 offen
         s_cmp_lg_u32 s80, 0
         s_cbranch_scc1 L_noep
         s_mov_b64 exec, 1
         v_mov_b32 v5, s35
         buffer_store_dword v5, v14, %s, 0 offen offset:%d
         L_noep:''' % (sOUT, sWS, WS_EPOCH))
    stamp(16)
    a.label('L_exit')
    if P['stamps']:
        a('v_writelane_b32 v15, s80, 29\nv_writelane_b32 v%d, s81, 30\ns_getreg_b32 s4, hwreg(HW_REG_XCC_ID, 0, 3)\nv_writelane_b32 v%d, s4, 31' % (vST, vST))
    stamp_flush()
    a.label('L_end')
    a('s_endpgm')
    a.raw('.fill 64, 4, 0xbf800000')
    a.raw('''.section .rodata,"a"
.p2align 6
.amdhsa_kernel %s_kernel
  .amdhsa_next_free_vgpr 256
  .amdhsa_next_free_sgpr 102
  .amdhsa_accum_offset 256
  .amdhsa_group_segment_fixed_size 0
  .amdhsa_kernarg_size 104
  .amdhsa_user_sgpr_count 2
  .amdhsa_user_sgpr_kernarg_segment_ptr 1
  .amdhsa_system_sgpr_workgroup_id_x 1
  .amdhsa_float_denorm_mode_32 3
.end_amdhsa_kernel''' % NAME)
    return a.text()


if __name__ == '__main__':
    out = sys.argv[1]
    kw = eval('dict(%s)' % (sys.argv[2] if len(sys.argv) > 2 else ''))
    open(out, 'w').write(gen(**kw))
```
